```python
import torch

def _softmax(x, axis=-1):
    return torch.softmax(x, dim=axis)
def _gelu(x):
    return torch.nn.functional.gelu(x, approximate="tanh")
def _silu(x):
    return torch.nn.functional.silu(x)
def _sigmoid(x):
    return torch.sigmoid(x)
def _layernorm(x, axis=-1, eps=1e-5):
    m = x.mean(dim=axis, keepdim=True)
    v = x.var(dim=axis, keepdim=True, unbiased=False)
    return (x - m) / torch.sqrt(v + eps)
def _scatter_add(tgt, idx, src, axis=0):
    return tgt.clone().index_add_(axis, idx, src)
def _segment_sum(src, seg, n):
    out = torch.zeros((n,) + src.shape[1:], dtype=src.dtype)
    return out.index_add_(0, seg, src)
def _pad(x, pw):
    flat = tuple(v for pair in reversed(pw) for v in pair)
    return torch.nn.functional.pad(x, flat)

kernel_name = 'sequential_preLN__sliding_local_dilated__glu_gated_reglu__prompt'

def setup_inputs():

    _w = (lambda a: (lambda t: t.to(torch.bfloat16) if t.is_floating_point() else t)(torch.as_tensor(a)))
    def _A_setup():
        B, S, D = 1, 2048, 512
        return {
            "x": _w((lambda *s: torch.randn(*s, dtype=torch.bfloat16) * 0.05)(B, S, D)),
            "wqkv": _w((lambda *s: torch.randn(*s, dtype=torch.bfloat16) * 0.05)(D, 3 * D)),
            "wo": _w((lambda *s: torch.randn(*s, dtype=torch.bfloat16) * 0.05)(D, D)),
        }
    _A_in = _A_setup()

    def _B_setup():
        B, S, D, F = 1, 2048, 512, 1376
        return {
            "x": _w((lambda *s: torch.randn(*s, dtype=torch.bfloat16) * 0.05)(B, S, D)),
            "W_gate": _w((lambda *s: torch.randn(*s, dtype=torch.bfloat16) * 0.8)(D, F) * (2.0 / D) ** 0.5),
            "W_up": _w((lambda *s: torch.randn(*s, dtype=torch.bfloat16) * 0.8)(D, F) * (2.0 / D) ** 0.5),
            "W_down": _w((lambda *s: torch.randn(*s, dtype=torch.bfloat16) * 0.8)(F, D) * (1.0 / F) ** 0.5),
        }
    _B_in = _B_setup()

    return {
        "A_x": _A_in["x"],
        "A_wqkv": _A_in["wqkv"],
        "A_wo": _A_in["wo"],
        "B_x": _B_in["x"],
        "B_W_gate": _B_in["W_gate"],
        "B_W_up": _B_in["W_up"],
        "B_W_down": _B_in["W_down"],
    }

def reference(A_x, A_wqkv, A_wo, B_x, B_W_gate, B_W_up, B_W_down):
    def _A_ref(x, wqkv, wo):
        B, S, D = x.shape
        H = 32; Dh = D // H
        W, dil = 8, 2
        qkv = (lambda x, *d: x.permute(*d))((x @ wqkv).reshape(B, S, 3, H, Dh), 2, 0, 3, 1, 4)
        q, k, v = qkv[0], qkv[1], qkv[2]
        scale = Dh ** -0.5
        pos = torch.arange(S)
        off = torch.arange(W) * dil
        idx = pos[:, None] - off[None, :]
        mask = idx >= 0
        idx_c = torch.where(mask, idx, 0).reshape(-1)
        kg = k[:, :, idx_c, :].reshape(B, H, S, W, Dh)
        vg = v[:, :, idx_c, :].reshape(B, H, S, W, Dh)
        logits = torch.einsum("bhsd,bhswd->bhsw", q, kg) * scale
        logits = torch.where(mask[None, None, :, :], logits, -1e9)
        attn = _softmax(logits, axis=-1)
        o = torch.einsum("bhsw,bhswd->bhsd", attn, vg)
        return (lambda x, *d: x.permute(*d))(o, 0, 2, 1, 3).reshape(B, S, D) @ wo

    def _B_ref(x, W_gate, W_up, W_down):
        gate = torch.einsum("bsd,df->bsf", x, W_gate)
        up = torch.einsum("bsd,df->bsf", x, W_up)
        gate = gate * (lambda x, dt: x.to(dt))(gate > 0, gate.dtype)
        h = gate * up
        return torch.einsum("bsf,fd->bsd", h, W_down)

    x = A_x
    h = x + _A_ref(_layernorm(x, axis=-1), A_wqkv, A_wo)
    h2 = h + _B_ref(_layernorm(h, axis=-1), B_W_gate, B_W_up, B_W_down)
    return h2
```

```python
import re

REG_RE = re.compile(r"\b([vas])(\d+)\b|\b([vas])\[(\d+):(\d+)\]|\b(vcc|exec|m0|scc)\b")
TRANS = ("v_exp_f32", "v_log_f32", "v_rcp_f32", "v_rsq_f32", "v_sqrt_f32", "v_sin_f32", "v_cos_f32")


def regs_of(tok):
    out = []
    for m in REG_RE.finditer(tok):
        if m.group(1):
            out.append((m.group(1), int(m.group(2))))
        elif m.group(3):
            for i in range(int(m.group(4)), int(m.group(5)) + 1):
                out.append((m.group(3), i))
        else:
            out.append((m.group(6), 0))
    return out


def split_ops(s):
    ops, depth, cur = [], 0, ""
    for ch in s:
        if ch == "[":
            depth += 1
        if ch == "]":
            depth -= 1
        if ch == "," and depth == 0:
            ops.append(cur.strip())
            cur = ""
        else:
            cur += ch
    if cur.strip():
        ops.append(cur.strip())
    return ops


class Ins:
    __slots__ = ("text", "mn", "kind", "rd", "wr", "srcc", "srcab", "states", "dpp", "lds_dma", "wide_store")


def classify(text):
    t = text.split(";")[0].strip()
    I = Ins()
    I.text = text
    parts = t.split(None, 1)
    mn = parts[0]
    rest = parts[1] if len(parts) > 1 else ""
    I.mn = mn
    I.rd, I.wr, I.srcc, I.srcab = set(), set(), set(), set()
    I.states = 1
    I.dpp = ("row_" in rest) or ("quad_perm" in rest) or mn.endswith("_dpp")
    I.lds_dma = False
    I.wide_store = False
    ops = split_ops(rest)
    if ops:
        last = ops[-1].split()
        mods = last[1:]
        ops[-1] = last[0] if last else ""
    else:
        mods = []
    R = lambda i: set(regs_of(ops[i])) if i < len(ops) else set()
    allr = lambda a: set().union(*[R(i) for i in range(a, len(ops))]) if a < len(ops) else set()
    if mn == "s_nop":
        I.kind = "nop"
        I.states = int(ops[0], 0) + 1
    elif mn.startswith("v_mfma"):
        I.kind = "mfma"
        I.wr = R(0)
        I.srcab = R(1) | R(2)
        I.srcc = R(3)
        I.rd = I.srcab | I.srcc
    elif mn.startswith("v_"):
        I.kind = "valu"
        if mn.startswith("v_permlane") and "swap" in mn:
            I.wr = R(0) | R(1)
            I.rd = R(0) | R(1)
        elif mn.startswith("v_cmp"):
            I.wr = R(0)
            I.rd = allr(1)
        elif mn in ("v_add_co_u32", "v_sub_co_u32", "v_addc_co_u32", "v_subb_co_u32"):
            I.wr = R(0) | R(1)
            I.rd = allr(2)
        else:
            I.wr = R(0)
            I.rd = allr(1)
            if mn.startswith("v_fmac") or mn.startswith("v_dot2c") or I.dpp:
                I.rd |= R(0)
            if mn.startswith("v_cndmask") and len(ops) == 3:
                I.rd |= {("vcc", 0)}
    elif mn.startswith("ds_"):
        I.kind = "ds"
        if mn.startswith("ds_read") or mn.startswith("ds_bpermute") or mn.startswith("ds_swizzle") or mn.startswith("ds_permute"):
            I.wr = R(0)
            I.rd = allr(1)
        else:
            I.rd = allr(0)
    elif mn.startswith("buffer_") or mn.startswith("global_"):
        I.kind = "vmem"
        is_lds = ("lds" in mods) or ("_lds_" in mn)
        if mn in ("buffer_inv", "buffer_wbl2"):
            pass
        elif is_lds:
            I.lds_dma = True
            I.rd = allr(0) | {("m0", 0)}
        elif "_load" in mn:
            I.wr = R(0)
            I.rd = allr(1)
        elif "_store" in mn:
            I.rd = allr(0)
            I.wide_store = mn.endswith("x4") or mn.endswith("x3")
        elif "atomic" in mn:
            I.rd = allr(0)
            if "sc0" in mods:
                I.wr = R(0)
        else:
            raise ValueError(text)
    elif mn.startswith("s_"):
        I.kind = "salu"
        if mn.startswith("s_load") or mn.startswith("s_memtime") or mn.startswith("s_memrealtime") or mn.startswith("s_atomic"):
            I.kind = "smem"
            I.wr = R(0)
            I.rd = allr(1)
        elif mn.startswith("s_cmp") or mn.startswith("s_cbranch") or mn.startswith("s_branch") or mn.startswith("s_bitcmp") or mn in (
            "s_waitcnt", "s_barrier", "s_endpgm", "s_sleep", "s_setprio"):
            I.rd = allr(0)
        elif "saveexec" in mn:
            I.wr = R(0) | {("exec", 0)}
            I.rd = allr(1)
        else:
            I.wr = R(0)
            I.rd = allr(1)
    else:
        raise ValueError("unknown instruction: " + text)
    return I


def vec(rs):
    return {r for r in rs if r[0] in ("v", "a")}


def sca(rs):
    return {r for r in rs if r[0] in ("s", "vcc")}


def mfma_passes(mn):
    if "32x32" in mn:
        return 8
    return 4


def need_states(p, c):
    n = 0
    if p.kind == "valu":
        pw = vec(p.wr)
        if c.kind == "mfma" and pw & c.rd:
            n = max(n, 2)
        if c.kind == "valu":
            if c.mn.startswith("v_permlane") and pw & c.rd:
                n = max(n, 2)
            if c.dpp and pw & c.rd:
                n = max(n, 2)
            if (c.mn.startswith("v_readfirstlane") or c.mn.startswith("v_readlane")) and pw & c.rd:
                n = max(n, 1)
            if p.mn in TRANS and c.mn not in TRANS and pw & (c.rd | c.wr):
                n = max(n, 1)
            if sca(p.wr) & c.rd:
                n = max(n, 4 if c.mn.startswith("v_readlane") or c.mn.startswith("v_writelane") else 2)
            if "op_sel" in p.text and pw & (c.rd | c.wr):
                n = max(n, 1)
        if p.mn.startswith("v_dot") and pw & (c.rd | c.wr):
            if not (c.mn == p.mn and not (pw & (set(regs_of(split_ops(c.text.split(None,1)[1])[1])) | set(regs_of(split_ops(c.text.split(None,1)[1])[2]))))):
                n = max(n, 3)
        if c.kind == "vmem" and sca(p.wr) & c.rd:
            n = max(n, 5)
        if c.kind in ("salu", "smem") and sca(p.wr) & c.rd:
            n = max(n, 2)
        if p.mn in TRANS and c.kind in ("ds", "vmem", "mfma") and pw & c.rd:
            n = max(n, 2)
    if p.kind == "mfma":
        ps = mfma_passes(p.mn)
        big = {4: 8, 8: 12}[ps]
        if c.kind == "mfma":
            if p.wr & c.srcab:
                n = max(n, big)
            if p.wr & c.srcc:
                if c.srcc == p.wr and mfma_passes(c.mn) == ps and c.mn == p.mn:
                    pass
                else:
                    n = max(n, {4: 6, 8: 10}[ps])
            elif p.wr & c.wr:
                n = max(n, {4: 6, 8: 10}[ps])
        elif c.kind in ("valu", "ds", "vmem"):
            if p.wr & (c.rd | c.wr):
                n = max(n, big)
            if c.kind == "valu" and p.srcc & c.wr:
                n = max(n, {4: 3, 8: 7}[ps])
            if c.kind in ("ds", "vmem") and p.srcc & c.wr:
                n = max(n, {4: 3, 8: 7}[ps])
    if p.kind == "salu":
        if ("m0", 0) in p.wr and c.kind == "vmem" and c.lds_dma:
            n = max(n, 1)
    if p.kind == "vmem" and p.wide_store:
        if vec(p.rd) & c.wr:
            n = max(n, 2)
    if p.kind == "ds" and p.mn in ("ds_write_b128", "ds_write_b96"):
        if vec(p.rd) & c.wr and c.kind == "valu":
            n = max(n, 1)
    return n


class Asm:
    def __init__(self):
        self.out = []
        self.hist = []
        self.vm = []
        self.lg = []
        self.nins = 0
        self.nnop = 0

    def raw(self, text):
        self.out.append(text)

    def comment(self, text):
        self.out.append("    ; " + text)

    def label(self, name, pad=True):
        self.out.append(name + ":")

    def fence(self, n=12):
        d = 0
        need = 0
        for p in reversed(self.hist):
            if p.kind == "mfma":
                need = max(need, 12 - d)
            elif p.kind == "valu":
                need = max(need, 5 - d)
            elif p.kind in ("salu", "vmem", "ds"):
                need = max(need, 2 - d)
            d += p.states
            if d > 24:
                break
        self._nops(need)

    def _nops(self, k):
        while k > 0:
            m = min(k, 16)
            I = classify("s_nop %d" % (m - 1))
            self.out.append("    s_nop %d" % (m - 1))
            self.hist.append(I)
            self.nnop += 1
            k -= m

    def __call__(self, text, tag=None):
        for line in text.strip().split("\n"):
            line = line.strip()
            if not line:
                continue
            if line.startswith(";"):
                self.out.append("    " + line)
                continue
            if line.endswith(":"):
                self.label(line[:-1])
                continue
            I = classify(line)
            d = 0
            need = 0
            for p in reversed(self.hist):
                n = need_states(p, I)
                if n - d > need:
                    need = n - d
                d += p.states
                if d > 24:
                    break
            self._nops(need)
            self.out.append("    " + line)
            self.hist.append(I)
            if len(self.hist) > 64:
                self.hist = self.hist[-40:]
            self.nins += 1
            if I.kind == "vmem" and I.mn not in ("buffer_inv", "buffer_wbl2"):
                self.vm.append(tag)
            elif I.kind == "ds":
                self.lg.append(tag)
            elif I.mn == "s_waitcnt":
                m = re.search(r"vmcnt\((\d+)\)", line)
                if m:
                    n = int(m.group(1))
                    self.vm = self.vm[len(self.vm) - n:] if n < len(self.vm) else self.vm
                    if n == 0:
                        self.vm = []
                m = re.search(r"lgkmcnt\((\d+)\)", line)
                if m:
                    n = int(m.group(1))
                    self.lg = self.lg[len(self.lg) - n:] if n < len(self.lg) else self.lg
                    if n == 0:
                        self.lg = []

    def _cnt(self, q, tags):
        if not isinstance(tags, (list, tuple, set)):
            tags = [tags]
        last = -1
        for i, t in enumerate(q):
            if t in tags:
                last = i
        if last < 0:
            return None
        return len(q) - 1 - last

    def wait_vm(self, tags):
        n = self._cnt(self.vm, tags)
        if n is None:
            return
        self("s_waitcnt vmcnt(%d)" % min(n, 63))

    def wait_lg(self, tags):
        n = self._cnt(self.lg, tags)
        if n is None:
            return
        self("s_waitcnt lgkmcnt(%d)" % min(n, 15))

    def text(self):
        return "\n".join(self.out) + "\n"


def v(a, n=1):
    return "v%d" % a if n == 1 else "v[%d:%d]" % (a, a + n - 1)


def a_(a, n=1):
    return "a%d" % a if n == 1 else "a[%d:%d]" % (a, a + n - 1)


def s(a, n=1):
    return "s%d" % a if n == 1 else "s[%d:%d]" % (a, a + n - 1)


def r(spec, off=0, n=1):
    k, b = spec
    return (v if k == "v" else a_)(b + off, n)
```

```python
import sys
from asmlib import *

NAME = "sequential_preLN__sliding_local_dilated__glu_gated_reglu__prompt"

WS_O = 0x100000
WS_H = 0x300000
WS_HH = 0x500000
WS_ST = 0xC00000
HHK = 48

SX, SWQ, SWO, SWG, SWU, SWD, SOUT, SWS, SDBG = 4, 8, 12, 16, 20, 24, 28, 32, 36
sW, sG, sJ, sHB, sCB, sRB, sIDX = 60, 61, 62, 63, 64, 65, 66
sT0 = 68

LOG2E = 1.4426950408889634


def f32hex(x):
    import struct
    return "0x%08x" % struct.unpack("<I", struct.pack("<f", x))[0]


def prologue(A, label):
    A.raw(".p2align 8\n.globl %s\n.type %s,@function\n%s:" % (label, label, label))
    A(f"""
    s_cmp_ge_u32 s2, 256
    s_cbranch_scc1 {label}_done
    s_load_dwordx16 s[40:55], s[0:1], 0
    s_load_dwordx4 s[56:59], s[0:1], 64
    v_and_b32 v1, 63, v0
    v_lshrrev_b32 v2, 6, v0
    s_lshr_b32 s{sIDX}, s2, 3
    s_and_b32 s{sG}, s2, 7
    s_lshl_b32 s{sG}, s{sG}, 1
    v_readfirstlane_b32 s{sW}, v2
    s_lshr_b32 s{sT0}, s{sIDX}, 4
    s_add_u32 s{sG}, s{sG}, s{sT0}
    s_and_b32 s{sJ}, s{sIDX}, 15
    s_lshr_b32 s{sHB}, s{sJ}, 3
    s_and_b32 s{sCB}, s{sJ}, 7
    s_lshl_b32 s{sRB}, s{sG}, 1
    s_add_u32 s{sRB}, s{sRB}, s{sHB}
    """)


def build_srds(A, which):
    A("s_waitcnt lgkmcnt(0)")
    tab = {
        "x": (SX, 40, 2048 * 512 * 2), "wq": (SWQ, 42, 512 * 1536 * 2), "wo": (SWO, 44, 512 * 512 * 2),
        "wg": (SWG, 48, 512 * 1376 * 2), "wu": (SWU, 50, 512 * 1376 * 2), "wd": (SWD, 52, 1376 * 512 * 2),
        "out": (SOUT, 54, 2048 * 512 * 2), "ws": (SWS, 58, 0x1000000), "dbg": (SDBG, 56, 256),
    }
    for k in which:
        d, p, n = tab[k]
        A(f"""
        s_mov_b32 s{d}, s{p}
        s_and_b32 s{d+1}, s{p+1}, 0xffff
        s_mov_b32 s{d+2}, {n}
        s_mov_b32 s{d+3}, 0x20000
        """)


def interleave(main, fill, start=0, every=1):
    out = []
    fi = 0
    for i, m in enumerate(main):
        out.append(m)
        if i >= start and (i - start) % every == 0 and fi < len(fill):
            out.append(fill[fi])
            fi += 1
    out.extend(fill[fi:])
    return out


def emit(A, items):
    for it in items:
        if callable(it):
            it()
        else:
            A(it[0], tag=it[1])


MF = "v_mfma_f32_16x16x32_bf16"
MF16 = "v_mfma_f32_16x16x16_bf16"


def p1(A):
    XB, WB, ST = 0, 81920, 155648
    vL, vJ, vQ = 1, 2, 3
    vXs, vWe, vWo_, vA0, vA1, vS0, vS1, vWt, vWt2 = 4, 5, 6, 7, 8, 9, 10, 11, 12
    vT = 13
    accQ, accK, accV, Gm, Sm, Gh, Sh = 16, 36, 56, 76, 80, 84, 88
    Af = [92, 116]
    Sf = [112, 136]
    Wf = [140, 152]
    ones = 164
    sKC0, sXo, sXl, sWl, sWs, sEX = 70, 72, 77, 78, 79, 80
    sM1, sM2, sM3, sDiag = 82, 84, 86, 88
    sA, sB = 90, 91
    A(f"""
    v_and_b32 v{vJ}, 15, v{vL}
    v_lshrrev_b32 v{vQ}, 4, v{vL}
    v_lshrrev_b32 v13, 3, v{vL}
    v_and_b32 v14, 7, v{vL}
    v_and_b32 v15, 6, v13
    v_xor_b32 v15, v14, v15
    v_lshlrev_b32 v15, 4, v15
    v_lshl_add_u32 v{vXs}, v13, 10, v15
    v_and_b32 v15, 2, v13
    v_xor_b32 v15, v14, v15
    v_lshlrev_b32 v15, 4, v15
    v_mul_u32_u24 v{vWe}, 3072, v13
    v_add_u32 v{vWe}, v{vWe}, v15
    v_xor_b32 v{vWo_}, 64, v{vWe}
    v_add_u32 v{vWo_}, 24576, v{vWo_}
    v_lshrrev_b32 v13, 3, v{vJ}
    v_and_b32 v14, 7, v{vJ}
    v_lshlrev_b32 v14, 7, v14
    v_lshl_add_u32 v13, v13, 10, v14
    v_and_b32 v14, 6, v{vJ}
    v_xor_b32 v14, v{vQ}, v14
    v_lshl_add_u32 v{vA0}, v14, 4, v13
    v_xor_b32 v{vA1}, 64, v{vA0}
    s_add_u32 s{sA}, s{sW}, 1
    s_lshl_b32 s{sA}, s{sA}, 11
    v_add_u32 v{vS0}, s{sA}, v{vA0}
    v_xor_b32 v{vS1}, 64, v{vS0}
    """)
    A(f"""
    v_bfe_u32 v13, v{vL}, 2, 2
    v_bfe_u32 v14, v{vL}, 1, 1
    s_lshl_b32 s{sA}, s{sW}, 1
    v_add_u32 v14, s{sA}, v14
    v_and_b32 v15, 1, v{vQ}
    v_lshlrev_b32 v15, 2, v15
    v_xor_b32 v14, v14, v15
    v_and_b32 v15, 2, v13
    v_xor_b32 v14, v14, v15
    v_lshlrev_b32 v14, 4, v14
    v_lshl_add_u32 v14, v13, 7, v14
    v_and_b32 v15, 1, v{vL}
    v_lshl_add_u32 v14, v15, 3, v14
    v_mul_u32_u24 v15, 3072, v{vQ}
    v_add_u32 v14, v14, v15
    v_add_u32 v{vWt}, {WB}, v14
    v_add_u32 v{vWt2}, {WB + 49152}, v14
    v_mov_b32 v{ones}, 0x3f803f80
    v_mov_b32 v{ones+1}, 0x3f803f80
    v_mov_b32 v{ones+2}, 0x3f803f80
    v_mov_b32 v{ones+3}, 0x3f803f80
    """)
    A(f"""
    s_lshr_b32 s{sA}, s{sIDX}, 3
    s_lshl_b32 s{sA}, s{sA}, 1
    s_add_u32 s{sKC0}, s{sA}, s{sCB}
    s_and_b32 s{sA}, s{sW}, 1
    s_mul_i32 s{sB}, s{sA}, 40960
    s_lshl_b32 s{sXo}, s{sRB}, 16
    s_add_u32 s{sXo}, s{sXo}, s{sB}
    s_sub_u32 s{sXo}, s{sXo}, 16384
    s_add_u32 s{sXo+1}, s{sXo}, 8192
    s_add_u32 s{sXo+2}, s{sXo}, 16384
    s_add_u32 s{sXo+3}, s{sXo}, 24576
    s_add_u32 s{sXo+4}, s{sXo}, 32768
    s_max_i32 s{sXo}, s{sXo}, 0
    s_max_i32 s{sXo+1}, s{sXo+1}, 0
    s_mul_i32 s{sXl}, s{sA}, 5120
    s_lshr_b32 s{sB}, s{sW}, 1
    s_mul_i32 s{sB}, s{sB}, 10240
    s_add_u32 s{sXl}, s{sXl}, s{sB}
    s_mul_i32 s{sWl}, s{sW}, 6144
    s_add_u32 s{sWl}, s{sWl}, {WB}
    s_mul_i32 s{sWs}, s{sW}, 49152
    s_lshl_b32 s{sB}, s{sCB}, 7
    s_add_u32 s{sWs}, s{sWs}, s{sB}
    s_cmp_eq_u32 s{sA}, 0
    s_cselect_b32 s{sEX}, 0xffffff00, -1
    s_mov_b32 s{sEX+1}, -1
    """)
    A(f"""
    v_lshrrev_b32 v13, 3, v{vL}
    v_mul_u32_u24 v13, 10240, v13
    v_and_b32 v14, 7, v{vL}
    v_lshl_add_u32 v13, v14, 4, v13
    ds_write_b128 v13, v[{ones}:{ones+3}]
    """)
    build_srds(A, ["x", "wq", "ws"])

    def x_dma(dc):
        it = []
        it.append((f"""
        s_lshr_b32 s{sA}, s{sW}, 1
        s_add_u32 s{sA}, s{sA}, s{sKC0}
        s_add_u32 s{sA}, s{sA}, {2*dc}
        s_and_b32 s{sA}, s{sA}, 7
        s_lshl_b32 s{sA}, s{sA}, 7""", None))
        for n in range(5):
            pre = f"s_mov_b64 exec, s[{sEX}:{sEX+1}]\n" if n == 0 else ""
            post = "\ns_mov_b64 exec, -1" if n == 0 else ""
            it.append((f"""{pre}s_add_u32 m0, s{sXl}, {XB + dc*20480 + n*1024}
            s_add_u32 s{sB}, s{sXo+n}, s{sA}
            buffer_load_dwordx4 v{vXs}, s[{SX}:{SX+3}], s{sB} offen lds{post}""", f"x{dc}"))
        return it

    def w_dma(i):
        slot = i % 3
        it = []
        it.append((f"""
        s_add_u32 s{sA}, s{sKC0}, {i}
        s_and_b32 s{sA}, s{sA}, 7
        s_mul_i32 s{sA}, s{sA}, {64*3072}
        s_add_u32 s{sA}, s{sA}, s{sWs}
        s_add_u32 m0, s{sWl}, {slot*24576}""", None))
        for sec in range(3):
            it.append((f"buffer_load_dwordx4 v{vWe}, s[{SWQ}:{SWQ+3}], s{sA} offen offset:{sec*1024} lds", f"w{i}"))
        it.append((f"s_add_u32 m0, s{sWl}, {slot*24576+3072}", None))
        for sec in range(3):
            it.append((f"buffer_load_dwordx4 v{vWo_}, s[{SWQ}:{SWQ+3}], s{sA} offen offset:{sec*1024} lds", f"w{i}"))
        return it

    def reads(i, sidx):
        slot = i % 3
        it = []
        va = vA0 if sidx == 0 else vA1
        vs = vS0 if sidx == 0 else vS1
        xo = (i % 4) * 10240
        wt, wo = (vWt, slot * 24576) if slot < 2 else (vWt2, 0)
        tag = f"r{i}_{sidx}"
        for sec in range(3):
            for hf in range(2):
                it.append((f"ds_read_b64_tr_b16 v[{Wf[sidx]+sec*4+hf*2}:{Wf[sidx]+sec*4+hf*2+1}], v{wt} offset:{wo + sidx*12288 + sec*1024 + hf*512}", tag))
        for t in range(5):
            it.append((f"ds_read_b128 v[{Af[sidx]+4*t}:{Af[sidx]+4*t+3}], v{va} offset:{xo + t*2048}", tag))
        it.append((f"ds_read_b128 v[{Sf[sidx]}:{Sf[sidx]+3}], v{vs} offset:{xo}", tag))
        return it

    def mfmas(i, sidx):
        first = (i == 0 and sidx == 0)
        it = []
        W = lambda sec: v(Wf[sidx] + 4 * sec, 4)
        X = lambda t: v(Af[sidx] + 4 * t, 4)
        def m(acc, a, b):
            c = "0" if first else v(acc, 4)
            it.append((f"{MF} {v(acc,4)}, {a}, {b}, {c}", None))
        for t in range(5):
            m(accQ + 4 * t, W(0), X(t))
            m(accK + 4 * t, W(1), X(t))
            m(accV + 4 * t, X(t), W(2))
        m(Gh, X(0), X(0))
        m(Sh, v(ones, 4), X(0))
        m(Gm, v(Sf[sidx], 4), v(Sf[sidx], 4))
        m(Sm, v(ones, 4), v(Sf[sidx], 4))
        return it

    emit(A, x_dma(0) + w_dma(0) + w_dma(1) + x_dma(1) + w_dma(2))
    for i in range(8):
        A.wait_vm([f"w{i}", f"x{i//2}"])
        A("s_waitcnt lgkmcnt(0)\ns_barrier")
        if i == 4:
            A(f"""v_add_u32 v{vA0}, 40960, v{vA0}
            v_add_u32 v{vA1}, 40960, v{vA1}
            v_add_u32 v{vS0}, 40960, v{vS0}
            v_add_u32 v{vS1}, 40960, v{vS1}""")
        dm = []
        if i in (1, 3):
            dm += x_dma(i // 2 + 2)
        if 1 <= i and i + 2 <= 7:
            dm += w_dma(i + 2)
        if i > 0:
            emit(A, interleave(mfmas(i - 1, 1), reads(i, 0)))
        else:
            emit(A, reads(i, 0))
        A.wait_lg(f"r{i}_0")
        emit(A, interleave(mfmas(i, 0), interleave(reads(i, 1), dm)))
    A.wait_lg("r7_1")
    emit(A, mfmas(7, 1))

    t0, t1, t2, t3 = 92, 93, 94, 95
    A(f"""
    v_and_b32 v13, 3, v{vJ}
    v_cmp_eq_u32 s[{sM1}:{sM1+1}], 1, v13
    v_cmp_eq_u32 s[{sM2}:{sM2+1}], 2, v13
    v_cmp_eq_u32 s[{sM3}:{sM3+1}], 3, v13
    v_lshrrev_b32 v13, 2, v{vJ}
    v_cmp_eq_u32 s[{sDiag}:{sDiag+1}], v13, v{vQ}
    s_add_u32 s{sA}, s{sW}, 1
    s_lshl_b32 s{sA}, s{sA}, 6
    v_lshlrev_b32 v13, 2, v{vJ}
    v_add_u32 v13, {ST}, v13
    v_add_u32 v14, s{sA}, v13
    v_lshlrev_b32 v15, 4, v{vQ}
    v_add_u32 v15, {ST}, v15
    """)
    for (G, S, tm, tr_) in ((Gm, Sm, 92, 93), (Gh, Sh, 94, 95)):
        A(f"""
        v_cndmask_b32 v{tr_}, v{G}, v{G+1}, s[{sM1}:{sM1+1}]
        v_cndmask_b32 v{tr_}, v{tr_}, v{G+2}, s[{sM2}:{sM2+1}]
        v_cndmask_b32 v{tr_}, v{tr_}, v{G+3}, s[{sM3}:{sM3+1}]
        v_mul_f32 v{tm}, 0x3b000000, v{S}
        v_mul_f32 v{tr_}, 0x3b000000, v{tr_}
        v_fma_f32 v{tr_}, -v{tm}, v{tm}, v{tr_}
        v_max_f32 v{tr_}, 0, v{tr_}
        v_add_f32 v{tr_}, {f32hex(1e-5)}, v{tr_}
        v_rsq_f32 v{tr_}, v{tr_}
        """)
    A(f"""
    s_mov_b64 exec, s[{sDiag}:{sDiag+1}]
    ds_write2_b32 v14, v92, v93 offset0:0 offset1:80
    ds_write2_b32 v13, v94, v95 offset0:0 offset1:80
    s_mov_b64 exec, -1
    s_waitcnt lgkmcnt(0)
    s_barrier
    """)
    L1 = 92
    L2M = 104
    L2R = 124
    csQ, csK, csV = 144, 148, 152
    for t in range(5):
        A(f"ds_read2_b32 v[{L1+2*t}:{L1+2*t+1}], v13 offset0:{16*t} offset1:{80+16*t}", tag="st")
    for t in range(5):
        A(f"ds_read_b128 v[{L2M+4*t}:{L2M+4*t+3}], v15 offset:{64*t}", tag="st")
        A(f"ds_read_b128 v[{L2R+4*t}:{L2R+4*t+3}], v15 offset:{320+64*t}", tag="st")
    A(f"""
    v_lshlrev_b32 v14, 2, v{vJ}
    ds_bpermute_b32 v{csV}, v14, v{accV}
    """)
    for r_ in range(4):
        A(f"v_mov_b32_dpp v{csQ+r_}, v{accQ+r_} row_newbcast:0 row_mask:0xf bank_mask:0xf")
        A(f"v_mov_b32_dpp v{csK+r_}, v{accK+r_} row_newbcast:0 row_mask:0xf bank_mask:0xf")
    biasP, biasC, biasF = 156, 160, 168
    selLo, selHi = 172, 173
    NEG = f32hex(-1e30)
    A(f"""
    v_lshlrev_b32 v14, 2, v{vQ}
    v_sub_u32 v14, v14, v{vJ}
    v_mov_b32 v174, {NEG}
    s_cmp_eq_u32 s{sRB}, 0
    s_cselect_b64 s[{sEX}:{sEX+1}], -1, 0
    """)
    for r_ in range(4):
        A(f"""
        v_add_u32 v175, {r_}, v14
        v_and_b32 v176, 1, v175
        v_cmp_eq_u32 s[{sM1}:{sM1+1}], 0, v176
        v_cmp_le_i32 s[{sM2}:{sM2+1}], 2, v175
        v_cmp_ge_i32 s[{sM3}:{sM3+1}], 0, v175
        s_and_b64 s[{sM2}:{sM2+1}], s[{sM2}:{sM2+1}], s[{sM1}:{sM1+1}]
        s_and_b64 s[{sM3}:{sM3+1}], s[{sM3}:{sM3+1}], s[{sM1}:{sM1+1}]
        v_cndmask_b32 v{biasP+r_}, v174, 0, s[{sM2}:{sM2+1}]
        v_cndmask_b32 v{biasC+r_}, v174, 0, s[{sM3}:{sM3+1}]
        v_cndmask_b32 v{biasF+r_}, v{biasP+r_}, v174, s[{sEX}:{sEX+1}]
        """)
    A(f"""
    v_and_b32 v175, 1, v{vJ}
    v_cmp_eq_u32 vcc, 1, v175
    v_mov_b32 v175, 0x0c0c0100
    v_mov_b32 v176, 0x01000c0c
    v_cndmask_b32 v{selLo}, v175, v176, vcc
    v_mov_b32 v175, 0x0c0c0302
    v_mov_b32 v176, 0x03020c0c
    v_cndmask_b32 v{selHi}, v175, v176, vcc
    s_waitcnt lgkmcnt(0)
    """)
    Kp, Qp, Vp = 178, 188, 198
    for t in range(5):
        for (acc, cs, P, scale) in ((accK, csK, Kp, True), (accQ, csQ, Qp, False)):
            if acc == accQ and t == 0:
                continue
            a = acc + 4 * t
            for h in range(2):
                A(f"v_pk_fma_f32 v[{a+2*h}:{a+2*h+1}], v[{cs+2*h}:{cs+2*h+1}], v[{L1+2*t}:{L1+2*t+1}], v[{a+2*h}:{a+2*h+1}] op_sel:[0,0,0] op_sel_hi:[1,0,1] neg_lo:[0,1,0] neg_hi:[0,1,0]")
            if scale:
                for h in range(2):
                    A(f"v_pk_mul_f32 v[{a+2*h}:{a+2*h+1}], v[{a+2*h}:{a+2*h+1}], v[{L1+2*t}:{L1+2*t+1}] op_sel:[0,1] op_sel_hi:[1,1]")
            for h in range(2):
                A(f"v_cvt_pk_bf16_f32 v{P+2*t+h}, v{a+2*h}, v{a+2*h+1}")
        a = accV + 4 * t
        for h in range(2):
            A(f"v_pk_fma_f32 v[{a+2*h}:{a+2*h+1}], v[{L2M+4*t+2*h}:{L2M+4*t+2*h+1}], v[{csV}:{csV+1}], v[{a+2*h}:{a+2*h+1}] op_sel:[0,0,0] op_sel_hi:[1,0,1] neg_lo:[1,0,0] neg_hi:[1,0,0]")
        for h in range(2):
            A(f"v_pk_mul_f32 v[{a+2*h}:{a+2*h+1}], v[{a+2*h}:{a+2*h+1}], v[{L2R+4*t+2*h}:{L2R+4*t+2*h+1}]")
        for h in range(2):
            A(f"v_cvt_pk_bf16_f32 v{Vp+2*t+h}, v{a+2*h}, v{a+2*h+1}")
    Sp = lambda t: 16 + 8 * (t - 1)
    Sc = lambda t: 20 + 8 * (t - 1)
    for t in range(1, 5):
        A(f"{MF16} {v(Sp(t),4)}, {v(Kp+2*(t-1),2)}, {v(Qp+2*t,2)}, {v(biasF if t==1 else biasP,4)}")
        A(f"{MF16} {v(Sc(t),4)}, {v(Kp+2*t,2)}, {v(Qp+2*t,2)}, {v(biasC,4)}")
    X = lambda t, i: 48 + 4 * (t - 1) + i
    MX = lambda t: 64 + (t - 1)
    MY = lambda t: 68 + (t - 1)
    CQ = lambda t: 72 + (t - 1)
    for t in range(1, 5):
        A(f"v_mul_f32 v{CQ(t)}, {f32hex(0.25*LOG2E)}, v{L1+2*t+1}")
    for t in range(1, 5):
        A(f"""
        v_max_f32 v{X(t,0)}, v{Sp(t)}, v{Sp(t)+1}
        v_max_f32 v{X(t,1)}, v{Sp(t)+2}, v{Sp(t)+3}
        v_max_f32 v{X(t,2)}, v{Sc(t)}, v{Sc(t)+1}
        v_max_f32 v{X(t,3)}, v{Sc(t)+2}, v{Sc(t)+3}
        v_max3_f32 v{MX(t)}, v{X(t,0)}, v{X(t,1)}, v{X(t,2)}
        v_max_f32 v{MX(t)}, v{MX(t)}, v{X(t,3)}
        v_mov_b32 v{MY(t)}, v{MX(t)}
        """)
    for t in range(1, 5):
        A(f"v_permlane16_swap_b32 v{MX(t)}, v{MY(t)}")
    for t in range(1, 5):
        A(f"v_max_f32 v{MX(t)}, v{MX(t)}, v{MY(t)}")
    for t in range(1, 5):
        A(f"v_mov_b32 v{MY(t)}, v{MX(t)}")
    for t in range(1, 5):
        A(f"v_permlane32_swap_b32 v{MX(t)}, v{MY(t)}")
    for t in range(1, 5):
        A(f"v_max_f32 v{MX(t)}, v{MX(t)}, v{MY(t)}")
    for t in range(1, 5):
        A(f"v_mul_f32 v{MX(t)}, v{MX(t)}, v{CQ(t)}")
    for t in range(1, 5):
        for i in range(4):
            A(f"v_fma_f32 v{X(t,i)}, v{X(t,i)}, v{CQ(t)}, -v{MX(t)}")
    for t in range(1, 5):
        for i in range(4):
            A(f"v_exp_f32 v{X(t,i)}, v{X(t,i)}")
    Pf = lambda t: 16 + 4 * (t - 1)
    for t in range(1, 5):
        A(f"""
        v_cvt_pk_bf16_f32 v{MX(t)}, v{X(t,0)}, v{X(t,1)}
        v_cvt_pk_bf16_f32 v{MY(t)}, v{X(t,2)}, v{X(t,3)}
        """)
    for t in range(1, 5):
        A(f"""
        v_perm_b32 v{Pf(t)}, v{MX(t)}, v{MX(t)}, v{selLo}
        v_perm_b32 v{Pf(t)+1}, v{MX(t)}, v{MX(t)}, v{selHi}
        v_perm_b32 v{Pf(t)+2}, v{MY(t)}, v{MY(t)}, v{selLo}
        v_perm_b32 v{Pf(t)+3}, v{MY(t)}, v{MY(t)}, v{selHi}
        """)
    Oa = lambda t: 32 + 4 * (t - 1)
    Su = lambda t: 48 + 4 * (t - 1)
    for t in range(1, 5):
        A(f"{MF} {v(Oa(t),4)}, {v(Vp+2*(t-1),4)}, {v(Pf(t),4)}, 0")
        A(f"{MF} {v(Su(t),4)}, {v(ones,4)}, {v(Pf(t),4)}, 0")
    A(f"""
    s_lshl_b32 s{sA}, s{sRB}, 16
    s_lshl_b32 s{sB}, s{sCB}, 11
    s_add_u32 s{sA}, s{sA}, s{sB}
    s_lshr_b32 s{sB}, s{sW}, 1
    s_lshl_b32 s{sB}, s{sB}, 10
    s_add_u32 s{sA}, s{sA}, s{sB}
    s_and_b32 s{sB}, s{sW}, 1
    s_lshl_b32 s{sB}, s{sB}, 3
    s_add_u32 s{sA}, s{sA}, s{sB}
    s_add_u32 s{sA}, s{sA}, {WS_O}
    v_lshlrev_b32 v13, 4, v{vL}
    """)
    for t in range(1, 5):
        A(f"v_rcp_f32 v{Su(t)}, v{Su(t)}")
    for t in range(1, 5):
        o = Oa(t)
        A(f"""
        v_pk_mul_f32 v[{o}:{o+1}], v[{o}:{o+1}], v[{Su(t)}:{Su(t)+1}] op_sel:[0,0] op_sel_hi:[1,0]
        v_pk_mul_f32 v[{o+2}:{o+3}], v[{o+2}:{o+3}], v[{Su(t)}:{Su(t)+1}] op_sel:[0,0] op_sel_hi:[1,0]
        v_cvt_pk_bf16_f32 v{o}, v{o}, v{o+1}
        v_cvt_pk_bf16_f32 v{o+1}, v{o+2}, v{o+3}
        s_add_u32 s{sB}, s{sA}, {(t-1)*16384}
        buffer_store_dwordx2 v[{o}:{o+1}], v13, s[{SWS}:{SWS+3}], s{sB} offen
        """)


def ksplit(A, which):
    P2 = which == 2
    nst = 4 if P2 else 11
    vL, vJ, vQ = 1, 2, 3
    vDs, vL16 = 4, 5
    vTr = 6
    vRw = 10
    vRr = 13
    acc = 32
    Bf = ("a", 0)
    if P2:
        Afr = lambda t, st: v(96 + (t * nst + st) * 4, 4)
    else:
        def Afr(t, st):
            idx = t * nst + st
            return v(96 + idx * 4, 4) if idx < 40 else a_(176 + (idx - 40) * 4, 4)
    sA, sB, sC, sK0, sStg = 70, 71, 72, 73, 74
    sM1, sM2, sM3, sDiag = 82, 84, 86, 88
    STG_PER = 24576
    RED = 98304
    SRDW = SWO if P2 else SWD
    A(f"""
    v_and_b32 v{vJ}, 15, v{vL}
    v_lshrrev_b32 v{vQ}, 4, v{vL}
    v_lshlrev_b32 v{vL16}, 4, v{vL}
    v_lshrrev_b32 v14, 3, v{vL}
    v_and_b32 v15, 7, v{vL}
    v_and_b32 v16, 6, v14
    v_xor_b32 v15, v15, v16
    v_lshlrev_b32 v15, 4, v15
    v_lshl_add_u32 v{vDs}, v14, 10, v15
    s_mul_i32 s{sStg}, s{sW}, {STG_PER}
    """)
    A(f"""
    v_bfe_u32 v14, v{vL}, 2, 3
    v_and_b32 v15, 6, v14
    v_bfe_u32 v16, v{vL}, 1, 1
    v_or_b32 v15, v15, v16
    v_lshlrev_b32 v15, 4, v15
    v_lshl_add_u32 v15, v14, 7, v15
    v_and_b32 v16, 1, v{vL}
    v_lshl_add_u32 v15, v16, 3, v15
    v_lshrrev_b32 v16, 5, v{vL}
    v_lshl_add_u32 v15, v16, 10, v15
    v_add_u32 v{vTr}, s{sStg}, v15
    v_xor_b32 v{vTr+1}, 32, v{vTr}
    v_xor_b32 v{vTr+2}, 64, v{vTr}
    v_xor_b32 v{vTr+3}, 96, v{vTr}
    """)
    for t in range(1, 4):
        A(f"""
        s_add_u32 s{sA}, s{sW}, {t}
        s_and_b32 s{sA}, s{sA}, 3
        s_mul_i32 s{sA}, s{sA}, 12288
        s_add_u32 s{sA}, s{sA}, {RED + (t-1)*4096}
        v_add_u32 v{vRw+t-1}, s{sA}, v{vL16}
        """)
    A(f"""
    s_mul_i32 s{sA}, s{sW}, 12288
    s_add_u32 s{sA}, s{sA}, {RED}
    v_add_u32 v{vRr}, s{sA}, v{vL16}
    """)
    if P2:
        A(f"s_lshl_b32 s{sK0}, s{sW}, 2")
    else:
        A(f"""
        s_mul_i32 s{sK0}, s{sW}, 11
        s_min_u32 s{sK0}, s{sK0}, 32
        """)
    build_srds(A, ["x", "wo", "ws"] if P2 else ["wd", "ws", "out"])

    def b_dma(st_list, slot0):
        it = []
        for n, st in enumerate(st_list):
            txt = f"""
            s_add_u32 s{sA}, s{sK0}, {st}
            s_lshl_b32 s{sA}, s{sA}, 15
            s_lshl_b32 s{sB}, s{sCB}, 7
            s_add_u32 s{sA}, s{sA}, s{sB}
            """
            if (not P2) and st == 0:
                txt += f"""
                s_cmp_eq_u32 s{sW}, 3
                s_cselect_b32 s{sA}, 0x7f000000, s{sA}
                """
            it.append((txt, None))
            for p in range(4):
                it.append((f"""
                s_add_u32 m0, s{sStg}, {((slot0+n)*4+p)*1024}
                s_add_u32 s{sB}, s{sA}, {p*8192}
                buffer_load_dwordx4 v{vDs}, s[{SRDW}:{SRDW+3}], s{sB} offen lds""", f"b{st}"))
        return it

    def b_tr(st, slot):
        it = []
        for ct in range(4):
            for hf in range(2):
                reg = (st * 4 + ct) * 4 + hf * 2
                it.append((f"ds_read_b64_tr_b16 {r(Bf, reg, 2)}, v{vTr+ct} offset:{slot*4096 + hf*2048}", f"t{st}"))
        return it

    def a_loads(t):
        base = WS_O if P2 else WS_HH
        pitch = 16 if P2 else HHK
        it = [(f"""
        s_add_u32 s{sA}, s{sW}, {t}
        s_and_b32 s{sA}, s{sA}, 3
        s_lshl_b32 s{sB}, s{sRB}, 2
        s_add_u32 s{sA}, s{sA}, s{sB}
        s_mul_i32 s{sA}, s{sA}, {pitch}
        s_add_u32 s{sA}, s{sA}, s{sK0}
        s_lshl_b32 s{sA}, s{sA}, 10
        s_add_u32 s{sA}, s{sA}, {base}""", None)]
        for st in range(nst):
            if st % 4 == 0 and st > 0:
                it.append((f"s_add_u32 s{sA}, s{sA}, 4096", None))
            it.append((f"buffer_load_dwordx4 {Afr(t,st)}, v{vL16}, s[{SWS}:{SWS+3}], s{sA} offen offset:{(st%4)*1024}", f"a{t}_{st}"))
        return it

    b1 = list(range(min(nst, 6)))
    b2 = list(range(6, nst))
    emit(A, b_dma(b1, 0))
    if P2:
        for t in range(4):
            emit(A, a_loads(t))
    for n, st in enumerate(b1):
        A.wait_vm(f"b{st}")
        emit(A, b_tr(st, n))
    if b2:
        A("s_waitcnt lgkmcnt(0)")
        emit(A, b_dma(b2, 0))
        for t in range(4):
            emit(A, a_loads(t))
        for n, st in enumerate(b2):
            A.wait_vm(f"b{st}")
            emit(A, b_tr(st, n))
    RES = 16
    if P2:
        A(f"""
        v_lshlrev_b32 v14, 10, v{vJ}
        v_lshl_add_u32 v14, v{vQ}, 3, v14
        s_lshl_b32 s{sA}, s{sRB}, 16
        s_lshl_b32 s{sB}, s{sW}, 14
        s_add_u32 s{sA}, s{sA}, s{sB}
        s_lshl_b32 s{sB}, s{sCB}, 7
        s_add_u32 s{sC}, s{sA}, s{sB}
        """)
        for ct in range(4):
            A(f"buffer_load_dwordx2 v[{RES+2*ct}:{RES+2*ct+1}], v14, s[{SX}:{SX+3}], s{sC} offen offset:{ct*32}", tag="res")
    else:
        A(f"""
        v_lshlrev_b32 v14, 10, v{vJ}
        v_lshl_add_u32 v14, v{vQ}, 3, v14
        s_lshl_b32 s{sA}, s{sRB}, 16
        s_lshl_b32 s{sB}, s{sW}, 14
        s_add_u32 s{sA}, s{sA}, s{sB}
        s_lshl_b32 s{sB}, s{sCB}, 7
        s_add_u32 s{sC}, s{sA}, s{sB}
        s_lshl_b32 s{sB}, s{sCB}, 11
        s_add_u32 s{sA}, s{sA}, s{sB}
        s_add_u32 s{sA}, s{sA}, {WS_H}
        """)
        for h in range(2):
            A(f"buffer_load_dwordx4 v[{RES+4*h}:{RES+4*h+3}], v{vL16}, s[{SWS}:{SWS+3}], s{sA} offen offset:{h*1024}", tag="res")
    A("s_waitcnt lgkmcnt(0)")
    for t in range(4):
        for st in range(nst):
            A.wait_vm(f"a{t}_{st}")
            for ct in range(4):
                d = v(acc + (t * 4 + ct) * 4, 4)
                A(f"{MF} {d}, {r(Bf,(st*4+ct)*4,4)}, {Afr(t,st)}, {'0' if st==0 else d}")
        if t >= 2:
            tt = t - 1
            for ct in range(4):
                A(f"ds_write_b128 v{vRw+tt-1}, {v(acc+(tt*4+ct)*4,4)} offset:{ct*1024}")
    for ct in range(4):
        A(f"ds_write_b128 v{vRw+2}, {v(acc+(3*4+ct)*4,4)} offset:{ct*1024}")
    A("s_waitcnt lgkmcnt(0)\ns_barrier")
    T = 96
    for k in range(3):
        for ct in range(4):
            A(f"ds_read_b128 {v(T+(k*4+ct)*4,4)}, v{vRr} offset:{k*4096+ct*1024}", tag=f"rd{k}")
    A.wait_vm("res")
    U = 48
    for ct in range(4):
        for h in range(2):
            A(f"v_lshlrev_b32 v{U+ct*4+2*h}, 16, v{RES+2*ct+h}")
            A(f"v_and_b32 v{U+ct*4+2*h+1}, 0xffff0000, v{RES+2*ct+h}")
    for ct in range(4):
        for h in range(2):
            a = acc + ct * 4 + 2 * h
            A(f"v_pk_add_f32 v[{a}:{a+1}], v[{a}:{a+1}], v[{U+ct*4+2*h}:{U+ct*4+2*h+1}]")
    for k in range(3):
        A.wait_lg(f"rd{k}")
        for ct in range(4):
            for h in range(2):
                a = acc + ct * 4 + 2 * h
                b = T + (k * 4 + ct) * 4 + 2 * h
                A(f"v_pk_add_f32 v[{a}:{a+1}], v[{a}:{a+1}], v[{b}:{b+1}]")
    PK = 24
    for ct in range(4):
        for h in range(2):
            a = acc + ct * 4 + 2 * h
            A(f"v_cvt_pk_bf16_f32 v{PK+2*ct+h}, v{a}, v{a+1}")
    if P2:
        ones = 64
        G, S_ = 68, 72
        A(f"""
        s_lshl_b32 s{sB}, s{sCB}, 11
        s_add_u32 s{sA}, s{sA}, s{sB}
        s_add_u32 s{sA}, s{sA}, {WS_H}
        buffer_store_dwordx4 v[{PK}:{PK+3}], v{vL16}, s[{SWS}:{SWS+3}], s{sA} offen
        buffer_store_dwordx4 v[{PK+4}:{PK+7}], v{vL16}, s[{SWS}:{SWS+3}], s{sA} offen offset:1024
        v_mov_b32 v{ones}, 0x3f803f80
        v_mov_b32 v{ones+1}, 0x3f803f80
        v_mov_b32 v{ones+2}, 0x3f803f80
        v_mov_b32 v{ones+3}, 0x3f803f80
        {MF} {v(G,4)}, {v(PK,4)}, {v(PK,4)}, 0
        {MF} {v(S_,4)}, {v(ones,4)}, {v(PK,4)}, 0
        {MF} {v(G,4)}, {v(PK+4,4)}, {v(PK+4,4)}, {v(G,4)}
        {MF} {v(S_,4)}, {v(ones,4)}, {v(PK+4,4)}, {v(S_,4)}
        v_and_b32 v15, 3, v{vJ}
        v_cmp_eq_u32 s[{sM1}:{sM1+1}], 1, v15
        v_cmp_eq_u32 s[{sM2}:{sM2+1}], 2, v15
        v_cmp_eq_u32 s[{sM3}:{sM3+1}], 3, v15
        v_lshrrev_b32 v15, 2, v{vJ}
        v_cmp_eq_u32 s[{sDiag}:{sDiag+1}], v15, v{vQ}
        v_lshlrev_b32 v15, 6, v{vJ}
        s_lshl_b32 s{sA}, s{sRB}, 12
        s_lshl_b32 s{sB}, s{sW}, 10
        s_add_u32 s{sA}, s{sA}, s{sB}
        s_lshl_b32 s{sB}, s{sCB}, 3
        s_add_u32 s{sA}, s{sA}, s{sB}
        s_add_u32 s{sA}, s{sA}, {WS_ST}
        v_cndmask_b32 v{S_+1}, v{G}, v{G+1}, s[{sM1}:{sM1+1}]
        v_cndmask_b32 v{S_+1}, v{S_+1}, v{G+2}, s[{sM2}:{sM2+1}]
        v_cndmask_b32 v{S_+1}, v{S_+1}, v{G+3}, s[{sM3}:{sM3+1}]
        s_mov_b64 exec, s[{sDiag}:{sDiag+1}]
        buffer_store_dwordx2 v[{S_}:{S_+1}], v15, s[{SWS}:{SWS+3}], s{sA} offen
        s_mov_b64 exec, -1
        """)
    else:
        for ct in range(4):
            A(f"buffer_store_dwordx2 v[{PK+2*ct}:{PK+2*ct+1}], v14, s[{SOUT}:{SOUT+3}], s{sC} offen offset:{ct*32}")


def p3(A, label):
    vL, vJ, vQ, vL16 = 1, 2, 3, 4
    vD = 5
    vTr = 8
    vSt = 11
    vH4, vH2 = 12, 13
    ones = 20
    cs = 24
    acc = 36
    Af = 60
    stt = 92
    tmp = 100
    SRDB = 92
    sA, sB, sC, sSt, sSrc = 70, 71, 72, 73, 74
    STG = 0
    A3 = 0
    Bf = ("a", 0)
    A(f"""
    s_cmp_eq_u32 s{sJ}, 15
    s_cbranch_scc1 {label}_done
    v_and_b32 v{vJ}, 15, v{vL}
    v_lshrrev_b32 v{vQ}, 4, v{vL}
    v_lshlrev_b32 v{vL16}, 4, v{vL}
    s_and_b32 s{sA}, s{sW}, 1
    s_lshl_b32 s{sA}, s{sA}, 5
    """)
    for n in range(3):
        A(f"""
        v_add_u32 v14, {64*n}, v{vL}
        v_mul_u32_u24 v15, 43691, v14
        v_lshrrev_b32 v15, 19, v15
        v_mul_u32_u24 v16, 12, v15
        v_sub_u32 v14, v14, v16
        v_bfe_u32 v16, v15, 2, 1
        v_xor_b32 v14, v14, v16
        v_mul_u32_u24 v15, 2752, v15
        v_lshl_add_u32 v14, v14, 4, v15
        v_xor_b32 v14, s{sA}, v14
        v_subrev_u32 v{vD+n}, {1024*n}, v14
        """)
    A(f"""
    v_lshrrev_b32 v14, 2, v{vL}
    v_mul_u32_u24 v14, 192, v14
    v_bfe_u32 v15, v{vL}, 1, 1
    v_mul_u32_u24 v16, 3072, v15
    v_add_u32 v14, v14, v16
    v_and_b32 v16, 1, v{vQ}
    v_lshl_add_u32 v15, v15, 1, v16
    v_and_b32 v16, 1, v{vL}
    s_lshr_b32 s{sA}, s{sW}, 1
    s_and_b32 s{sB}, s{sW}, 1
    s_lshl_b32 s{sC}, s{sA}, 2
    s_add_u32 s{sC}, s{sC}, s{sB}
    v_xor_b32 v17, s{sC}, v15
    v_lshl_add_u32 v17, v17, 4, v14
    v_lshl_add_u32 v{vTr}, v16, 3, v17
    s_add_u32 s{sC}, s{sC}, 2
    v_xor_b32 v17, s{sC}, v15
    v_lshl_add_u32 v17, v17, 4, v14
    v_lshl_add_u32 v{vTr+1}, v16, 3, v17
    s_add_u32 s{sC}, s{sA}, 8
    v_lshl_add_u32 v17, v16, 1, s{sC}
    v_xor_b32 v17, v17, v15
    v_lshl_add_u32 v17, v17, 4, v14
    s_lshl_b32 s{sB}, s{sB}, 3
    v_add_u32 v{vTr+2}, s{sB}, v17
    v_mov_b32 v{ones}, 0x3f803f80
    v_mov_b32 v{ones+1}, 0x3f803f80
    v_mov_b32 v{ones+2}, 0x3f803f80
    v_mov_b32 v{ones+3}, 0x3f803f80
    v_lshlrev_b32 v{vSt}, 6, v{vJ}
    v_lshl_add_u32 v{vSt}, v{vQ}, 4, v{vSt}
    """)
    A(f"""
    v_lshrrev_b32 v14, 1, v{vQ}
    v_mul_u32_u24 v14, {4*HHK*1024}, v14
    v_lshl_add_u32 v14, v{vJ}, 4, v14
    v_and_b32 v15, 1, v{vQ}
    s_lshr_b32 s{sA}, s{sW}, 1
    s_lshl_b32 s{sA}, s{sA}, 10
    s_and_b32 s{sB}, s{sW}, 1
    s_lshl_b32 s{sB}, s{sB}, 9
    s_add_u32 s{sA}, s{sA}, s{sB}
    v_lshl_add_u32 v{vH4}, v15, 8, v14
    v_add_u32 v{vH4}, s{sA}, v{vH4}
    s_lshl_b32 s{sA}, s{sW}, 8
    s_add_u32 s{sA}, s{sA}, 2048
    v_lshl_add_u32 v{vH2}, v15, 3, v14
    v_add_u32 v{vH2}, s{sA}, v{vH2}
    """)
    build_srds(A, ["wg", "wu", "ws"])
    A(f"""
    s_and_b32 s{sA}, s{sW}, 1
    s_cmp_eq_u32 s{sA}, 0
    s_cselect_b32 s{SRDB}, s{SWG}, s{SWU}
    s_cselect_b32 s{SRDB+1}, s{SWG+1}, s{SWU+1}
    s_mov_b32 s{SRDB+2}, {512*1376*2}
    s_mov_b32 s{SRDB+3}, 0x20000
    s_mul_i32 s{sSt}, s{sW}, 3072
    s_lshr_b32 s{sA}, s{sW}, 1
    s_mul_i32 s{sSrc}, s{sA}, {16*2752}
    s_mul_i32 s{sA}, s{sJ}, 192
    s_add_u32 s{sSrc}, s{sSrc}, s{sA}
    """)

    def b_dma(batch):
        it = []
        for k in range(4):
            ks = batch * 4 + k
            it.append((f"""
            s_add_u32 m0, s{sSt}, {STG + (batch%3)*49152 + k*12288}
            s_add_u32 s{sA}, s{sSrc}, {ks*32*2752}""", None))
            for n in range(3):
                it.append((f"buffer_load_dwordx4 v{vD+n}, s[{SRDB}:{SRDB+3}], s{sA} offen offset:{n*1024} lds", f"b{batch}"))
        return it

    def b_tr(batch):
        it = []
        for k in range(4):
            ks = batch * 4 + k
            for u in range(3):
                for hf in range(2):
                    it.append((f"ds_read_b64_tr_b16 {r(Bf,(ks*3+u)*4+hf*2,2)}, v{vTr+u} offset:{k*12288+hf*6144}", None))
        return it

    emit(A, b_dma(0) + b_dma(1) + b_dma(2))
    for b in range(4):
        A.wait_vm(f"b{b}")
        A("s_waitcnt lgkmcnt(0)\ns_barrier")
        if b == 1:
            emit(A, b_dma(3))
        emit(A, b_tr(b))
        if b < 2:
            for u in range(3):
                A(f"v_add_u32 v{vTr+u}, 49152, v{vTr+u}")
        if b == 2:
            for u in range(3):
                A(f"v_subrev_u32 v{vTr+u}, 98304, v{vTr+u}")
    A("s_waitcnt lgkmcnt(0)\ns_barrier")

    def a_dma(c):
        it = []
        for ti in range(2):
            it.append((f"""
            s_lshl_b32 s{sA}, s{sG}, 17
            s_lshl_b32 s{sB}, s{sW}, 12
            s_add_u32 s{sA}, s{sA}, s{sB}
            s_add_u32 s{sA}, s{sA}, {WS_H + (c+4*ti)*16384}
            s_add_u32 m0, s{sB}, {A3 + c*32768 + ti*16384}""", None))
            for n in range(4):
                it.append((f"buffer_load_dwordx4 v{vL16}, s[{SWS}:{SWS+3}], s{sA} offen offset:{n*1024} lds", f"a{c}"))
        return it

    for c in range(4):
        emit(A, a_dma(c))
    for ks in range(16):
        for u in range(3):
            d = v(cs + 4 * u, 4)
            A(f"{MF} {d}, {r(Bf,(ks*3+u)*4,4)}, {v(ones,4)}, {'0' if ks==0 else d}")
    vAr = 14
    A(f"v_mov_b32 v{vAr}, v{vL16}")
    for c in range(4):
        for ti in range(2):
            A(f"""
            s_lshl_b32 s{sA}, s{sG}, 13
            s_add_u32 s{sA}, s{sA}, {WS_ST + (c+4*ti)*1024}""")
            A(f"buffer_load_dwordx4 {v(stt+4*ti,4)}, v{vSt}, s[{SWS}:{SWS+3}], s{sA} offen", tag=f"s{c}")
        A.wait_vm(f"a{c}")
        A("s_barrier")
        if c == 2:
            A(f"v_add_u32 v{vAr}, 65536, v{vAr}")
        off = (c % 2) * 32768
        rd = lambda ks, ti: (f"ds_read_b128 {v(Af+((ks%4)*2+ti)*4,4)}, v{vAr} offset:{off + ti*16384 + ks*1024}", f"f{ks}")
        for ks in range(3):
            emit(A, [rd(ks, 0), rd(ks, 1)])
        for ks in range(16):
            if ks + 3 < 16:
                emit(A, [rd(ks + 3, 0), rd(ks + 3, 1)])
            A.wait_lg(f"f{ks}")
            for ti in range(2):
                for u in range(3):
                    d = v(acc + (ti * 3 + u) * 4, 4)
                    A(f"{MF} {d}, {r(Bf,(ks*3+u)*4,4)}, {v(Af+((ks%4)*2+ti)*4,4)}, {'0' if ks==0 else d}")
        A.wait_vm(f"s{c}")
        for ti in range(2):
            b = stt + 4 * ti
            A(f"v_pk_add_f32 v[{b}:{b+1}], v[{b}:{b+1}], v[{b+2}:{b+3}]")
        for sw in ("v_permlane16_swap_b32", "v_permlane32_swap_b32"):
            for ti in range(2):
                b = stt + 4 * ti
                A(f"v_mov_b32 v{b+2}, v{b}\nv_mov_b32 v{b+3}, v{b+1}")
            for ti in range(2):
                b = stt + 4 * ti
                A(f"{sw} v{b}, v{b+2}\n{sw} v{b+1}, v{b+3}")
            for ti in range(2):
                b = stt + 4 * ti
                A(f"v_pk_add_f32 v[{b}:{b+1}], v[{b}:{b+1}], v[{b+2}:{b+3}]")
        for ti in range(2):
            b = stt + 4 * ti
            A(f"""
            v_mul_f32 v{b}, 0x3b000000, v{b}
            v_mul_f32 v{b+1}, 0x3b000000, v{b+1}
            v_fma_f32 v{b+1}, -v{b}, v{b}, v{b+1}
            v_max_f32 v{b+1}, 0, v{b+1}
            v_add_f32 v{b+1}, {f32hex(1e-5)}, v{b+1}
            v_rcp_f32 v{b+1}, v{b+1}
            """)
        A(f"""
        v_cmp_gt_u32 vcc, 32, v{vL}
        v_cndmask_b32 v{tmp}, v{stt+5}, v{stt+1}, vcc
        """)
        for u in range(3):
            for ti in range(2):
                a = acc + (ti * 3 + u) * 4
                b = stt + 4 * ti
                for h in range(2):
                    A(f"v_pk_fma_f32 v[{a+2*h}:{a+2*h+1}], v[{cs+4*u+2*h}:{cs+4*u+2*h+1}], v[{b}:{b+1}], v[{a+2*h}:{a+2*h+1}] op_sel:[0,0,0] op_sel_hi:[1,0,1] neg_lo:[0,1,0] neg_hi:[0,1,0]")
        for u in range(3):
            for r_ in range(4):
                A(f"v_permlane32_swap_b32 v{acc+u*4+r_}, v{acc+(3+u)*4+r_}")
        PK = tmp + 2
        for u in range(3):
            g, up = acc + u * 4, acc + (3 + u) * 4
            for r_ in range(4):
                A(f"v_max_f32 v{g+r_}, 0, v{g+r_}")
            for h in range(2):
                A(f"v_pk_mul_f32 v[{g+2*h}:{g+2*h+1}], v[{g+2*h}:{g+2*h+1}], v[{up+2*h}:{up+2*h+1}]")
            for h in range(2):
                A(f"v_pk_mul_f32 v[{g+2*h}:{g+2*h+1}], v[{g+2*h}:{g+2*h+1}], v[{tmp}:{tmp+1}] op_sel:[0,0] op_sel_hi:[1,0]")
            for h in range(2):
                A(f"v_cvt_pk_bf16_f32 v{PK+2*u+h}, v{g+2*h}, v{g+2*h+1}")
        A(f"""
        s_mul_i32 s{sA}, s{sG}, {8*HHK*1024}
        s_mul_i32 s{sB}, s{sJ}, 3072
        s_add_u32 s{sA}, s{sA}, s{sB}
        s_add_u32 s{sA}, s{sA}, {WS_HH + c*HHK*1024}
        buffer_store_dwordx4 v[{PK}:{PK+3}], v{vH4}, s[{SWS}:{SWS+3}], s{sA} offen
        buffer_store_dwordx2 v[{PK+4}:{PK+5}], v{vH2}, s[{SWS}:{SWS+3}], s{sA} offen
        """)


def kd(label, nv=512, acc=256):
    return f""".p2align 6
.amdhsa_kernel {label}
  .amdhsa_next_free_vgpr {nv}
  .amdhsa_next_free_sgpr 102
  .amdhsa_accum_offset {acc}
  .amdhsa_group_segment_fixed_size 0
  .amdhsa_kernarg_size 80
  .amdhsa_user_sgpr_count 2
  .amdhsa_user_sgpr_kernarg_segment_ptr 1
  .amdhsa_system_sgpr_workgroup_id_x 1
.end_amdhsa_kernel
"""


def main(path):
    A = Asm()
    ks = ["p1_kernel", "p2_kernel", "p3_kernel", "p4_kernel"]
    for k in ks:
        A.raw(f"; @launch kernel={k} grid=(256,1,1) block=(256,1,1) lds=163840")
    A.raw('.amdgcn_target "amdgcn-amd-amdhsa--gfx950"\n.text')
    for k in ks:
        prologue(A, k)
        if k == "p1_kernel":
            p1(A)
        elif k == "p2_kernel":
            ksplit(A, 2)
        elif k == "p3_kernel":
            p3(A, k)
        else:
            ksplit(A, 4)
        A("s_waitcnt vmcnt(0) lgkmcnt(0)")
        A.raw(f"{k}_done:")
        A("s_endpgm")
        A.hist = []
    A.raw('.section .rodata,"a"')
    for k in ks:
        A.raw(kd(k))
    open(path, "w").write(A.text())
    print("instructions", A.nins, "nops", A.nnop)


if __name__ == "__main__":
    main(sys.argv[1] if len(sys.argv) > 1 else f"cdna_kernels/{NAME}.s")
```

```python
import sys, os, struct
from asmlib import *

NAME = "sequential_preLN__sliding_local_dilated__glu_gated_reglu__prompt"
INSTR = int(os.environ.get("INSTR", "0"))
OPT = dict(x.split("=") for x in os.environ.get("OPT", "").split(",") if x)
def opt(k, d):
    return int(OPT.get(k, d))

WS_O = 0x100000
WS_H = 0x300000
WS_HH = 0x500000
WS_ST = 0xC00000
WS_PROF = 0xE00000
WS_R3 = 0x1000000
WS_R2 = 0x1400000
WS_R4 = 0x1500000
WS_CS = 0x1700000
WS_M1 = 0x1780000
WS_R1 = 0x1790000
WS_SIZE = 0x2000000
HHK = 48

SX, SWQ, SWO, SWG, SWU, SWD, SOUT, SWS, SDBG, SB3 = 4, 8, 12, 16, 20, 24, 28, 32, 36, 40
sW, sG, sJ, sHB, sCB, sRB, sIDX = 64, 65, 66, 67, 68, 69, 70
sA, sB, sC = 71, 72, 73
sBA = 74
sFAST = 75
sOWN, sFLG, sCNT = 76, 77, 78
sK4 = 79
sB2b, sB3b, sB4b, sB4z = 80, 81, 82, 83
sM1, sM2, sM3, sDiag = 84, 86, 88, 90
sEX0, sEX2, sW0 = 92, 94, 96
sHM = 98
sKC0, sXo0, sXo1, sXo2, sXl, sXl2, sWl, sWs = 44, 45, 46, 47, 48, 49, 50, 51
sXCC = 3
sW12 = 60
sFLA = 61

vL, vJ, vQ, vL16 = 1, 2, 3, 4
vOld, vF, vFo = 5, 6, 7
vT0, vT1, vT2, vT3 = 8, 9, 10, 11
vSTAMP = 15
vDs = 16
vSt = 17
ones = 28

SLOT = 34816
STG = 104448
MISC = 153600

LOG2E = 1.4426950408889634
MF = "v_mfma_f32_16x16x32_bf16"
MF16 = "v_mfma_f32_16x16x16_bf16"
SC = " sc1"
WSS = f"s[{SWS}:{SWS+3}]"


def f32hex(x):
    return "0x%08x" % struct.unpack("<I", struct.pack("<f", x))[0]


STAMPN = [0]
STAMPNAMES = []
def stamp(A, name=""):
    if not INSTR:
        return
    i = STAMPN[0]
    STAMPN[0] += 1
    STAMPNAMES.append(name)
    assert i < 60
    A(f"s_memtime s[100:101]\ns_waitcnt lgkmcnt(0)\nv_writelane_b32 v{vSTAMP}, s100, {i}")


def interleave(main, fill, start=0, every=1):
    out = []
    fi = 0
    for i, m in enumerate(main):
        out.append(m)
        if i >= start and (i - start) % every == 0 and fi < len(fill):
            out.append(fill[fi])
            fi += 1
    out.extend(fill[fi:])
    return out


def emit(A, items):
    for it in items:
        if callable(it):
            it()
        else:
            A(it[0], tag=it[1])


def B2reg(st, ct):
    return ("a", 192 + (st * 4 + ct) * 4)
def B4reg(st, ct):
    return ("a", 192 + (st * 4 + ct) * 4) if st < 4 else ("v", 144 + ((st - 4) * 4 + ct) * 4)
def B3reg(ks, u):
    return ("a", (ks * 3 + u) * 4)


class BQ:
    def __init__(self):
        q = []
        for st in range(4):
            for ct in range(4):
                q.append((f"s_add_u32 s{sBA}, s{sB2b}, {st*4096}\nbuffer_load_dwordx4 {r(B2reg(st,ct),0,4)}, v{vL16}, {WSS}, s{sBA} offen offset:{ct*1024}{SC}", f"b2_{st}"))
        for n in range(48):
            ks, u = divmod(n, 3)
            q.append((f"s_add_u32 s{sBA}, s{sB3b}, {(n//4)*4096}\nbuffer_load_dwordx4 {r(B3reg(ks,u),0,4)}, v{vL16}, {WSS}, s{sBA} offen offset:{(n%4)*1024}{SC}", f"b3_{ks}"))
        for st in list(range(4, 11)) + list(range(4)):
            for ct in range(4):
                base = f"s_mov_b32 s{sBA}, s{sB4z}" if st == 0 else f"s_add_u32 s{sBA}, s{sB4b}, {st*4096}"
                q.append((f"{base}\nbuffer_load_dwordx4 {r(B4reg(st,ct),0,4)}, v{vL16}, {WSS}, s{sBA} offen offset:{ct*1024}{SC}", f"b4_{st}"))
        self.q = q
        self.pos = 0
        self.limit = 64

    def take(self, n):
        e = min(self.pos + n, self.limit, len(self.q))
        out = self.q[self.pos:e]
        self.pos = max(self.pos, e)
        return out

    def upto(self, idx):
        return self.take(max(0, idx - self.pos))


LBL = [0]
def newlbl():
    LBL[0] += 1
    return LBL[0]


def wait_flags(A, step, mask):
    n = newlbl()
    A.fence()
    A(f"s_mov_b32 s{sCNT}, 0")
    A.raw(f"L_wait{n}:")
    A(f"""
    buffer_load_dword v{vF}, v{vFo}, {WSS}, s{sFLG} offen sc1
    s_waitcnt vmcnt(0)
    v_sub_u32 v{vF}, v{vF}, v{vOld}
    v_cmp_gt_u32 vcc, {step}, v{vF}
    s_and_b64 vcc, vcc, {mask}
    s_cbranch_scc0 L_go{n}
    s_add_u32 s{sCNT}, s{sCNT}, 1
    s_cmp_lt_u32 s{sCNT}, 0x40000
    s_cbranch_scc1 L_wait{n}
    """)
    A.raw(f"L_go{n}:")
    A.fence()


def hstores(A, lines, tag):
    if not opt("fast", 1):
        for l in lines:
            A(l + SC, tag=tag) if l.startswith("buffer_") else A(l)
        return
    n = newlbl()
    A(f"s_cmp_eq_u32 s{sFAST}, 1\ns_cbranch_scc1 L_hf{n}")
    for l in lines:
        A(l + SC, tag=tag) if l.startswith("buffer_") else A(l)
    A(f"s_branch L_he{n}")
    A.raw(f"L_hf{n}:")
    for l in lines:
        A.raw("    " + l)
    A.raw(f"L_he{n}:")
    A.fence()


def signal(A, step, tags):
    A.wait_vm(tags)
    A(f"""
    s_add_u32 s{sA}, s{sOWN}, {step}
    v_mov_b32 v{vT0}, s{sA}
    v_mov_b32 v{vT1}, 0
    s_mov_b64 exec, 1
    """)
    hstores(A, [f"buffer_store_dword v{vT0}, v{vT1}, {WSS}, s{sFLA} offen"], None)
    A("s_mov_b64 exec, -1")


def arrival_check(A, lbl_ok):
    A(f"""
    v_subrev_u32 v{vT0}, 0x01010101, v{vF}
    v_not_b32 v{vT1}, v{vF}
    v_and_b32 v{vT0}, v{vT0}, v{vT1}
    v_and_b32 v{vT0}, 0x80808080, v{vT0}
    v_cmp_ne_u32 vcc, 0, v{vT0}
    s_and_b64 vcc, vcc, -1
    s_cbranch_scc0 {lbl_ok}
    """)


def wait_arrival(A):
    n = newlbl()
    A.wait_vm("arr")
    saved = list(A.vm)
    arrival_check(A, f"L_go{n}")
    A(f"s_mov_b32 s{sCNT}, 0")
    A.raw(f"L_wait{n}:")
    A(f"""
    buffer_load_dword v{vF}, v{vFo}, s[{SDBG}:{SDBG+3}], 0 offen sc1
    s_waitcnt vmcnt(0)
    """)
    arrival_check(A, f"L_go{n}")
    A(f"""
    s_add_u32 s{sCNT}, s{sCNT}, 1
    s_cmp_lt_u32 s{sCNT}, 0x40000
    s_cbranch_scc1 L_wait{n}
    """)
    A.raw(f"L_go{n}:")
    A.vm = saved
    A.fence()
    A(f"""
    s_mul_i32 s{sA}, s{sXCC}, 0x01010101
    v_cmp_ne_u32 vcc, s{sA}, v{vF}
    s_lshl_b32 s{sA}, s{sG}, 2
    s_lshr_b64 vcc, vcc, s{sA}
    s_and_b32 s{sA}, vcc_lo, 15
    s_cmp_eq_u32 s{sA}, 0
    s_cselect_b32 s{sFAST}, 1, 0
    """)


def prologue(A, label):
    A.raw(".p2align 8\n.globl %s\n.type %s,@function\n%s:" % (label, label, label))
    if INSTR:
        A("s_memrealtime s[100:101]\ns_waitcnt lgkmcnt(0)\nv_writelane_b32 v15, s100, 62")
        stamp(A, "start")
    A(f"""
    s_cmp_ge_u32 s2, 256
    s_cbranch_scc1 L_done
    s_load_dwordx16 s[44:59], s[0:1], 0
    s_load_dwordx4 s[60:63], s[0:1], 64
    v_and_b32 v{vL}, 63, v0
    v_lshrrev_b32 v{vT0}, 6, v0
    s_lshr_b32 s{sIDX}, s2, 3
    s_and_b32 s{sG}, s2, 7
    s_lshl_b32 s{sG}, s{sG}, 1
    v_readfirstlane_b32 s{sW}, v{vT0}
    s_lshr_b32 s{sA}, s{sIDX}, 4
    s_add_u32 s{sG}, s{sG}, s{sA}
    s_and_b32 s{sJ}, s{sIDX}, 15
    s_lshr_b32 s{sHB}, s{sJ}, 3
    s_and_b32 s{sCB}, s{sJ}, 7
    s_lshl_b32 s{sRB}, s{sG}, 1
    s_add_u32 s{sRB}, s{sRB}, s{sHB}
    s_lshl_b32 s{sFLG}, s{sG}, 8
    v_and_b32 v{vJ}, 15, v{vL}
    v_lshrrev_b32 v{vQ}, 4, v{vL}
    v_lshlrev_b32 v{vL16}, 4, v{vL}
    v_lshlrev_b32 v{vFo}, 2, v{vL}
    v_lshrrev_b32 v{vT0}, 3, v{vL}
    v_and_b32 v{vT1}, 7, v{vL}
    v_and_b32 v{vT2}, 6, v{vT0}
    v_xor_b32 v{vT2}, v{vT1}, v{vT2}
    v_lshlrev_b32 v{vT2}, 4, v{vT2}
    v_lshl_add_u32 v{vDs}, v{vT0}, 10, v{vT2}
    v_mov_b32 v{ones}, 0x3f803f80
    v_mov_b32 v{ones+1}, 0x3f803f80
    v_mov_b32 v{ones+2}, 0x3f803f80
    v_mov_b32 v{ones+3}, 0x3f803f80
    v_lshlrev_b32 v{vSt}, 6, v{vJ}
    v_lshl_add_u32 v{vSt}, v{vQ}, 4, v{vSt}
    s_getreg_b32 s{sXCC}, hwreg(HW_REG_XCC_ID)
    s_and_b32 s{sXCC}, s{sXCC}, 15
    s_add_u32 s{sXCC}, s{sXCC}, 1
    s_mov_b32 s{sFAST}, 0
    """)


SRDTAB = {
    "x": (SX, 44, 2048 * 512 * 2), "wq": (SWQ, 46, 512 * 1536 * 2), "wo": (SWO, 48, 512 * 512 * 2),
    "wg": (SWG, 52, 512 * 1376 * 2), "wu": (SWU, 54, 512 * 1376 * 2), "wd": (SWD, 56, 1376 * 512 * 2),
    "out": (SOUT, 58, 2048 * 512 * 2), "ws": (SWS, 62, WS_SIZE), "dbg": (SDBG, 60, 256),
}


def build_srds(A, names):
    for k in names:
        d, p, n = SRDTAB[k]
        A(f"""
        s_mov_b32 s{d}, s{p}
        s_and_b32 s{d+1}, s{p+1}, 0xffff
        s_mov_b32 s{d+2}, {n}
        s_mov_b32 s{d+3}, 0x20000
        """)


def p1(A, bq):
    ST = MISC
    vWe, vWo_, vA0, vA1, vWt = 32, 33, 34, 35, 36
    vA0b, vA1b, vWtb = 37, 38, 39
    vSa, vSc, vSl = 40, 41, 42
    accQ, accK, accV = 48, 68, 88
    Af = [108, 128]
    Wf = [148, 160]
    biasP, biasC, biasF, selLo, selHi = 196, 200, 204, 208, 209
    WO = 10240
    vD3 = 172
    vTr3 = 175
    vTrS = 178
    vXr = 179
    XR = 180
    RT = 212
    CSP = 232
    SSR = 188
    A(f"""
    v_lshrrev_b32 v{vT0}, 3, v{vL}
    v_and_b32 v{vT1}, 7, v{vL}
    v_and_b32 v{vT2}, 2, v{vT0}
    v_xor_b32 v{vT2}, v{vT1}, v{vT2}
    v_lshlrev_b32 v{vT2}, 4, v{vT2}
    v_mul_u32_u24 v{vWe}, 3072, v{vT0}
    v_add_u32 v{vWe}, v{vWe}, v{vT2}
    v_xor_b32 v{vWo_}, 64, v{vWe}
    v_add_u32 v{vWo_}, 24576, v{vWo_}
    s_and_b32 s{sA}, s{sW}, 1
    s_lshl_b32 s{sA}, s{sA}, 5
    """)
    for n in range(3):
        A(f"""
        v_add_u32 v{vT0}, {64*n}, v{vL}
        v_mul_u32_u24 v{vT1}, 43691, v{vT0}
        v_lshrrev_b32 v{vT1}, 19, v{vT1}
        v_mul_u32_u24 v{vT2}, 12, v{vT1}
        v_sub_u32 v{vT0}, v{vT0}, v{vT2}
        v_bfe_u32 v{vT2}, v{vT1}, 2, 1
        v_xor_b32 v{vT0}, v{vT0}, v{vT2}
        v_mul_u32_u24 v{vT1}, 2752, v{vT1}
        v_lshl_add_u32 v{vT0}, v{vT0}, 4, v{vT1}
        v_xor_b32 v{vT0}, s{sA}, v{vT0}
        v_subrev_u32 v{vD3+n}, {1024*n}, v{vT0}
        """)
    A(f"v_lshlrev_b32 v{vXr}, 5, v{vL}")
    A("s_waitcnt lgkmcnt(0)")
    build_srds(A, ["x", "wq", "ws", "wo", "wg", "wu", "wd", "out", "dbg"])
    stamp(A, "srds built")
    A(f"buffer_load_dword v{vOld}, v{vFo}, {WSS}, s{sFLG} offen sc1", tag="old")
    A(f"""
    s_and_b32 s{sA}, s{sW}, 1
    s_cmp_eq_u32 s{sA}, 0
    s_cselect_b32 s{SB3}, s{SWG}, s{SWU}
    s_cselect_b32 s{SB3+1}, s{SWG+1}, s{SWU+1}
    s_mov_b32 s{SB3+2}, {512*1376*2}
    s_mov_b32 s{SB3+3}, 0x20000
    s_lshr_b32 s{sA}, s{sW}, 1
    s_lshl_b32 s{sB}, s{sG}, 1
    s_add_u32 s{sA}, s{sA}, s{sB}
    s_mul_i32 s{sA}, s{sA}, {16*2752}
    s_mul_i32 s{sB}, s{sJ}, 192
    s_add_u32 s{sA}, s{sA}, s{sB}
    s_cmp_eq_u32 s{sJ}, 15
    s_cselect_b32 s{sA}, 0x7f000000, s{sA}
    s_mul_i32 s{sB}, s{sW}, 3072
    s_add_u32 m0, s{sB}, {STG}
    """)
    for n in range(3):
        A(f"buffer_load_dwordx4 v{vD3+n}, s[{SB3}:{SB3+3}], s{sA} offen offset:{n*1024} lds", tag="pre")
    A(f"""
    s_cmp_lt_u32 s2, 64
    s_cselect_b32 s52, s{SWO}, s{SWD}
    s_cselect_b32 s53, s{SWO+1}, s{SWD+1}
    s_cselect_b32 s54, s{SWO+2}, s{SWD+2}
    s_mov_b32 s55, 0x20000
    s_cselect_b32 s{sA}, 0, 128
    s_cselect_b32 s58, 16, 48
    s_mov_b32 s57, {WS_R4}
    s_cselect_b32 s57, {WS_R2}, s57
    s_lshl_b32 s56, s2, 1
    s_sub_u32 s56, s56, s{sA}
    s_lshr_b32 s{sA}, s56, 3
    s_and_b32 s{sB}, s56, 7
    s_mul_i32 s{sC}, s{sB}, s58
    s_add_u32 s{sC}, s{sC}, s{sA}
    s_lshl_b32 s{sC}, s{sC}, 12
    s_add_u32 s57, s57, s{sC}
    s_lshl_b32 s{sC}, s{sW}, 10
    s_add_u32 s57, s57, s{sC}
    s_lshl_b32 s58, s58, 12
    s_lshl_b32 s{sA}, s{sA}, 15
    s_lshl_b32 s{sB}, s{sB}, 7
    s_add_u32 s{sA}, s{sA}, s{sB}
    s_lshl_b32 s{sB}, s{sW}, 13
    s_add_u32 s{sA}, s{sA}, s{sB}
    s_add_u32 m0, s{sC}, {STG + 12288}
    """)
    A(f"buffer_load_dwordx4 v{vDs}, s[52:55], s{sA} offen lds", tag="pre")
    A(f"""
    s_add_u32 m0, s{sC}, {STG + 12288 + 4096}
    s_add_u32 s{sA}, s{sA}, 128
    """)
    A(f"buffer_load_dwordx4 v{vDs}, s[52:55], s{sA} offen lds", tag="pre")
    A(f"""
    s_lshl_b32 s{sA}, s2, 13
    s_lshl_b32 s{sB}, s{sW}, 11
    s_add_u32 s{sA}, s{sA}, s{sB}
    """)
    A(f"buffer_load_dwordx4 v[{XR}:{XR+3}], v{vXr}, s[{SX}:{SX+3}], s{sA} offen", tag="pre")
    A(f"buffer_load_dwordx4 v[{XR+4}:{XR+7}], v{vXr}, s[{SX}:{SX+3}], s{sA} offen offset:16", tag="pre")
    xrot = f"s_and_b32 s{sB}, s2, 7" if opt("xrot", 1) else f"s_mov_b32 s{sB}, 0"
    A(f"""
    s_lshr_b32 s{sA}, s{sIDX}, 3
    s_add_u32 s{sA}, s{sA}, s{sCB}
    s_and_b32 s{sA}, s{sA}, 1
    s_lshl_b32 s{sA}, s{sA}, 2
    {xrot}
    s_add_u32 s{sKC0}, s{sA}, s{sB}
    s_lshl_b32 s{sA}, s{sRB}, 16
    s_sub_u32 s{sA}, s{sA}, 16384
    s_lshl_b32 s{sB}, s{sW}, 14
    s_add_u32 s{sXo0}, s{sA}, s{sB}
    s_add_u32 s{sXo1}, s{sXo0}, 8192
    s_max_i32 s{sXo0}, s{sXo0}, 0
    s_max_i32 s{sXo1}, s{sXo1}, 0
    s_lshr_b32 s{sB}, s{sW}, 1
    s_lshl_b32 s{sC}, s{sB}, 13
    s_add_u32 s{sXo2}, s{sA}, s{sC}
    s_add_u32 s{sXo2}, s{sXo2}, 65536
    s_lshl_b32 s{sXl}, s{sW}, 11
    s_lshl_b32 s{sXl2}, s{sB}, 10
    s_add_u32 s{sXl2}, s{sXl2}, 8192
    s_mul_i32 s{sWl}, s{sW}, 6144
    s_add_u32 s{sWl}, s{sWl}, {WO}
    s_mul_i32 s{sWs}, s{sW}, 49152
    s_lshl_b32 s{sB}, s{sCB}, 7
    s_add_u32 s{sWs}, s{sWs}, s{sB}
    s_cmp_eq_u32 s{sW}, 0
    s_cselect_b32 s{sEX0}, 0xffffff00, -1
    s_mov_b32 s{sEX0+1}, -1
    s_and_b32 s{sA}, s{sW}, 1
    s_cmp_eq_u32 s{sA}, 0
    s_cselect_b32 s{sEX2}, -1, 0
    s_cselect_b32 s{sEX2+1}, 0, -1
    """)

    def dma(i):
        slot = i % 3
        it = []
        tag = f"c{i}"
        it.append((f"""
        s_add_u32 s{sA}, s{sKC0}, {i}
        s_and_b32 s{sA}, s{sA}, 7
        s_mul_i32 s{sC}, s{sA}, {64*3072}
        s_add_u32 s{sC}, s{sC}, s{sWs}
        s_lshl_b32 s{sA}, s{sA}, 7
        s_add_u32 m0, s{sWl}, {slot*SLOT}
        buffer_load_dwordx4 v{vWe}, s[{SWQ}:{SWQ+3}], s{sC} offen lds""", tag))
        for sec in (1, 2):
            it.append((f"buffer_load_dwordx4 v{vWe}, s[{SWQ}:{SWQ+3}], s{sC} offen offset:{sec*1024} lds", tag))
        for sec in range(3):
            pre = f"s_add_u32 m0, s{sWl}, {slot*SLOT+3072}\n" if sec == 0 else ""
            it.append((pre + f"buffer_load_dwordx4 v{vWo_}, s[{SWQ}:{SWQ+3}], s{sC} offen offset:{sec*1024} lds", tag))
        it.append((f"""
        s_mov_b64 exec, s[{sEX0}:{sEX0+1}]
        s_add_u32 m0, s{sXl}, {slot*SLOT}
        s_add_u32 s{sB}, s{sXo0}, s{sA}
        buffer_load_dwordx4 v{vDs}, s[{SX}:{SX+3}], s{sB} offen lds
        s_mov_b64 exec, -1""", tag))
        it.append((f"""
        s_add_u32 m0, s{sXl}, {slot*SLOT+1024}
        s_add_u32 s{sB}, s{sXo1}, s{sA}
        buffer_load_dwordx4 v{vDs}, s[{SX}:{SX+3}], s{sB} offen lds""", tag))
        it.append((f"""
        s_mov_b64 exec, s[{sEX2}:{sEX2+1}]
        s_add_u32 m0, s{sXl2}, {slot*SLOT}
        s_add_u32 s{sB}, s{sXo2}, s{sA}
        buffer_load_dwordx4 v{vDs}, s[{SX}:{SX+3}], s{sB} offen lds
        s_mov_b64 exec, -1""", tag))
        return it

    emit(A, dma(0))
    if opt("touch1", 0):
        A(f"""
        s_mul_i32 s{sA}, s2, {48*128}
        s_mul_i32 s{sB}, s{sW}, {12*128}
        s_add_u32 s{sA}, s{sA}, s{sB}
        v_lshlrev_b32 v{vT3}, 7, v{vL}
        s_mov_b64 exec, 0xfff
        buffer_load_dword v{vF}, v{vT3}, s[{SWQ}:{SWQ+3}], s{sA} offen
        s_mov_b64 exec, -1
        """)
    stamp(A, "dma0 issued")
    A(f"""
    v_lshrrev_b32 v{vT0}, 3, v{vJ}
    v_and_b32 v{vT1}, 7, v{vJ}
    v_lshlrev_b32 v{vT1}, 7, v{vT1}
    v_lshl_add_u32 v{vT0}, v{vT0}, 10, v{vT1}
    v_and_b32 v{vT1}, 6, v{vJ}
    v_xor_b32 v{vT1}, v{vQ}, v{vT1}
    v_lshl_add_u32 v{vA0}, v{vT1}, 4, v{vT0}
    v_xor_b32 v{vA1}, 64, v{vA0}
    v_bfe_u32 v{vT0}, v{vL}, 2, 2
    v_bfe_u32 v{vT1}, v{vL}, 1, 1
    s_lshl_b32 s{sA}, s{sW}, 1
    v_add_u32 v{vT1}, s{sA}, v{vT1}
    v_and_b32 v{vT2}, 1, v{vQ}
    v_lshlrev_b32 v{vT2}, 2, v{vT2}
    v_xor_b32 v{vT1}, v{vT1}, v{vT2}
    v_and_b32 v{vT2}, 2, v{vT0}
    v_xor_b32 v{vT1}, v{vT1}, v{vT2}
    v_lshlrev_b32 v{vT1}, 4, v{vT1}
    v_lshl_add_u32 v{vT1}, v{vT0}, 7, v{vT1}
    v_and_b32 v{vT2}, 1, v{vL}
    v_lshl_add_u32 v{vT1}, v{vT2}, 3, v{vT1}
    v_mul_u32_u24 v{vT2}, 3072, v{vQ}
    v_add_u32 v{vT1}, v{vT1}, v{vT2}
    v_add_u32 v{vWt}, {WO}, v{vT1}
    v_add_u32 v{vA0b}, {2*SLOT}, v{vA0}
    v_add_u32 v{vA1b}, {2*SLOT}, v{vA1}
    v_add_u32 v{vWtb}, {2*SLOT}, v{vWt}
    v_lshrrev_b32 v{vT0}, 3, v{vL}
    v_mul_u32_u24 v{vT0}, {SLOT}, v{vT0}
    v_and_b32 v{vT1}, 7, v{vL}
    v_lshl_add_u32 v{vT0}, v{vT1}, 4, v{vT0}
    s_mov_b64 exec, 0xffffff
    ds_write_b128 v{vT0}, v[{ones}:{ones+3}]
    s_mov_b64 exec, -1
    """)
    A(f"""
    v_bfe_u32 v{vT0}, v{vL}, 2, 3
    v_and_b32 v{vT1}, 6, v{vT0}
    v_bfe_u32 v{vT2}, v{vL}, 1, 1
    v_or_b32 v{vT1}, v{vT1}, v{vT2}
    v_lshlrev_b32 v{vT1}, 4, v{vT1}
    v_lshl_add_u32 v{vT1}, v{vT0}, 7, v{vT1}
    v_and_b32 v{vT2}, 1, v{vL}
    v_lshl_add_u32 v{vT1}, v{vT2}, 3, v{vT1}
    v_lshrrev_b32 v{vT2}, 5, v{vL}
    v_lshl_add_u32 v{vT1}, v{vT2}, 10, v{vT1}
    s_lshl_b32 s{sA}, s{sW}, 5
    v_xor_b32 v{vT1}, s{sA}, v{vT1}
    v_add_u32 v{vTrS}, {STG+12288}, v{vT1}
    v_lshrrev_b32 v{vT0}, 2, v{vL}
    v_mul_u32_u24 v{vT0}, 192, v{vT0}
    v_bfe_u32 v{vT1}, v{vL}, 1, 1
    v_mul_u32_u24 v{vT2}, 3072, v{vT1}
    v_add_u32 v{vT0}, v{vT0}, v{vT2}
    v_add_u32 v{vT0}, {STG}, v{vT0}
    v_and_b32 v{vT2}, 1, v{vQ}
    v_lshl_add_u32 v{vT1}, v{vT1}, 1, v{vT2}
    v_and_b32 v{vT2}, 1, v{vL}
    s_lshr_b32 s{sA}, s{sW}, 1
    s_and_b32 s{sB}, s{sW}, 1
    s_lshl_b32 s{sC}, s{sA}, 2
    s_add_u32 s{sC}, s{sC}, s{sB}
    v_xor_b32 v{vT3}, s{sC}, v{vT1}
    v_lshl_add_u32 v{vT3}, v{vT3}, 4, v{vT0}
    v_lshl_add_u32 v{vTr3}, v{vT2}, 3, v{vT3}
    s_add_u32 s{sC}, s{sC}, 2
    v_xor_b32 v{vT3}, s{sC}, v{vT1}
    v_lshl_add_u32 v{vT3}, v{vT3}, 4, v{vT0}
    v_lshl_add_u32 v{vTr3+1}, v{vT2}, 3, v{vT3}
    s_add_u32 s{sC}, s{sA}, 8
    v_lshl_add_u32 v{vT3}, v{vT2}, 1, s{sC}
    v_xor_b32 v{vT3}, v{vT3}, v{vT1}
    v_lshl_add_u32 v{vT3}, v{vT3}, 4, v{vT0}
    s_lshl_b32 s{sB}, s{sB}, 3
    v_add_u32 v{vTr3+2}, s{sB}, v{vT3}
    """)
    A(f"""
    s_lshl_b32 s{sW12}, s{sW}, 12
    s_mul_i32 s{sK4}, s{sW}, 11
    s_min_u32 s{sK4}, s{sK4}, 32
    s_lshl_b32 s{sA}, s{sJ}, 2
    s_add_u32 s{sA}, s{sA}, s{sW}
    s_mul_i32 s{sB3b}, s{sA}, 49152
    s_add_u32 s{sB3b}, s{sB3b}, {WS_R3}
    s_lshl_b32 s{sFLA}, s{sA}, 2
    s_add_u32 s{sFLA}, s{sFLA}, s{sFLG}
    s_lshl_b32 s{sB2b}, s{sCB}, 16
    s_lshl_b32 s{sA}, s{sW}, 14
    s_add_u32 s{sB2b}, s{sB2b}, s{sA}
    s_add_u32 s{sB2b}, s{sB2b}, {WS_R2}
    s_mul_i32 s{sA}, s{sCB}, 48
    s_add_u32 s{sB}, s{sA}, s{sK4}
    s_lshl_b32 s{sB4b}, s{sB}, 12
    s_add_u32 s{sB4b}, s{sB4b}, {WS_R4}
    s_add_u32 s{sA}, s{sA}, 43
    s_lshl_b32 s{sA}, s{sA}, 12
    s_add_u32 s{sA}, s{sA}, {WS_R4}
    s_cmp_eq_u32 s{sW}, 3
    s_cselect_b32 s{sB4z}, s{sA}, s{sB4b}
    v_and_b32 v{vT0}, 3, v{vJ}
    v_cmp_eq_u32 s[{sM1}:{sM1+1}], 1, v{vT0}
    v_cmp_eq_u32 s[{sM2}:{sM2+1}], 2, v{vT0}
    v_cmp_eq_u32 s[{sM3}:{sM3+1}], 3, v{vT0}
    v_lshrrev_b32 v{vT0}, 2, v{vJ}
    v_cmp_eq_u32 s[{sDiag}:{sDiag+1}], v{vT0}, v{vQ}
    s_cmp_eq_u32 s{sW}, 0
    s_cselect_b32 s{sW0}, 1, 0
    s_mov_b32 s{sW0+1}, 0
    s_cmp_eq_u32 s{sHB}, 0
    s_cselect_b32 s{sHM}, -1, 0
    s_cselect_b32 s{sHM+1}, 0, -1
    """)
    emit(A, dma(1))
    stamp(A, "dma1 issued")
    A.wait_vm("pre")
    A("s_waitcnt lgkmcnt(0)\ns_barrier")
    stamp(A, "pre data landed")
    for u in range(3):
        for hf in range(2):
            A(f"ds_read_b64_tr_b16 v[{RT+4*u+2*hf}:{RT+4*u+2*hf+1}], v{vTr3+u} offset:{hf*6144}", tag=f"rt{u}")
    for n in range(2):
        for hf in range(2):
            A(f"ds_read_b64_tr_b16 v[{RT+12+4*n+2*hf}:{RT+12+4*n+2*hf+1}], v{vTrS} offset:{n*4096+hf*2048}", tag=f"rt{3+n}")
    S1, S2 = 188, 189
    A(f"v_mov_b32 v{S1}, 0\nv_mov_b32 v{S2}, 0")
    for i in range(8):
        A(f"v_dot2_f32_bf16 v{S1}, v{XR+i}, v{ones}, v{S1}")
        A(f"v_dot2_f32_bf16 v{S2}, v{XR+i}, v{XR+i}, v{S2}")
    A(f"""
    s_lshl_b32 s{sA}, s{sJ}, 2
    s_add_u32 s{sA}, s{sA}, s{sW}
    v_readlane_b32 s{sOWN}, v{vOld}, s{sA}
    s_mul_i32 s{sB}, s{sG}, 3072
    s_add_u32 s{sB}, s{sB}, s{sB3b}
    """)
    for u in range(3):
        A.wait_lg(f"rt{u}")
        A(f"buffer_store_dwordx4 v[{RT+4*u}:{RT+4*u+3}], v{vL16}, {WSS}, s{sB} offen offset:{u*1024} sc1", tag="prest")
        A(f"{MF} {v(CSP+4*u,4)}, {v(RT+4*u,4)}, {v(ones,4)}, 0")
    A.wait_lg("rt3")
    A(f"buffer_store_dwordx4 v[{RT+12}:{RT+15}], v{vL16}, {WSS}, s57 offen sc1", tag="prest")
    A(f"s_add_u32 s57, s57, s58")
    A.wait_lg("rt4")
    A(f"buffer_store_dwordx4 v[{RT+16}:{RT+19}], v{vL16}, {WSS}, s57 offen sc1", tag="prest")
    for mode in ("quad_perm:[1,0,3,2]", "quad_perm:[2,3,0,1]", "row_half_mirror", "row_mirror"):
        A(f"v_add_f32_dpp v{S1}, v{S1}, v{S1} {mode} row_mask:0xf bank_mask:0xf")
        A(f"v_add_f32_dpp v{S2}, v{S2}, v{S2} {mode} row_mask:0xf bank_mask:0xf")
    A(f"""
    v_mov_b32 v190, v{S1}
    v_mov_b32 v191, v{S2}
    s_mul_i32 s{sA}, s{sA}, 3072
    s_lshl_b32 s{sB}, s{sG}, 6
    s_add_u32 s{sA}, s{sA}, s{sB}
    s_add_u32 s{sA}, s{sA}, {WS_CS}
    v_permlane16_swap_b32 v{S1}, v190
    v_permlane16_swap_b32 v{S2}, v191
    v_add_f32 v{S1}, v{S1}, v190
    v_add_f32 v{S2}, v{S2}, v191
    v_mul_f32 v{S1}, 0x3b000000, v{S1}
    v_mul_f32 v{S2}, 0x3b000000, v{S2}
    v_fma_f32 v{S2}, -v{S1}, v{S1}, v{S2}
    v_max_f32 v{S2}, 0, v{S2}
    v_add_f32 v{S2}, {f32hex(1e-5)}, v{S2}
    v_rsq_f32 v{S2}, v{S2}
    s_mov_b32 exec_lo, 0x00010001
    s_mov_b32 exec_hi, 0x00010001
    """)
    for u in range(3):
        A(f"buffer_store_dwordx4 v[{CSP+4*u}:{CSP+4*u+3}], v{vSt}, {WSS}, s{sA} offen offset:{u*1024} sc1", tag="prest")
    A(f"""
    s_mov_b64 exec, -1
    v_lshrrev_b32 v{vT0}, 5, v{vL}
    v_lshlrev_b32 v{vT0}, 2, v{vT0}
    s_lshl_b32 s{sA}, s2, 5
    s_lshl_b32 s{sB}, s{sW}, 3
    s_add_u32 s{sA}, s{sA}, s{sB}
    s_add_u32 s{sB}, s{sA}, {WS_R1}
    s_add_u32 s{sA}, s{sA}, {WS_M1}
    s_mov_b32 exec_lo, 1
    s_mov_b32 exec_hi, 1
    """)
    A(f"buffer_store_dword v{S1}, v{vT0}, {WSS}, s{sA} offen sc1", tag="prest")
    A(f"buffer_store_dword v{S2}, v{vT0}, {WSS}, s{sB} offen sc1", tag="prest")
    A("s_mov_b64 exec, -1")
    stamp(A, "pre stores issued")
    NEG = f32hex(-1e30)
    A(f"""
    v_lshlrev_b32 v{vT0}, 2, v{vQ}
    v_sub_u32 v{vT0}, v{vT0}, v{vJ}
    v_mov_b32 v{vT3}, {NEG}
    s_cmp_eq_u32 s{sRB}, 0
    s_cselect_b64 s[58:59], -1, 0
    """)
    for r_ in range(4):
        A(f"""
        v_add_u32 v{vT1}, {r_}, v{vT0}
        v_and_b32 v{vT2}, 1, v{vT1}
        v_cmp_eq_u32 s[52:53], 0, v{vT2}
        v_cmp_le_i32 s[54:55], 2, v{vT1}
        v_cmp_ge_i32 s[56:57], 0, v{vT1}
        s_and_b64 s[54:55], s[54:55], s[52:53]
        s_and_b64 s[56:57], s[56:57], s[52:53]
        v_cndmask_b32 v{biasP+r_}, v{vT3}, 0, s[54:55]
        v_cndmask_b32 v{biasC+r_}, v{vT3}, 0, s[56:57]
        v_cndmask_b32 v{biasF+r_}, v{biasP+r_}, v{vT3}, s[58:59]
        """)
    A(f"""
    v_and_b32 v{vT1}, 1, v{vJ}
    v_cmp_eq_u32 vcc, 1, v{vT1}
    v_mov_b32 v{vT1}, 0x0c0c0100
    v_mov_b32 v{vT2}, 0x01000c0c
    v_cndmask_b32 v{selLo}, v{vT1}, v{vT2}, vcc
    v_mov_b32 v{vT1}, 0x0c0c0302
    v_mov_b32 v{vT2}, 0x03020c0c
    v_cndmask_b32 v{selHi}, v{vT1}, v{vT2}, vcc
    v_lshlrev_b32 v{vSa}, 2, v{vJ}
    v_add_u32 v{vSa}, {ST}, v{vSa}
    v_lshlrev_b32 v{vSc}, 4, v{vQ}
    v_add_u32 v{vSc}, {ST}, v{vSc}
    s_lshl_b32 s{sA}, s{sRB}, 6
    s_and_b32 s{sB}, s{sW}, 1
    s_lshl_b32 s{sB}, s{sB}, 6
    s_add_u32 s{sA}, s{sA}, s{sB}
    s_sub_u32 s{sA}, s{sA}, 16
    v_add_u32 v{vSl}, s{sA}, v{vL}
    v_max_i32 v{vSl}, 0, v{vSl}
    v_lshlrev_b32 v{vSl}, 2, v{vSl}
    """)

    def reads(i, sidx):
        slot = i % 3
        it = []
        if slot < 2:
            va, wt, so = (vA0, vA1)[sidx], vWt, slot * SLOT
        else:
            va, wt, so = (vA0b, vA1b)[sidx], vWtb, 0
        tag = f"r{i}_{sidx}"
        for sec in range(3):
            for hf in range(2):
                it.append((f"ds_read_b64_tr_b16 v[{Wf[sidx]+sec*4+hf*2}:{Wf[sidx]+sec*4+hf*2+1}], v{wt} offset:{so + sidx*12288 + sec*1024 + hf*512}", tag))
        for t in range(5):
            it.append((f"ds_read_b128 v[{Af[sidx]+4*t}:{Af[sidx]+4*t+3}], v{va} offset:{so + t*2048}", tag))
        return it

    def mfmas(i, sidx):
        first = (i == 0 and sidx == 0)
        it = []
        W = lambda sec: v(Wf[sidx] + 4 * sec, 4)
        X = lambda t: v(Af[sidx] + 4 * t, 4)
        def m(acc, a, b):
            c = "0" if first else v(acc, 4)
            it.append((f"{MF} {v(acc,4)}, {a}, {b}, {c}", None))
        for t in range(5):
            m(accQ + 4 * t, W(0), X(t))
            m(accK + 4 * t, W(1), X(t))
            m(accV + 4 * t, X(t), W(2))
        return it

    ARR_I = opt("arr_i", 2)
    POLL_I = opt("poll_i", 5)
    for i in range(8):
        A.wait_vm(f"c{i}")
        if i == ARR_I:
            A.wait_vm("prest")
        if i == POLL_I + 1:
            wait_arrival(A)
            stamp(A, "arrival ok")
        if i == 7:
            pass
        A("s_waitcnt lgkmcnt(0)\ns_barrier")
        stamp(A, f"p1 bar{i}")
        dm = dma(i + 2) if i + 2 <= 7 else []
        if i == ARR_I:
            A(f"""
            v_mov_b32 v{vT0}, s{sXCC}
            v_mov_b32 v{vT1}, 0
            s_lshl_b32 s{sA}, s{sG}, 4
            s_add_u32 s{sA}, s{sA}, s{sJ}
            s_mov_b64 exec, s[{sW0}:{sW0+1}]
            buffer_store_byte v{vT0}, v{vT1}, s[{SDBG}:{SDBG+3}], s{sA} offen sc1
            s_mov_b64 exec, -1
            """)
        extra = []
        if i == POLL_I:
            A(f"buffer_load_dword v{vF}, v{vFo}, s[{SDBG}:{SDBG+3}], 0 offen sc1", tag="arr")
        if i == POLL_I + 1:
            extra = [(f"""
            s_lshr_b32 s{sBA}, s{sW}, 1
            s_lshl_b32 s{sBA}, s{sBA}, 16
            s_add_u32 s{sBA}, s{sBA}, {WS_M1}
            s_lshl_b32 m0, s{sW}, 8
            s_add_u32 m0, m0, {ST}
            buffer_load_dword v{vSl}, {WSS}, s{sBA} offen sc1 lds""", "st1")]
        if i > POLL_I:
            extra += bq.take(opt("wa", 8))
        if i == 0:
            emit(A, reads(i, 0) + dm)
            dm = []
        else:
            emit(A, interleave(mfmas(i - 1, 1), reads(i, 0) + dm[:4]))
            dm = dm[4:]
        A.wait_lg(f"r{i}_0")
        emit(A, interleave(mfmas(i, 0), reads(i, 1) + dm + extra))
    A.wait_lg("r7_1")
    emit(A, mfmas(7, 1))
    stamp(A, "p1 loop done")
    A.wait_vm("st1")
    A("s_barrier")
    L1 = 108
    L2M = 120
    L2R = 140
    csQ, csK, csV = 160, 164, 168
    for t in range(5):
        A(f"ds_read2_b32 v[{L1+2*t}:{L1+2*t+1}], v{vSa} offset0:{16*t} offset1:{128+16*t}", tag="st")
    for t in range(5):
        A(f"ds_read_b128 v[{L2M+4*t}:{L2M+4*t+3}], v{vSc} offset:{64*t}", tag="st")
        A(f"ds_read_b128 v[{L2R+4*t}:{L2R+4*t+3}], v{vSc} offset:{512+64*t}", tag="st")
    A(f"v_lshlrev_b32 v{vT0}, 2, v{vJ}")
    A(f"ds_bpermute_b32 v{csV}, v{vT0}, v{accV}", tag="st")
    for r_ in range(4):
        A(f"v_mov_b32_dpp v{csQ+r_}, v{accQ+r_} row_newbcast:0 row_mask:0xf bank_mask:0xf")
        A(f"v_mov_b32_dpp v{csK+r_}, v{accK+r_} row_newbcast:0 row_mask:0xf bank_mask:0xf")
    A.wait_lg("st")
    Kp, Qp, Vp = 210, 220, 230
    for t in range(5):
        for (acc, cs, P, scale) in ((accK, csK, Kp, True), (accQ, csQ, Qp, False)):
            if acc == accQ and t == 0:
                continue
            a = acc + 4 * t
            for h in range(2):
                A(f"v_pk_fma_f32 v[{a+2*h}:{a+2*h+1}], v[{cs+2*h}:{cs+2*h+1}], v[{L1+2*t}:{L1+2*t+1}], v[{a+2*h}:{a+2*h+1}] op_sel:[0,0,0] op_sel_hi:[1,0,1] neg_lo:[0,1,0] neg_hi:[0,1,0]")
            if scale:
                for h in range(2):
                    A(f"v_pk_mul_f32 v[{a+2*h}:{a+2*h+1}], v[{a+2*h}:{a+2*h+1}], v[{L1+2*t}:{L1+2*t+1}] op_sel:[0,1] op_sel_hi:[1,1]")
            for h in range(2):
                A(f"v_cvt_pk_bf16_f32 v{P+2*t+h}, v{a+2*h}, v{a+2*h+1}")
        a = accV + 4 * t
        for h in range(2):
            A(f"v_pk_fma_f32 v[{a+2*h}:{a+2*h+1}], v[{L2M+4*t+2*h}:{L2M+4*t+2*h+1}], v[{csV}:{csV+1}], v[{a+2*h}:{a+2*h+1}] op_sel:[0,0,0] op_sel_hi:[1,0,1] neg_lo:[1,0,0] neg_hi:[1,0,0]")
        for h in range(2):
            A(f"v_pk_mul_f32 v[{a+2*h}:{a+2*h+1}], v[{a+2*h}:{a+2*h+1}], v[{L2R+4*t+2*h}:{L2R+4*t+2*h+1}]")
        for h in range(2):
            A(f"v_cvt_pk_bf16_f32 v{Vp+2*t+h}, v{a+2*h}, v{a+2*h+1}")
    stamp(A, "p1 fold done")
    Sp = lambda t: 48 + 8 * (t - 1)
    Sc = lambda t: 52 + 8 * (t - 1)
    for t in range(1, 5):
        A(f"{MF16} {v(Sp(t),4)}, {v(Kp+2*(t-1),2)}, {v(Qp+2*t,2)}, {v(biasF if t==1 else biasP,4)}")
        A(f"{MF16} {v(Sc(t),4)}, {v(Kp+2*t,2)}, {v(Qp+2*t,2)}, {v(biasC,4)}")
    X = lambda t, i: 80 + 4 * (t - 1) + i
    MX = lambda t: 96 + (t - 1)
    MY = lambda t: 100 + (t - 1)
    CQ = lambda t: 104 + (t - 1)
    for t in range(1, 5):
        A(f"v_mul_f32 v{CQ(t)}, {f32hex(0.25*LOG2E)}, v{L1+2*t+1}")
    for t in range(1, 5):
        A(f"""
        v_max_f32 v{X(t,0)}, v{Sp(t)}, v{Sp(t)+1}
        v_max_f32 v{X(t,1)}, v{Sp(t)+2}, v{Sp(t)+3}
        v_max_f32 v{X(t,2)}, v{Sc(t)}, v{Sc(t)+1}
        v_max_f32 v{X(t,3)}, v{Sc(t)+2}, v{Sc(t)+3}
        v_max3_f32 v{MX(t)}, v{X(t,0)}, v{X(t,1)}, v{X(t,2)}
        v_max_f32 v{MX(t)}, v{MX(t)}, v{X(t,3)}
        v_mov_b32 v{MY(t)}, v{MX(t)}
        """)
    for t in range(1, 5):
        A(f"v_permlane16_swap_b32 v{MX(t)}, v{MY(t)}")
    for t in range(1, 5):
        A(f"v_max_f32 v{MX(t)}, v{MX(t)}, v{MY(t)}")
    for t in range(1, 5):
        A(f"v_mov_b32 v{MY(t)}, v{MX(t)}")
    for t in range(1, 5):
        A(f"v_permlane32_swap_b32 v{MX(t)}, v{MY(t)}")
    for t in range(1, 5):
        A(f"v_max_f32 v{MX(t)}, v{MX(t)}, v{MY(t)}")
    for t in range(1, 5):
        A(f"v_mul_f32 v{MX(t)}, v{MX(t)}, v{CQ(t)}")
    for t in range(1, 5):
        for i in range(4):
            A(f"v_fma_f32 v{X(t,i)}, v{X(t,i)}, v{CQ(t)}, -v{MX(t)}")
    for t in range(1, 5):
        for i in range(4):
            A(f"v_exp_f32 v{X(t,i)}, v{X(t,i)}")
    Pf = lambda t: 48 + 4 * (t - 1)
    for t in range(1, 5):
        A(f"""
        v_cvt_pk_bf16_f32 v{MX(t)}, v{X(t,0)}, v{X(t,1)}
        v_cvt_pk_bf16_f32 v{MY(t)}, v{X(t,2)}, v{X(t,3)}
        """)
    for t in range(1, 5):
        A(f"""
        v_perm_b32 v{Pf(t)}, v{MX(t)}, v{MX(t)}, v{selLo}
        v_perm_b32 v{Pf(t)+1}, v{MX(t)}, v{MX(t)}, v{selHi}
        v_perm_b32 v{Pf(t)+2}, v{MY(t)}, v{MY(t)}, v{selLo}
        v_perm_b32 v{Pf(t)+3}, v{MY(t)}, v{MY(t)}, v{selHi}
        """)
    Oa = lambda t: 64 + 4 * (t - 1)
    Su = lambda t: 80 + 4 * (t - 1)
    for t in range(1, 5):
        A(f"{MF} {v(Oa(t),4)}, {v(Vp+2*(t-1),4)}, {v(Pf(t),4)}, 0")
        A(f"{MF} {v(Su(t),4)}, {v(ones,4)}, {v(Pf(t),4)}, 0")
    A(f"""
    s_lshl_b32 s{sA}, s{sRB}, 16
    s_lshl_b32 s{sB}, s{sCB}, 11
    s_add_u32 s{sA}, s{sA}, s{sB}
    s_lshr_b32 s{sB}, s{sW}, 1
    s_lshl_b32 s{sB}, s{sB}, 10
    s_add_u32 s{sA}, s{sA}, s{sB}
    s_and_b32 s{sB}, s{sW}, 1
    s_lshl_b32 s{sB}, s{sB}, 3
    s_add_u32 s{sA}, s{sA}, s{sB}
    s_add_u32 s{sA}, s{sA}, {WS_O}
    """)
    for t in range(1, 5):
        A(f"v_rcp_f32 v{Su(t)}, v{Su(t)}")
    st_lines = []
    for t in range(1, 5):
        o = Oa(t)
        A(f"""
        v_pk_mul_f32 v[{o}:{o+1}], v[{o}:{o+1}], v[{Su(t)}:{Su(t)+1}] op_sel:[0,0] op_sel_hi:[1,0]
        v_pk_mul_f32 v[{o+2}:{o+3}], v[{o+2}:{o+3}], v[{Su(t)}:{Su(t)+1}] op_sel:[0,0] op_sel_hi:[1,0]
        v_cvt_pk_bf16_f32 v{o}, v{o}, v{o+1}
        v_cvt_pk_bf16_f32 v{o+1}, v{o+2}, v{o+3}
        """)
        st_lines += [f"s_add_u32 s{sB}, s{sA}, {(t-1)*16384}", f"buffer_store_dwordx2 v[{o}:{o+1}], v{vL16}, {WSS}, s{sB} offen"]
    hstores(A, st_lines, "ost")
    stamp(A, "p1 stores issued")
    signal(A, 1, "ost")
    stamp(A, "p1 signalled")


def ksplit(A, bq, which):
    P2 = which == 2
    nst = 4 if P2 else 11
    vRr, vXo = 27, 14
    RW = [12, 13, 11]
    acc = 32
    if P2:
        Afr = lambda t, st: v(96 + (t * nst + st) * 4, 4)
        Bf = B2reg
    else:
        Afr = lambda t, st: a_((t * nst + st) * 4, 4)
        Bf = B4reg
    RED = 0
    for t in range(1, 4):
        A(f"""
        s_add_u32 s{sA}, s{sW}, {t}
        s_and_b32 s{sA}, s{sA}, 3
        s_mul_i32 s{sA}, s{sA}, 12288
        s_add_u32 s{sA}, s{sA}, {RED + (t-1)*4096}
        v_add_u32 v{RW[t-1]}, s{sA}, v{vL16}
        """)
    A(f"""
    s_mul_i32 s{sA}, s{sW}, 12288
    s_add_u32 s{sA}, s{sA}, {RED}
    v_add_u32 v{vRr}, s{sA}, v{vL16}
    v_lshlrev_b32 v{vXo}, 10, v{vJ}
    v_lshl_add_u32 v{vXo}, v{vQ}, 3, v{vXo}
    """)

    def a_loads(t):
        base = WS_O if P2 else WS_HH
        pitch = 16 if P2 else HHK
        k0 = f"s_lshl_b32 s{sB}, s{sW}, 2" if P2 else f"s_mov_b32 s{sB}, s{sK4}"
        it = [(f"""
        s_add_u32 s{sA}, s{sW}, {t}
        s_and_b32 s{sA}, s{sA}, 3
        s_lshl_b32 s{sB}, s{sRB}, 2
        s_add_u32 s{sA}, s{sA}, s{sB}
        s_mul_i32 s{sA}, s{sA}, {pitch}
        {k0}
        s_add_u32 s{sA}, s{sA}, s{sB}
        s_lshl_b32 s{sA}, s{sA}, 10
        s_add_u32 s{sA}, s{sA}, {base}""", None)]
        for st in range(nst):
            if st % 4 == 0 and st > 0:
                it.append((f"s_add_u32 s{sA}, s{sA}, 4096", None))
            it.append((f"buffer_load_dwordx4 {Afr(t,st)}, v{vL16}, {WSS}, s{sA} offen offset:{(st%4)*1024}{SC}", f"a{t}_{st}"))
        return it

    if P2:
        A(f"""
        s_lshl_b32 s{sA}, s{sRB}, 16
        s_lshl_b32 s{sB}, s{sW}, 14
        s_add_u32 s{sA}, s{sA}, s{sB}
        s_lshl_b32 s{sB}, s{sCB}, 7
        s_add_u32 s{sC}, s{sA}, s{sB}
        """)
        for ct in range(4):
            A(f"buffer_load_dwordx2 v[{160+2*ct}:{161+2*ct}], v{vXo}, s[{SX}:{SX+3}], s{sC} offen offset:{ct*32}", tag="res")
        resreg = lambda i: f"v{160+i}"
        emit(A, bq.upto(16) + bq.take(opt("wb", 8)))
        stamp(A, "p2 before wait")
        wait_flags(A, 1, f"s[{sHM}:{sHM+1}]")
        stamp(A, "p2 flags ok")
    else:
        A(f"""
        s_lshl_b32 s{sA}, s{sRB}, 16
        s_lshl_b32 s{sB}, s{sW}, 14
        s_add_u32 s{sA}, s{sA}, s{sB}
        s_lshl_b32 s{sB}, s{sCB}, 11
        s_add_u32 s{sA}, s{sA}, s{sB}
        s_add_u32 s{sA}, s{sA}, {WS_H}
        """)
        for h in range(2):
            A(f"buffer_load_dwordx4 a[{176+4*h}:{179+4*h}], v{vL16}, {WSS}, s{sA} offen offset:{h*1024}{SC}", tag="res")
        emit(A, bq.take(1000))
        stamp(A, "p4 before wait")
        wait_flags(A, 3, "-1")
        stamp(A, "p4 flags ok")
    for t in range(4):
        emit(A, a_loads(t))
    if P2:
        emit(A, bq.take(opt("wc", 8)))
    for t in range(4):
        for st in range(nst):
            A.wait_vm(f"a{t}_{st}")
            for ct in range(4):
                d = v(acc + (t * 4 + ct) * 4, 4)
                A(f"{MF} {d}, {r(Bf(st,ct),0,4)}, {Afr(t,st)}, {'0' if st==0 else d}")
        if t >= 2:
            tt = t - 1
            for ct in range(4):
                A(f"ds_write_b128 v{RW[tt-1]}, {v(acc+(tt*4+ct)*4,4)} offset:{ct*1024}")
    for ct in range(4):
        A(f"ds_write_b128 v{RW[2]}, {v(acc+(3*4+ct)*4,4)} offset:{ct*1024}")
    stamp(A, f"p{which} mfma done")
    A("s_waitcnt lgkmcnt(0)\ns_barrier")
    T = 96
    for k in range(3):
        for ct in range(4):
            A(f"ds_read_b128 {v(T+(k*4+ct)*4,4)}, v{vRr} offset:{k*4096+ct*1024}", tag=f"rd{k}")
    U = 48
    if not P2:
        for i in range(8):
            A(f"v_accvgpr_read_b32 v{64+i}, a{176+i}")
        resreg = lambda i: f"v{64+i}"
    for ct in range(4):
        for h in range(2):
            A(f"v_lshlrev_b32 v{U+ct*4+2*h}, 16, {resreg(2*ct+h)}")
            A(f"v_and_b32 v{U+ct*4+2*h+1}, 0xffff0000, {resreg(2*ct+h)}")
    for ct in range(4):
        for h in range(2):
            a = acc + ct * 4 + 2 * h
            A(f"v_pk_add_f32 v[{a}:{a+1}], v[{a}:{a+1}], v[{U+ct*4+2*h}:{U+ct*4+2*h+1}]")
    for k in range(3):
        A.wait_lg(f"rd{k}")
        for ct in range(4):
            for h in range(2):
                a = acc + ct * 4 + 2 * h
                b = T + (k * 4 + ct) * 4 + 2 * h
                A(f"v_pk_add_f32 v[{a}:{a+1}], v[{a}:{a+1}], v[{b}:{b+1}]")
    PK = 72
    for ct in range(4):
        for h in range(2):
            a = acc + ct * 4 + 2 * h
            A(f"v_cvt_pk_bf16_f32 v{PK+2*ct+h}, v{a}, v{a+1}")
    A(f"""
    s_lshl_b32 s{sA}, s{sRB}, 16
    s_lshl_b32 s{sB}, s{sW}, 14
    s_add_u32 s{sA}, s{sA}, s{sB}
    """)
    if P2:
        G, S_ = 80, 84
        A(f"""
        s_lshl_b32 s{sB}, s{sCB}, 11
        s_add_u32 s{sC}, s{sA}, s{sB}
        s_add_u32 s{sC}, s{sC}, {WS_H}
        {MF} {v(G,4)}, {v(PK,4)}, {v(PK,4)}, 0
        {MF} {v(S_,4)}, {v(ones,4)}, {v(PK,4)}, 0
        {MF} {v(G,4)}, {v(PK+4,4)}, {v(PK+4,4)}, {v(G,4)}
        {MF} {v(S_,4)}, {v(ones,4)}, {v(PK+4,4)}, {v(S_,4)}
        """)
        hstores(A, [f"buffer_store_dwordx4 v[{PK}:{PK+3}], v{vL16}, {WSS}, s{sC} offen",
                    f"buffer_store_dwordx4 v[{PK+4}:{PK+7}], v{vL16}, {WSS}, s{sC} offen offset:1024"], "hst")
        A(f"""
        v_lshlrev_b32 v{vT0}, 6, v{vJ}
        s_lshl_b32 s{sA}, s{sRB}, 12
        s_lshl_b32 s{sB}, s{sW}, 10
        s_add_u32 s{sA}, s{sA}, s{sB}
        s_lshl_b32 s{sB}, s{sCB}, 3
        s_add_u32 s{sA}, s{sA}, s{sB}
        s_add_u32 s{sA}, s{sA}, {WS_ST}
        v_cndmask_b32 v{S_+1}, v{G}, v{G+1}, s[{sM1}:{sM1+1}]
        v_cndmask_b32 v{S_+1}, v{S_+1}, v{G+2}, s[{sM2}:{sM2+1}]
        v_cndmask_b32 v{S_+1}, v{S_+1}, v{G+3}, s[{sM3}:{sM3+1}]
        s_mov_b64 exec, s[{sDiag}:{sDiag+1}]
        """)
        hstores(A, [f"buffer_store_dwordx2 v[{S_}:{S_+1}], v{vT0}, {WSS}, s{sA} offen"], "hst")
        A("s_mov_b64 exec, -1")
        stamp(A, "p2 stores issued")
        signal(A, 2, "hst")
        stamp(A, "p2 signalled")
    else:
        A(f"""
        s_lshl_b32 s{sB}, s{sCB}, 7
        s_add_u32 s{sC}, s{sA}, s{sB}
        """)
        for ct in range(4):
            A(f"buffer_store_dwordx2 v[{PK+2*ct}:{PK+2*ct+1}], v{vXo}, s[{SOUT}:{SOUT+3}], s{sC} offen offset:{ct*32}")


def p3(A, bq):
    vH4, vH2, vAr = 13, 14, 27
    cs = 32
    accs = [44, 68]
    Af = 92
    stts = [116, 124]
    tmp = 132
    A3 = 0
    A(f"""
    v_lshrrev_b32 v{vT0}, 1, v{vQ}
    v_mul_u32_u24 v{vT0}, {4*HHK*1024}, v{vT0}
    v_lshl_add_u32 v{vT0}, v{vJ}, 4, v{vT0}
    v_and_b32 v{vT1}, 1, v{vQ}
    s_lshr_b32 s{sA}, s{sW}, 1
    s_lshl_b32 s{sA}, s{sA}, 10
    s_and_b32 s{sB}, s{sW}, 1
    s_lshl_b32 s{sB}, s{sB}, 9
    s_add_u32 s{sA}, s{sA}, s{sB}
    v_lshl_add_u32 v{vH4}, v{vT1}, 8, v{vT0}
    v_add_u32 v{vH4}, s{sA}, v{vH4}
    s_lshl_b32 s{sA}, s{sW}, 8
    s_add_u32 s{sA}, s{sA}, 2048
    v_lshl_add_u32 v{vH2}, v{vT1}, 3, v{vT0}
    v_add_u32 v{vH2}, s{sA}, v{vH2}
    s_lshl_b32 s{sA}, s{sJ}, 2
    s_add_u32 s{sA}, s{sA}, s{sW}
    s_mul_i32 s{sA}, s{sA}, 3072
    s_add_u32 s{sA}, s{sA}, {WS_CS}
    """)
    for u in range(3):
        A(f"buffer_load_dwordx4 {v(cs+4*u,4)}, v{vSt}, {WSS}, s{sA} offen offset:{u*1024}{SC}", tag="cs")
    emit(A, bq.take(opt("wd", 12)))
    stamp(A, "p3 before wait")
    wait_flags(A, 2, "-1")
    stamp(A, "p3 flags ok")

    def a_dma(c):
        it = []
        for ti in range(2):
            pre = f"""
            s_lshl_b32 s{sC}, s{sG}, 17
            s_add_u32 s{sC}, s{sC}, s{sW12}
            s_add_u32 s{sC}, s{sC}, {WS_H + (c+4*ti)*16384}
            s_add_u32 m0, s{sW12}, {A3 + (c%3)*32768 + ti*16384}
            """
            for n in range(4):
                it.append(((pre if n == 0 else "") + f"""
                buffer_load_dwordx4 v{vL16}, {WSS}, s{sC} offen offset:{n*1024}{SC} lds""", f"a{c}"))
        return it

    def st_loads(c):
        it = []
        for ti in range(2):
            it.append((f"""
            s_lshl_b32 s{sA}, s{sG}, 13
            s_add_u32 s{sA}, s{sA}, {WS_ST + (c+4*ti)*1024}
            buffer_load_dwordx4 {v(stts[c%2]+4*ti,4)}, v{vSt}, {WSS}, s{sA} offen{SC}""", f"s{c}"))
        return it

    def epilogue(c):
        acc, stt = accs[c % 2], stts[c % 2]
        it = []
        add = lambda t: it.append((t, None))
        it.append(lambda: A.wait_vm(f"s{c}"))
        for ti in range(2):
            b = stt + 4 * ti
            add(f"v_pk_add_f32 v[{b}:{b+1}], v[{b}:{b+1}], v[{b+2}:{b+3}]")
        for sw in ("v_permlane16_swap_b32", "v_permlane32_swap_b32"):
            for ti in range(2):
                b = stt + 4 * ti
                add(f"v_mov_b32 v{b+2}, v{b}")
                add(f"v_mov_b32 v{b+3}, v{b+1}")
            for ti in range(2):
                b = stt + 4 * ti
                add(f"{sw} v{b}, v{b+2}")
                add(f"{sw} v{b+1}, v{b+3}")
            for ti in range(2):
                b = stt + 4 * ti
                add(f"v_pk_add_f32 v[{b}:{b+1}], v[{b}:{b+1}], v[{b+2}:{b+3}]")
        for op in ("v_mul_f32 v{b}, 0x3b000000, v{b}", "v_mul_f32 v{b1}, 0x3b000000, v{b1}", "v_fma_f32 v{b1}, -v{b}, v{b}, v{b1}",
                   "v_max_f32 v{b1}, 0, v{b1}", "v_add_f32 v{b1}, " + f32hex(1e-5) + ", v{b1}", "v_rcp_f32 v{b1}, v{b1}"):
            for ti in range(2):
                b = stt + 4 * ti
                add(op.format(b=b, b1=b + 1))
        add(f"v_cmp_gt_u32 vcc, 32, v{vL}")
        for u in range(3):
            for ti in range(2):
                a = acc + (ti * 3 + u) * 4
                b = stt + 4 * ti
                for h in range(2):
                    add(f"v_pk_fma_f32 v[{a+2*h}:{a+2*h+1}], v[{cs+4*u+2*h}:{cs+4*u+2*h+1}], v[{b}:{b+1}], v[{a+2*h}:{a+2*h+1}] op_sel:[0,0,0] op_sel_hi:[1,0,1] neg_lo:[0,1,0] neg_hi:[0,1,0]")
        add(f"v_cndmask_b32 v{tmp}, v{stt+5}, v{stt+1}, vcc")
        for u in range(3):
            for r_ in range(4):
                add(f"v_permlane32_swap_b32 v{acc+u*4+r_}, v{acc+(3+u)*4+r_}")
        PK = tmp + 2
        for u in range(3):
            g, up = acc + u * 4, acc + (3 + u) * 4
            for r_ in range(4):
                add(f"v_max_f32 v{g+r_}, 0, v{g+r_}")
            for h in range(2):
                add(f"v_pk_mul_f32 v[{g+2*h}:{g+2*h+1}], v[{g+2*h}:{g+2*h+1}], v[{up+2*h}:{up+2*h+1}]")
            for h in range(2):
                add(f"v_pk_mul_f32 v[{g+2*h}:{g+2*h+1}], v[{g+2*h}:{g+2*h+1}], v[{tmp}:{tmp+1}] op_sel:[0,0] op_sel_hi:[1,0]")
            for h in range(2):
                add(f"v_cvt_pk_bf16_f32 v{PK+2*u+h}, v{g+2*h}, v{g+2*h+1}")
        def st():
            A(f"""
            s_mul_i32 s{sA}, s{sG}, {8*HHK*1024}
            s_mul_i32 s{sB}, s{sJ}, 3072
            s_add_u32 s{sA}, s{sA}, s{sB}
            s_add_u32 s{sA}, s{sA}, {WS_HH + c*HHK*1024}
            """)
            hstores(A, [f"buffer_store_dwordx4 v[{PK}:{PK+3}], v{vH4}, {WSS}, s{sA} offen",
                        f"buffer_store_dwordx2 v[{PK+4}:{PK+5}], v{vH2}, {WSS}, s{sA} offen"], "hhst")
        it.append(st)
        return it

    emit(A, a_dma(0) + st_loads(0) + a_dma(1))
    emit(A, bq.upto(64))
    emit(A, a_dma(2))
    bq.limit = 1000
    for mode in ("quad_perm:[1,0,3,2]", "quad_perm:[2,3,0,1]", "row_half_mirror", "row_mirror"):
        for i in range(12):
            A(f"v_add_f32_dpp v{cs+i}, v{cs+i}, v{cs+i} {mode} row_mask:0xf bank_mask:0xf")
    for c in range(4):
        acc = accs[c % 2]
        A.wait_vm(f"a{c}")
        A("s_waitcnt lgkmcnt(0)\ns_barrier")
        stamp(A, f"p3 chunk{c} start")
        fillv = epilogue(c - 1) if c > 0 else []
        fillm = (a_dma(3) if c == 1 else []) + (st_loads(c) if c > 0 else []) + bq.take(opt("we", 12))
        slot = c % 3
        if slot == 2:
            A(f"v_add_u32 v{vAr}, 65536, v{vL16}")
            off = 0
        else:
            A(f"v_mov_b32 v{vAr}, v{vL16}")
            off = slot * 32768
        rd = lambda ks, ti: (f"ds_read_b128 {v(Af+((ks%3)*2+ti)*4,4)}, v{vAr} offset:{off + ti*16384 + ks*1024}", f"f{ks}")
        for ks in range(2):
            emit(A, [rd(ks, 0), rd(ks, 1)])
        n = 0
        for ks in range(16):
            if ks + 2 < 16:
                emit(A, [rd(ks + 2, 0), rd(ks + 2, 1)])
            A.wait_lg(f"f{ks}")
            A.wait_vm(f"b3_{ks}")
            for ti in range(2):
                for u in range(3):
                    d = v(acc + (ti * 3 + u) * 4, 4)
                    A(f"{MF} {d}, {r(B3reg(ks,u),0,4)}, {v(Af+((ks%3)*2+ti)*4,4)}, {'0' if ks==0 else d}")
                    n += 1
                    if n > 3:
                        for _ in range(2 if n % 4 == 0 else 1):
                            if fillv:
                                emit(A, [fillv.pop(0)])
                    if n % 4 == 2 and fillm:
                        emit(A, [fillm.pop(0)])
        emit(A, fillv + fillm)
        stamp(A, f"p3 chunk{c} mfma done")
    emit(A, epilogue(3))
    stamp(A, "p3 stores issued")
    signal(A, 3, "hhst")
    stamp(A, "p3 signalled")


def main(path):
    A = Asm()
    label = NAME + "_kernel"
    A.raw("; @launch grid=(256,1,1) block=(256,1,1) lds=163840")
    A.raw('.amdgcn_target "amdgcn-amd-amdhsa--gfx950"\n.text')
    bq = BQ()
    prologue(A, label)
    p1(A, bq)
    ksplit(A, bq, 2)
    p3(A, bq)
    ksplit(A, bq, 4)
    A("s_waitcnt vmcnt(0) lgkmcnt(0)")
    if INSTR:
        stamp(A, "end")
        A(f"""
        s_memrealtime s[100:101]
        s_waitcnt lgkmcnt(0)
        v_writelane_b32 v{vSTAMP}, s100, 63
        s_lshl_b32 s{sA}, s2, 2
        s_add_u32 s{sA}, s{sA}, s{sW}
        s_lshl_b32 s{sA}, s{sA}, 8
        s_add_u32 s{sA}, s{sA}, {WS_PROF}
        buffer_store_dword v{vSTAMP}, v{vFo}, {WSS}, s{sA} offen
        s_waitcnt vmcnt(0)
        """)
        open(path + ".stamps", "w").write("\n".join(STAMPNAMES))
    A.raw("L_done:")
    A("s_endpgm")
    A.raw(f""".section .rodata,"a"
.p2align 6
.amdhsa_kernel {label}
  .amdhsa_next_free_vgpr 512
  .amdhsa_next_free_sgpr 102
  .amdhsa_accum_offset 256
  .amdhsa_group_segment_fixed_size 0
  .amdhsa_kernarg_size 80
  .amdhsa_user_sgpr_count 2
  .amdhsa_user_sgpr_kernarg_segment_ptr 1
  .amdhsa_system_sgpr_workgroup_id_x 1
.end_amdhsa_kernel""")
    open(path, "w").write(A.text())
    print("instructions", A.nins, "nops", A.nnop)


if __name__ == "__main__":
    main(sys.argv[1] if len(sys.argv) > 1 else f"k3.s")
```

```python
import sys, os, struct
from asmlib import *

NAME = "sequential_preLN__sliding_local_dilated__glu_gated_reglu__prompt"
INSTR = int(os.environ.get("INSTR", "0"))
OPT = dict(x.split("=") for x in os.environ.get("OPT", "").split(",") if x)
def opt(k, d):
    return int(OPT.get(k, d))

WS_O = 0x100000
WS_H = 0x300000
WS_HH = 0x500000
WS_ST = 0xC00000
WS_PROF = 0xE00000
WS_R3 = 0x1000000
WS_R2 = 0x1400000
WS_R4 = 0x1500000
WS_CS = 0x1700000
WS_M1 = 0x1780000
WS_R1 = 0x1790000
WS_SIZE = 0x2000000
HHK = 48

SX, SWQ, SWO, SWG, SWU, SWD, SOUT, SWS, SDBG, SB3 = 4, 8, 12, 16, 20, 24, 28, 32, 36, 40
sW, sG, sJ, sHB, sCB, sRB, sIDX = 64, 65, 66, 67, 68, 69, 70
sA, sB, sC = 71, 72, 73
sBA = 74
sFAST = 75
sOWN, sFLG, sCNT = 76, 77, 78
sK4 = 79
sB2b, sB3b, sB4b, sB4z = 80, 81, 82, 83
sM1, sM2, sM3, sDiag = 84, 86, 88, 90
sEX0, sEX2, sW0 = 92, 94, 96
sHM = 98
sKC0, sXo0, sXo1, sXo2, sXl, sXl2, sWl, sWs = 44, 45, 46, 47, 48, 49, 50, 51
sXCC = 3
sW12 = 60
sFLA = 61

vL, vJ, vQ, vL16 = 1, 2, 3, 4
vOld, vF, vFo = 5, 6, 7
vT0, vT1, vT2, vT3 = 8, 9, 10, 11
vSTAMP = 15
vDs = 16
vSt = 17
ones = 28

SLOT = 34816
STG = 104448
MISC = 153600

LOG2E = 1.4426950408889634
MF = "v_mfma_f32_16x16x32_bf16"
MF16 = "v_mfma_f32_16x16x16_bf16"
SC = " sc1"
LSC = " sc1" if opt("ldsc", 0) else ""
WSS = f"s[{SWS}:{SWS+3}]"


def f32hex(x):
    return "0x%08x" % struct.unpack("<I", struct.pack("<f", x))[0]


STAMPN = [0]
STAMPNAMES = []
def stamp(A, name=""):
    if not INSTR:
        return
    i = STAMPN[0]
    STAMPN[0] += 1
    STAMPNAMES.append(name)
    assert i < 60
    A(f"s_memtime s[100:101]\ns_waitcnt lgkmcnt(0)\nv_writelane_b32 v{vSTAMP}, s100, {i}")


def interleave(main, fill, start=0, every=1):
    out = []
    fi = 0
    for i, m in enumerate(main):
        out.append(m)
        if i >= start and (i - start) % every == 0 and fi < len(fill):
            out.append(fill[fi])
            fi += 1
    out.extend(fill[fi:])
    return out


def emit(A, items):
    for it in items:
        if callable(it):
            it()
        else:
            A(it[0], tag=it[1])


def B2reg(st, ct):
    return ("a", 192 + (st * 4 + ct) * 4)
def B4reg(st, ct):
    return ("a", 192 + (st * 4 + ct) * 4) if st < 4 else ("v", 144 + ((st - 4) * 4 + ct) * 4)
def B3reg(ks, u):
    return ("a", (ks * 3 + u) * 4)


def unpack_pk(t):
    import re
    mn, rest = t.split(None, 1)
    toks = rest.split()
    ops = [x.strip(",") for x in toks if x.startswith("v[")]
    mods = {x.split(":")[0]: eval(x.split(":", 1)[1]) for x in toks if x.startswith(("op_sel", "neg_"))}
    n = len(ops) - 1
    base = [int(re.match(r"v\[(\d+):", o).group(1)) for o in ops]
    sel_lo = mods.get("op_sel", [0] * n)
    sel_hi = mods.get("op_sel_hi", [1] * n)
    neg_lo = mods.get("neg_lo", [0] * n)
    neg_hi = mods.get("neg_hi", [0] * n)
    op = {"v_pk_add_f32": "v_add_f32", "v_pk_mul_f32": "v_mul_f32", "v_pk_fma_f32": "v_fma_f32"}[mn]
    out = []
    for half, sel, neg in ((0, sel_lo, neg_lo), (1, sel_hi, neg_hi)):
        srcs = [("-" if neg[i] else "") + f"v{base[i+1] + sel[i]}" for i in range(n)]
        out.append(f"{op} v{base[0]+half}, " + ", ".join(srcs))
    return out


class BQ:
    def __init__(self):
        q = []
        for st in range(4):
            for ct in range(4):
                q.append((f"s_add_u32 s{sBA}, s{sB2b}, {st*4096}\nbuffer_load_dwordx4 {r(B2reg(st,ct),0,4)}, v{vL16}, {WSS}, s{sBA} offen offset:{ct*1024}{LSC}", f"b2_{st}"))
        for n in range(48):
            ks, u = divmod(n, 3)
            q.append((f"s_add_u32 s{sBA}, s{sB3b}, {(n//4)*4096}\nbuffer_load_dwordx4 {r(B3reg(ks,u),0,4)}, v{vL16}, {WSS}, s{sBA} offen offset:{(n%4)*1024}{LSC}", f"b3_{ks}"))
        for st in list(range(4, 11)) + list(range(4)):
            for ct in range(4):
                base = f"s_mov_b32 s{sBA}, s{sB4z}" if st == 0 else f"s_add_u32 s{sBA}, s{sB4b}, {st*4096}"
                q.append((f"{base}\nbuffer_load_dwordx4 {r(B4reg(st,ct),0,4)}, v{vL16}, {WSS}, s{sBA} offen offset:{ct*1024}{LSC}", f"b4_{st}"))
        self.q = q
        self.pos = 0
        self.limit = 64

    def take(self, n):
        e = min(self.pos + n, self.limit, len(self.q))
        out = self.q[self.pos:e]
        self.pos = max(self.pos, e)
        return out

    def upto(self, idx):
        return self.take(max(0, idx - self.pos))


LBL = [0]
def newlbl():
    LBL[0] += 1
    return LBL[0]


def wait_flags(A, step, mask):
    n = newlbl()
    A.fence()
    A(f"s_mov_b32 s{sCNT}, 0")
    A.raw(f"L_wait{n}:")
    A(f"""
    buffer_load_dword v{vF}, v{vFo}, {WSS}, s{sFLG} offen sc1
    s_waitcnt vmcnt(0)
    v_sub_u32 v{vF}, v{vF}, v{vOld}
    v_cmp_gt_u32 vcc, {step}, v{vF}
    s_and_b64 vcc, vcc, {mask}
    s_cbranch_scc0 L_go{n}
    s_add_u32 s{sCNT}, s{sCNT}, 1
    s_cmp_lt_u32 s{sCNT}, 0x40000
    s_cbranch_scc1 L_wait{n}
    """)
    A.raw(f"L_go{n}:")
    A.fence()


def hstores(A, lines, tag):
    if not opt("fast", 1):
        for l in lines:
            A(l + SC, tag=tag) if l.startswith("buffer_") else A(l)
        return
    n = newlbl()
    A(f"s_cmp_eq_u32 s{sFAST}, 1\ns_cbranch_scc1 L_hf{n}")
    for l in lines:
        A(l + SC, tag=tag) if l.startswith("buffer_") else A(l)
    A(f"s_branch L_he{n}")
    A.raw(f"L_hf{n}:")
    flav = {0: "", 1: " nt", 2: " sc0", 3: " sc1", 4: " sc0 sc1", 5: " sc0 nt", 6: " sc1 nt"}[opt("stflav", 0) if tag is not None else 0]
    for l in lines:
        A.raw("    " + l + (flav if l.startswith("buffer_") else ""))
    A.raw(f"L_he{n}:")
    A.fence()


def signal(A, step, tags):
    A.wait_vm(tags)
    A(f"""
    s_add_u32 s{sA}, s{sOWN}, {step}
    v_mov_b32 v{vT0}, s{sA}
    v_mov_b32 v{vT1}, 0
    s_mov_b64 exec, 1
    """)
    hstores(A, [f"buffer_store_dword v{vT0}, v{vT1}, {WSS}, s{sFLA} offen"], None)
    A("s_mov_b64 exec, -1")


def arrival_check(A, lbl_ok):
    A(f"""
    v_subrev_u32 v{vT0}, 0x01010101, v{vF}
    v_not_b32 v{vT1}, v{vF}
    v_and_b32 v{vT0}, v{vT0}, v{vT1}
    v_and_b32 v{vT0}, 0x80808080, v{vT0}
    v_cmp_ne_u32 vcc, 0, v{vT0}
    s_and_b64 vcc, vcc, -1
    s_cbranch_scc0 {lbl_ok}
    """)


def wait_arrival(A):
    n = newlbl()
    A.wait_vm("arr")
    saved = list(A.vm)
    arrival_check(A, f"L_go{n}")
    A(f"s_mov_b32 s{sCNT}, 0")
    A.raw(f"L_wait{n}:")
    A(f"""
    buffer_load_dword v{vF}, v{vFo}, s[{SDBG}:{SDBG+3}], 0 offen sc1
    s_waitcnt vmcnt(0)
    """)
    arrival_check(A, f"L_go{n}")
    A(f"""
    s_add_u32 s{sCNT}, s{sCNT}, 1
    s_cmp_lt_u32 s{sCNT}, 0x40000
    s_cbranch_scc1 L_wait{n}
    """)
    A.raw(f"L_go{n}:")
    A.vm = saved
    A.fence()
    A(f"""
    s_mul_i32 s{sA}, s{sXCC}, 0x01010101
    v_cmp_ne_u32 vcc, s{sA}, v{vF}
    s_lshl_b32 s{sA}, s{sG}, 2
    s_lshr_b64 vcc, vcc, s{sA}
    s_and_b32 s{sA}, vcc_lo, 15
    s_cmp_eq_u32 s{sA}, 0
    s_cselect_b32 s{sFAST}, 1, 0
    """)


def prologue(A, label):
    A.raw(".p2align 8\n.globl %s\n.type %s,@function\n%s:" % (label, label, label))
    if INSTR:
        A("s_memrealtime s[100:101]\ns_waitcnt lgkmcnt(0)\nv_writelane_b32 v15, s100, 62")
        stamp(A, "start")
    A(f"""
    s_cmp_ge_u32 s2, 256
    s_cbranch_scc1 L_done
    s_load_dwordx16 s[44:59], s[0:1], 0
    s_load_dwordx4 s[60:63], s[0:1], 64
    v_and_b32 v{vL}, 63, v0
    v_lshrrev_b32 v{vT0}, 6, v0
    s_lshr_b32 s{sIDX}, s2, 3
    s_and_b32 s{sG}, s2, 7
    s_lshl_b32 s{sG}, s{sG}, 1
    v_readfirstlane_b32 s{sW}, v{vT0}
    s_lshr_b32 s{sA}, s{sIDX}, 4
    s_add_u32 s{sG}, s{sG}, s{sA}
    s_and_b32 s{sJ}, s{sIDX}, 15
    s_lshr_b32 s{sHB}, s{sJ}, 3
    s_and_b32 s{sCB}, s{sJ}, 7
    s_lshl_b32 s{sRB}, s{sG}, 1
    s_add_u32 s{sRB}, s{sRB}, s{sHB}
    s_lshl_b32 s{sFLG}, s{sG}, 8
    v_and_b32 v{vJ}, 15, v{vL}
    v_lshrrev_b32 v{vQ}, 4, v{vL}
    v_lshlrev_b32 v{vL16}, 4, v{vL}
    v_lshlrev_b32 v{vFo}, 2, v{vL}
    v_lshrrev_b32 v{vT0}, 3, v{vL}
    v_and_b32 v{vT1}, 7, v{vL}
    v_and_b32 v{vT2}, 6, v{vT0}
    v_xor_b32 v{vT2}, v{vT1}, v{vT2}
    v_lshlrev_b32 v{vT2}, 4, v{vT2}
    v_lshl_add_u32 v{vDs}, v{vT0}, 10, v{vT2}
    v_mov_b32 v{ones}, 0x3f803f80
    v_mov_b32 v{ones+1}, 0x3f803f80
    v_mov_b32 v{ones+2}, 0x3f803f80
    v_mov_b32 v{ones+3}, 0x3f803f80
    v_lshlrev_b32 v{vSt}, 6, v{vJ}
    v_lshl_add_u32 v{vSt}, v{vQ}, 4, v{vSt}
    s_getreg_b32 s{sXCC}, hwreg(HW_REG_XCC_ID)
    s_and_b32 s{sXCC}, s{sXCC}, 15
    s_add_u32 s{sXCC}, s{sXCC}, 1
    s_mov_b32 s{sFAST}, 0
    """)


SRDTAB = {
    "x": (SX, 44, 2048 * 512 * 2), "wq": (SWQ, 46, 512 * 1536 * 2), "wo": (SWO, 48, 512 * 512 * 2),
    "wg": (SWG, 52, 512 * 1376 * 2), "wu": (SWU, 54, 512 * 1376 * 2), "wd": (SWD, 56, 1376 * 512 * 2),
    "out": (SOUT, 58, 2048 * 512 * 2), "ws": (SWS, 62, WS_SIZE), "dbg": (SDBG, 60, 256),
}


def build_srds(A, names):
    for k in names:
        d, p, n = SRDTAB[k]
        A(f"""
        s_mov_b32 s{d}, s{p}
        s_and_b32 s{d+1}, s{p+1}, 0xffff
        s_mov_b32 s{d+2}, {n}
        s_mov_b32 s{d+3}, 0x20000
        """)


def p1(A, bq):
    ST = MISC
    vWe, vWo_, vA0, vA1, vWt = 32, 33, 34, 35, 36
    vA0b, vA1b, vWtb = 37, 38, 39
    vSa, vSc, vSl = 40, 41, 42
    accQ, accK, accV = 48, 68, 88
    Af = [108, 128]
    Wf = [148, 160]
    biasP, biasC, biasF, selLo, selHi = 196, 200, 204, 208, 209
    WO = 10240
    vD3 = 172
    vTr3 = 175
    vTrS = 178
    vXr = 179
    XR = 180
    RT = 212
    CSP = 232
    SSR = 188
    A(f"""
    v_lshrrev_b32 v{vT0}, 3, v{vL}
    v_and_b32 v{vT1}, 7, v{vL}
    v_and_b32 v{vT2}, 2, v{vT0}
    v_xor_b32 v{vT2}, v{vT1}, v{vT2}
    v_lshlrev_b32 v{vT2}, 4, v{vT2}
    v_mul_u32_u24 v{vWe}, 3072, v{vT0}
    v_add_u32 v{vWe}, v{vWe}, v{vT2}
    v_xor_b32 v{vWo_}, 64, v{vWe}
    v_add_u32 v{vWo_}, 24576, v{vWo_}
    s_and_b32 s{sA}, s{sW}, 1
    s_lshl_b32 s{sA}, s{sA}, 5
    """)
    for n in range(3):
        A(f"""
        v_add_u32 v{vT0}, {64*n}, v{vL}
        v_mul_u32_u24 v{vT1}, 43691, v{vT0}
        v_lshrrev_b32 v{vT1}, 19, v{vT1}
        v_mul_u32_u24 v{vT2}, 12, v{vT1}
        v_sub_u32 v{vT0}, v{vT0}, v{vT2}
        v_bfe_u32 v{vT2}, v{vT1}, 2, 1
        v_xor_b32 v{vT0}, v{vT0}, v{vT2}
        v_mul_u32_u24 v{vT1}, 2752, v{vT1}
        v_lshl_add_u32 v{vT0}, v{vT0}, 4, v{vT1}
        v_xor_b32 v{vT0}, s{sA}, v{vT0}
        v_subrev_u32 v{vD3+n}, {1024*n}, v{vT0}
        """)
    A(f"v_lshlrev_b32 v{vXr}, 5, v{vL}")
    A("s_waitcnt lgkmcnt(0)")
    build_srds(A, ["x", "wq", "ws", "wo", "wg", "wu", "wd", "out", "dbg"])
    stamp(A, "srds built")
    A(f"buffer_load_dword v{vOld}, v{vFo}, {WSS}, s{sFLG} offen sc1", tag="old")
    A(f"""
    s_and_b32 s{sA}, s{sW}, 1
    s_cmp_eq_u32 s{sA}, 0
    s_cselect_b32 s{SB3}, s{SWG}, s{SWU}
    s_cselect_b32 s{SB3+1}, s{SWG+1}, s{SWU+1}
    s_mov_b32 s{SB3+2}, {512*1376*2}
    s_mov_b32 s{SB3+3}, 0x20000
    s_lshr_b32 s{sA}, s{sW}, 1
    s_lshl_b32 s{sB}, s{sG}, 1
    s_add_u32 s{sA}, s{sA}, s{sB}
    s_mul_i32 s{sA}, s{sA}, {16*2752}
    s_mul_i32 s{sB}, s{sJ}, 192
    s_add_u32 s{sA}, s{sA}, s{sB}
    s_cmp_eq_u32 s{sJ}, 15
    s_cselect_b32 s{sA}, 0x7f000000, s{sA}
    s_mul_i32 s{sB}, s{sW}, 3072
    s_add_u32 m0, s{sB}, {STG}
    """)
    for n in range(3):
        A(f"buffer_load_dwordx4 v{vD3+n}, s[{SB3}:{SB3+3}], s{sA} offen offset:{n*1024} lds", tag="pre")
    A(f"""
    s_cmp_lt_u32 s2, 64
    s_cselect_b32 s52, s{SWO}, s{SWD}
    s_cselect_b32 s53, s{SWO+1}, s{SWD+1}
    s_cselect_b32 s54, s{SWO+2}, s{SWD+2}
    s_mov_b32 s55, 0x20000
    s_cselect_b32 s{sA}, 0, 128
    s_cselect_b32 s58, 16, 48
    s_mov_b32 s57, {WS_R4}
    s_cselect_b32 s57, {WS_R2}, s57
    s_lshl_b32 s56, s2, 1
    s_sub_u32 s56, s56, s{sA}
    s_lshr_b32 s{sA}, s56, 3
    s_and_b32 s{sB}, s56, 7
    s_mul_i32 s{sC}, s{sB}, s58
    s_add_u32 s{sC}, s{sC}, s{sA}
    s_lshl_b32 s{sC}, s{sC}, 12
    s_add_u32 s57, s57, s{sC}
    s_lshl_b32 s{sC}, s{sW}, 10
    s_add_u32 s57, s57, s{sC}
    s_lshl_b32 s58, s58, 12
    s_lshl_b32 s{sA}, s{sA}, 15
    s_lshl_b32 s{sB}, s{sB}, 7
    s_add_u32 s{sA}, s{sA}, s{sB}
    s_lshl_b32 s{sB}, s{sW}, 13
    s_add_u32 s{sA}, s{sA}, s{sB}
    s_add_u32 m0, s{sC}, {STG + 12288}
    """)
    A(f"buffer_load_dwordx4 v{vDs}, s[52:55], s{sA} offen lds", tag="pre")
    A(f"""
    s_add_u32 m0, s{sC}, {STG + 12288 + 4096}
    s_add_u32 s{sA}, s{sA}, 128
    """)
    A(f"buffer_load_dwordx4 v{vDs}, s[52:55], s{sA} offen lds", tag="pre")
    A(f"""
    s_lshl_b32 s{sA}, s2, 13
    s_lshl_b32 s{sB}, s{sW}, 11
    s_add_u32 s{sA}, s{sA}, s{sB}
    """)
    A(f"buffer_load_dwordx4 v[{XR}:{XR+3}], v{vXr}, s[{SX}:{SX+3}], s{sA} offen", tag="pre")
    A(f"buffer_load_dwordx4 v[{XR+4}:{XR+7}], v{vXr}, s[{SX}:{SX+3}], s{sA} offen offset:16", tag="pre")
    xrot = f"s_and_b32 s{sB}, s2, 7" if opt("xrot", 1) else f"s_mov_b32 s{sB}, 0"
    A(f"""
    s_lshr_b32 s{sA}, s{sIDX}, 3
    s_add_u32 s{sA}, s{sA}, s{sCB}
    s_and_b32 s{sA}, s{sA}, 1
    s_lshl_b32 s{sA}, s{sA}, 2
    {xrot}
    s_add_u32 s{sKC0}, s{sA}, s{sB}
    s_lshl_b32 s{sA}, s{sRB}, 16
    s_sub_u32 s{sA}, s{sA}, 16384
    s_lshl_b32 s{sB}, s{sW}, 14
    s_add_u32 s{sXo0}, s{sA}, s{sB}
    s_add_u32 s{sXo1}, s{sXo0}, 8192
    s_max_i32 s{sXo0}, s{sXo0}, 0
    s_max_i32 s{sXo1}, s{sXo1}, 0
    s_lshr_b32 s{sB}, s{sW}, 1
    s_lshl_b32 s{sC}, s{sB}, 13
    s_add_u32 s{sXo2}, s{sA}, s{sC}
    s_add_u32 s{sXo2}, s{sXo2}, 65536
    s_lshl_b32 s{sXl}, s{sW}, 11
    s_lshl_b32 s{sXl2}, s{sB}, 10
    s_add_u32 s{sXl2}, s{sXl2}, 8192
    s_mul_i32 s{sWl}, s{sW}, 6144
    s_add_u32 s{sWl}, s{sWl}, {WO}
    s_mul_i32 s{sWs}, s{sW}, 49152
    s_lshl_b32 s{sB}, s{sCB}, 7
    s_add_u32 s{sWs}, s{sWs}, s{sB}
    s_cmp_eq_u32 s{sW}, 0
    s_cselect_b32 s{sEX0}, 0xffffff00, -1
    s_mov_b32 s{sEX0+1}, -1
    s_and_b32 s{sA}, s{sW}, 1
    s_cmp_eq_u32 s{sA}, 0
    s_cselect_b32 s{sEX2}, -1, 0
    s_cselect_b32 s{sEX2+1}, 0, -1
    """)

    def dma(i):
        slot = i % 3
        it = []
        tag = f"c{i}"
        it.append((f"""
        s_add_u32 s{sA}, s{sKC0}, {i}
        s_and_b32 s{sA}, s{sA}, 7
        s_mul_i32 s{sC}, s{sA}, {64*3072}
        s_add_u32 s{sC}, s{sC}, s{sWs}
        s_lshl_b32 s{sA}, s{sA}, 7
        s_add_u32 m0, s{sWl}, {slot*SLOT}
        buffer_load_dwordx4 v{vWe}, s[{SWQ}:{SWQ+3}], s{sC} offen lds""", tag))
        for sec in (1, 2):
            it.append((f"buffer_load_dwordx4 v{vWe}, s[{SWQ}:{SWQ+3}], s{sC} offen offset:{sec*1024} lds", tag))
        for sec in range(3):
            pre = f"s_add_u32 m0, s{sWl}, {slot*SLOT+3072}\n" if sec == 0 else ""
            it.append((pre + f"buffer_load_dwordx4 v{vWo_}, s[{SWQ}:{SWQ+3}], s{sC} offen offset:{sec*1024} lds", tag))
        it.append((f"""
        s_mov_b64 exec, s[{sEX0}:{sEX0+1}]
        s_add_u32 m0, s{sXl}, {slot*SLOT}
        s_add_u32 s{sB}, s{sXo0}, s{sA}
        buffer_load_dwordx4 v{vDs}, s[{SX}:{SX+3}], s{sB} offen lds
        s_mov_b64 exec, -1""", tag))
        it.append((f"""
        s_add_u32 m0, s{sXl}, {slot*SLOT+1024}
        s_add_u32 s{sB}, s{sXo1}, s{sA}
        buffer_load_dwordx4 v{vDs}, s[{SX}:{SX+3}], s{sB} offen lds""", tag))
        it.append((f"""
        s_mov_b64 exec, s[{sEX2}:{sEX2+1}]
        s_add_u32 m0, s{sXl2}, {slot*SLOT}
        s_add_u32 s{sB}, s{sXo2}, s{sA}
        buffer_load_dwordx4 v{vDs}, s[{SX}:{SX+3}], s{sB} offen lds
        s_mov_b64 exec, -1""", tag))
        return it

    emit(A, dma(0))
    if opt("touch1", 0):
        A(f"""
        s_mul_i32 s{sA}, s2, {48*128}
        s_mul_i32 s{sB}, s{sW}, {12*128}
        s_add_u32 s{sA}, s{sA}, s{sB}
        v_lshlrev_b32 v{vT3}, 7, v{vL}
        s_mov_b64 exec, 0xfff
        buffer_load_dword v{vF}, v{vT3}, s[{SWQ}:{SWQ+3}], s{sA} offen
        s_mov_b64 exec, -1
        """)
    stamp(A, "dma0 issued")
    A(f"""
    v_lshrrev_b32 v{vT0}, 3, v{vJ}
    v_and_b32 v{vT1}, 7, v{vJ}
    v_lshlrev_b32 v{vT1}, 7, v{vT1}
    v_lshl_add_u32 v{vT0}, v{vT0}, 10, v{vT1}
    v_and_b32 v{vT1}, 6, v{vJ}
    v_xor_b32 v{vT1}, v{vQ}, v{vT1}
    v_lshl_add_u32 v{vA0}, v{vT1}, 4, v{vT0}
    v_xor_b32 v{vA1}, 64, v{vA0}
    v_bfe_u32 v{vT0}, v{vL}, 2, 2
    v_bfe_u32 v{vT1}, v{vL}, 1, 1
    s_lshl_b32 s{sA}, s{sW}, 1
    v_add_u32 v{vT1}, s{sA}, v{vT1}
    v_and_b32 v{vT2}, 1, v{vQ}
    v_lshlrev_b32 v{vT2}, 2, v{vT2}
    v_xor_b32 v{vT1}, v{vT1}, v{vT2}
    v_and_b32 v{vT2}, 2, v{vT0}
    v_xor_b32 v{vT1}, v{vT1}, v{vT2}
    v_lshlrev_b32 v{vT1}, 4, v{vT1}
    v_lshl_add_u32 v{vT1}, v{vT0}, 7, v{vT1}
    v_and_b32 v{vT2}, 1, v{vL}
    v_lshl_add_u32 v{vT1}, v{vT2}, 3, v{vT1}
    v_mul_u32_u24 v{vT2}, 3072, v{vQ}
    v_add_u32 v{vT1}, v{vT1}, v{vT2}
    v_add_u32 v{vWt}, {WO}, v{vT1}
    v_add_u32 v{vA0b}, {2*SLOT}, v{vA0}
    v_add_u32 v{vA1b}, {2*SLOT}, v{vA1}
    v_add_u32 v{vWtb}, {2*SLOT}, v{vWt}
    v_lshrrev_b32 v{vT0}, 3, v{vL}
    v_mul_u32_u24 v{vT0}, {SLOT}, v{vT0}
    v_and_b32 v{vT1}, 7, v{vL}
    v_lshl_add_u32 v{vT0}, v{vT1}, 4, v{vT0}
    s_mov_b64 exec, 0xffffff
    ds_write_b128 v{vT0}, v[{ones}:{ones+3}]
    s_mov_b64 exec, -1
    """)
    A(f"""
    v_bfe_u32 v{vT0}, v{vL}, 2, 3
    v_and_b32 v{vT1}, 6, v{vT0}
    v_bfe_u32 v{vT2}, v{vL}, 1, 1
    v_or_b32 v{vT1}, v{vT1}, v{vT2}
    v_lshlrev_b32 v{vT1}, 4, v{vT1}
    v_lshl_add_u32 v{vT1}, v{vT0}, 7, v{vT1}
    v_and_b32 v{vT2}, 1, v{vL}
    v_lshl_add_u32 v{vT1}, v{vT2}, 3, v{vT1}
    v_lshrrev_b32 v{vT2}, 5, v{vL}
    v_lshl_add_u32 v{vT1}, v{vT2}, 10, v{vT1}
    s_lshl_b32 s{sA}, s{sW}, 5
    v_xor_b32 v{vT1}, s{sA}, v{vT1}
    v_add_u32 v{vTrS}, {STG+12288}, v{vT1}
    v_lshrrev_b32 v{vT0}, 2, v{vL}
    v_mul_u32_u24 v{vT0}, 192, v{vT0}
    v_bfe_u32 v{vT1}, v{vL}, 1, 1
    v_mul_u32_u24 v{vT2}, 3072, v{vT1}
    v_add_u32 v{vT0}, v{vT0}, v{vT2}
    v_add_u32 v{vT0}, {STG}, v{vT0}
    v_and_b32 v{vT2}, 1, v{vQ}
    v_lshl_add_u32 v{vT1}, v{vT1}, 1, v{vT2}
    v_and_b32 v{vT2}, 1, v{vL}
    s_lshr_b32 s{sA}, s{sW}, 1
    s_and_b32 s{sB}, s{sW}, 1
    s_lshl_b32 s{sC}, s{sA}, 2
    s_add_u32 s{sC}, s{sC}, s{sB}
    v_xor_b32 v{vT3}, s{sC}, v{vT1}
    v_lshl_add_u32 v{vT3}, v{vT3}, 4, v{vT0}
    v_lshl_add_u32 v{vTr3}, v{vT2}, 3, v{vT3}
    s_add_u32 s{sC}, s{sC}, 2
    v_xor_b32 v{vT3}, s{sC}, v{vT1}
    v_lshl_add_u32 v{vT3}, v{vT3}, 4, v{vT0}
    v_lshl_add_u32 v{vTr3+1}, v{vT2}, 3, v{vT3}
    s_add_u32 s{sC}, s{sA}, 8
    v_lshl_add_u32 v{vT3}, v{vT2}, 1, s{sC}
    v_xor_b32 v{vT3}, v{vT3}, v{vT1}
    v_lshl_add_u32 v{vT3}, v{vT3}, 4, v{vT0}
    s_lshl_b32 s{sB}, s{sB}, 3
    v_add_u32 v{vTr3+2}, s{sB}, v{vT3}
    """)
    A(f"""
    s_lshl_b32 s{sW12}, s{sW}, 12
    s_mul_i32 s{sK4}, s{sW}, 11
    s_min_u32 s{sK4}, s{sK4}, 32
    s_lshl_b32 s{sA}, s{sJ}, 2
    s_add_u32 s{sA}, s{sA}, s{sW}
    s_mul_i32 s{sB3b}, s{sA}, 49152
    s_add_u32 s{sB3b}, s{sB3b}, {WS_R3}
    s_lshl_b32 s{sFLA}, s{sA}, 2
    s_add_u32 s{sFLA}, s{sFLA}, s{sFLG}
    s_lshl_b32 s{sB2b}, s{sCB}, 16
    s_lshl_b32 s{sA}, s{sW}, 14
    s_add_u32 s{sB2b}, s{sB2b}, s{sA}
    s_add_u32 s{sB2b}, s{sB2b}, {WS_R2}
    s_mul_i32 s{sA}, s{sCB}, 48
    s_add_u32 s{sB}, s{sA}, s{sK4}
    s_lshl_b32 s{sB4b}, s{sB}, 12
    s_add_u32 s{sB4b}, s{sB4b}, {WS_R4}
    s_add_u32 s{sA}, s{sA}, 43
    s_lshl_b32 s{sA}, s{sA}, 12
    s_add_u32 s{sA}, s{sA}, {WS_R4}
    s_cmp_eq_u32 s{sW}, 3
    s_cselect_b32 s{sB4z}, s{sA}, s{sB4b}
    v_and_b32 v{vT0}, 3, v{vJ}
    v_cmp_eq_u32 s[{sM1}:{sM1+1}], 1, v{vT0}
    v_cmp_eq_u32 s[{sM2}:{sM2+1}], 2, v{vT0}
    v_cmp_eq_u32 s[{sM3}:{sM3+1}], 3, v{vT0}
    v_lshrrev_b32 v{vT0}, 2, v{vJ}
    v_cmp_eq_u32 s[{sDiag}:{sDiag+1}], v{vT0}, v{vQ}
    s_cmp_eq_u32 s{sW}, 0
    s_cselect_b32 s{sW0}, 1, 0
    s_mov_b32 s{sW0+1}, 0
    s_cmp_eq_u32 s{sHB}, 0
    s_cselect_b32 s{sHM}, -1, 0
    s_cselect_b32 s{sHM+1}, 0, -1
    """)
    if opt("d1early", 0):
        emit(A, dma(1))
    A.wait_vm("pre")
    A("s_waitcnt lgkmcnt(0)\ns_barrier")
    stamp(A, "pre data landed")
    for u in range(3):
        for hf in range(2):
            A(f"ds_read_b64_tr_b16 v[{RT+4*u+2*hf}:{RT+4*u+2*hf+1}], v{vTr3+u} offset:{hf*6144}", tag=f"rt{u}")
    for n in range(2):
        for hf in range(2):
            A(f"ds_read_b64_tr_b16 v[{RT+12+4*n+2*hf}:{RT+12+4*n+2*hf+1}], v{vTrS} offset:{n*4096+hf*2048}", tag=f"rt{3+n}")
    S1, S2 = 188, 189
    A(f"v_mov_b32 v{S1}, 0\nv_mov_b32 v{S2}, 0")
    for i in range(8):
        A(f"v_dot2_f32_bf16 v{S1}, v{XR+i}, v{ones}, v{S1}")
        A(f"v_dot2_f32_bf16 v{S2}, v{XR+i}, v{XR+i}, v{S2}")
    A(f"""
    s_lshl_b32 s{sA}, s{sJ}, 2
    s_add_u32 s{sA}, s{sA}, s{sW}
    v_readlane_b32 s{sOWN}, v{vOld}, s{sA}
    s_mul_i32 s{sB}, s{sG}, 3072
    s_add_u32 s{sB}, s{sB}, s{sB3b}
    """)
    for u in range(3):
        A.wait_lg(f"rt{u}")
        A(f"buffer_store_dwordx4 v[{RT+4*u}:{RT+4*u+3}], v{vL16}, {WSS}, s{sB} offen offset:{u*1024} sc1", tag="prest")
        A(f"{MF} {v(CSP+4*u,4)}, {v(RT+4*u,4)}, {v(ones,4)}, 0")
    A.wait_lg("rt3")
    A(f"buffer_store_dwordx4 v[{RT+12}:{RT+15}], v{vL16}, {WSS}, s57 offen sc1", tag="prest")
    A(f"s_add_u32 s57, s57, s58")
    A.wait_lg("rt4")
    A(f"buffer_store_dwordx4 v[{RT+16}:{RT+19}], v{vL16}, {WSS}, s57 offen sc1", tag="prest")
    for mode in ("quad_perm:[1,0,3,2]", "quad_perm:[2,3,0,1]", "row_half_mirror", "row_mirror"):
        A(f"v_add_f32_dpp v{S1}, v{S1}, v{S1} {mode} row_mask:0xf bank_mask:0xf")
        A(f"v_add_f32_dpp v{S2}, v{S2}, v{S2} {mode} row_mask:0xf bank_mask:0xf")
    A(f"""
    v_mov_b32 v190, v{S1}
    v_mov_b32 v191, v{S2}
    s_mul_i32 s{sA}, s{sA}, 3072
    s_lshl_b32 s{sB}, s{sG}, 6
    s_add_u32 s{sA}, s{sA}, s{sB}
    s_add_u32 s{sA}, s{sA}, {WS_CS}
    v_permlane16_swap_b32 v{S1}, v190
    v_permlane16_swap_b32 v{S2}, v191
    v_add_f32 v{S1}, v{S1}, v190
    v_add_f32 v{S2}, v{S2}, v191
    v_mul_f32 v{S1}, 0x3b000000, v{S1}
    v_mul_f32 v{S2}, 0x3b000000, v{S2}
    v_fma_f32 v{S2}, -v{S1}, v{S1}, v{S2}
    v_max_f32 v{S2}, 0, v{S2}
    v_add_f32 v{S2}, {f32hex(1e-5)}, v{S2}
    v_rsq_f32 v{S2}, v{S2}
    s_mov_b32 exec_lo, 0x00010001
    s_mov_b32 exec_hi, 0x00010001
    """)
    for u in range(3):
        A(f"buffer_store_dwordx4 v[{CSP+4*u}:{CSP+4*u+3}], v{vSt}, {WSS}, s{sA} offen offset:{u*1024} sc1", tag="prest")
    A(f"""
    s_mov_b64 exec, -1
    v_lshrrev_b32 v{vT0}, 5, v{vL}
    v_lshlrev_b32 v{vT0}, 2, v{vT0}
    s_lshl_b32 s{sA}, s2, 5
    s_lshl_b32 s{sB}, s{sW}, 3
    s_add_u32 s{sA}, s{sA}, s{sB}
    s_add_u32 s{sB}, s{sA}, {WS_R1}
    s_add_u32 s{sA}, s{sA}, {WS_M1}
    s_mov_b32 exec_lo, 1
    s_mov_b32 exec_hi, 1
    """)
    A(f"buffer_store_dword v{S1}, v{vT0}, {WSS}, s{sA} offen sc1", tag="prest")
    A(f"buffer_store_dword v{S2}, v{vT0}, {WSS}, s{sB} offen sc1", tag="prest")
    A("s_mov_b64 exec, -1")
    stamp(A, "pre stores issued")
    if not opt("d1early", 0):
        emit(A, dma(1))
    stamp(A, "dma1 issued")
    NEG = f32hex(-1e30)
    A(f"""
    v_lshlrev_b32 v{vT0}, 2, v{vQ}
    v_sub_u32 v{vT0}, v{vT0}, v{vJ}
    v_mov_b32 v{vT3}, {NEG}
    s_cmp_eq_u32 s{sRB}, 0
    s_cselect_b64 s[58:59], -1, 0
    """)
    for r_ in range(4):
        A(f"""
        v_add_u32 v{vT1}, {r_}, v{vT0}
        v_and_b32 v{vT2}, 1, v{vT1}
        v_cmp_eq_u32 s[52:53], 0, v{vT2}
        v_cmp_le_i32 s[54:55], 2, v{vT1}
        v_cmp_ge_i32 s[56:57], 0, v{vT1}
        s_and_b64 s[54:55], s[54:55], s[52:53]
        s_and_b64 s[56:57], s[56:57], s[52:53]
        v_cndmask_b32 v{biasP+r_}, v{vT3}, 0, s[54:55]
        v_cndmask_b32 v{biasC+r_}, v{vT3}, 0, s[56:57]
        v_cndmask_b32 v{biasF+r_}, v{biasP+r_}, v{vT3}, s[58:59]
        """)
    A(f"""
    v_and_b32 v{vT1}, 1, v{vJ}
    v_cmp_eq_u32 vcc, 1, v{vT1}
    v_mov_b32 v{vT1}, 0x0c0c0100
    v_mov_b32 v{vT2}, 0x01000c0c
    v_cndmask_b32 v{selLo}, v{vT1}, v{vT2}, vcc
    v_mov_b32 v{vT1}, 0x0c0c0302
    v_mov_b32 v{vT2}, 0x03020c0c
    v_cndmask_b32 v{selHi}, v{vT1}, v{vT2}, vcc
    v_lshlrev_b32 v{vSa}, 2, v{vJ}
    v_add_u32 v{vSa}, {ST}, v{vSa}
    v_lshlrev_b32 v{vSc}, 4, v{vQ}
    v_add_u32 v{vSc}, {ST}, v{vSc}
    s_lshl_b32 s{sA}, s{sRB}, 6
    s_and_b32 s{sB}, s{sW}, 1
    s_lshl_b32 s{sB}, s{sB}, 6
    s_add_u32 s{sA}, s{sA}, s{sB}
    s_sub_u32 s{sA}, s{sA}, 16
    v_add_u32 v{vSl}, s{sA}, v{vL}
    v_max_i32 v{vSl}, 0, v{vSl}
    v_lshlrev_b32 v{vSl}, 2, v{vSl}
    """)

    def reads(i, sidx):
        slot = i % 3
        it = []
        if slot < 2:
            va, wt, so = (vA0, vA1)[sidx], vWt, slot * SLOT
        else:
            va, wt, so = (vA0b, vA1b)[sidx], vWtb, 0
        tag = f"r{i}_{sidx}"
        for sec in range(3):
            for hf in range(2):
                it.append((f"ds_read_b64_tr_b16 v[{Wf[sidx]+sec*4+hf*2}:{Wf[sidx]+sec*4+hf*2+1}], v{wt} offset:{so + sidx*12288 + sec*1024 + hf*512}", tag))
        for t in range(5):
            it.append((f"ds_read_b128 v[{Af[sidx]+4*t}:{Af[sidx]+4*t+3}], v{va} offset:{so + t*2048}", tag))
        return it

    def mfmas(i, sidx):
        first = (i == 0 and sidx == 0)
        it = []
        W = lambda sec: v(Wf[sidx] + 4 * sec, 4)
        X = lambda t: v(Af[sidx] + 4 * t, 4)
        def m(acc, a, b):
            c = "0" if first else v(acc, 4)
            it.append((f"{MF} {v(acc,4)}, {a}, {b}, {c}", None))
        for t in range(5):
            m(accQ + 4 * t, W(0), X(t))
            m(accK + 4 * t, W(1), X(t))
            m(accV + 4 * t, X(t), W(2))
        return it

    ARR_I = opt("arr_i", 1)
    POLL_I = opt("poll_i", 3)
    for i in range(8):
        A.wait_vm(f"c{i}")
        if i == ARR_I:
            A.wait_vm("prest")
        if i == POLL_I + 1:
            wait_arrival(A)
            stamp(A, "arrival ok")
        if i == 7:
            pass
        A("s_waitcnt lgkmcnt(0)\ns_barrier")
        stamp(A, f"p1 bar{i}")
        dm = dma(i + 2) if i + 2 <= 7 else []
        if i == ARR_I:
            A(f"""
            v_mov_b32 v{vT0}, s{sXCC}
            v_mov_b32 v{vT1}, 0
            s_lshl_b32 s{sA}, s{sG}, 4
            s_add_u32 s{sA}, s{sA}, s{sJ}
            s_mov_b64 exec, s[{sW0}:{sW0+1}]
            buffer_store_byte v{vT0}, v{vT1}, s[{SDBG}:{SDBG+3}], s{sA} offen sc1
            s_mov_b64 exec, -1
            """)
        extra = []
        if i == POLL_I:
            A(f"buffer_load_dword v{vF}, v{vFo}, s[{SDBG}:{SDBG+3}], 0 offen sc1", tag="arr")
        if i == POLL_I + 1:
            extra = [(f"""
            s_lshr_b32 s{sBA}, s{sW}, 1
            s_lshl_b32 s{sBA}, s{sBA}, 16
            s_add_u32 s{sBA}, s{sBA}, {WS_M1}
            s_lshl_b32 m0, s{sW}, 8
            s_add_u32 m0, m0, {ST}
            buffer_load_dword v{vSl}, {WSS}, s{sBA} offen{LSC} lds""", "st1")]
        if i > POLL_I:
            extra += bq.take(opt("wa", 8))
        if i == 0:
            emit(A, reads(i, 0) + dm)
            dm = []
        else:
            emit(A, interleave(mfmas(i - 1, 1), reads(i, 0) + dm[:4]))
            dm = dm[4:]
        A.wait_lg(f"r{i}_0")
        emit(A, interleave(mfmas(i, 0), reads(i, 1) + dm + extra))
    A.wait_lg("r7_1")
    emit(A, mfmas(7, 1))
    stamp(A, "p1 loop done")
    A.wait_vm("st1")
    A("s_barrier")
    L1 = 108
    L2M = 120
    L2R = 140
    csQ, csK, csV = 160, 164, 168
    for t in range(5):
        A(f"ds_read2_b32 v[{L1+2*t}:{L1+2*t+1}], v{vSa} offset0:{16*t} offset1:{128+16*t}", tag="st")
    for t in range(5):
        A(f"ds_read_b128 v[{L2M+4*t}:{L2M+4*t+3}], v{vSc} offset:{64*t}", tag="st")
        A(f"ds_read_b128 v[{L2R+4*t}:{L2R+4*t+3}], v{vSc} offset:{512+64*t}", tag="st")
    A(f"v_lshlrev_b32 v{vT0}, 2, v{vJ}")
    A(f"ds_bpermute_b32 v{csV}, v{vT0}, v{accV}", tag="st")
    for r_ in range(4):
        A(f"v_mov_b32_dpp v{csQ+r_}, v{accQ+r_} row_newbcast:0 row_mask:0xf bank_mask:0xf")
        A(f"v_mov_b32_dpp v{csK+r_}, v{accK+r_} row_newbcast:0 row_mask:0xf bank_mask:0xf")
    A.wait_lg("st")
    Kp, Qp, Vp = 210, 220, 230
    for t in range(5):
        for (acc, cs, P, scale) in ((accK, csK, Kp, True), (accQ, csQ, Qp, False)):
            if acc == accQ and t == 0:
                continue
            a = acc + 4 * t
            for h in range(2):
                A(f"v_pk_fma_f32 v[{a+2*h}:{a+2*h+1}], v[{cs+2*h}:{cs+2*h+1}], v[{L1+2*t}:{L1+2*t+1}], v[{a+2*h}:{a+2*h+1}] op_sel:[0,0,0] op_sel_hi:[1,0,1] neg_lo:[0,1,0] neg_hi:[0,1,0]")
            if scale:
                for h in range(2):
                    A(f"v_pk_mul_f32 v[{a+2*h}:{a+2*h+1}], v[{a+2*h}:{a+2*h+1}], v[{L1+2*t}:{L1+2*t+1}] op_sel:[0,1] op_sel_hi:[1,1]")
            for h in range(2):
                A(f"v_cvt_pk_bf16_f32 v{P+2*t+h}, v{a+2*h}, v{a+2*h+1}")
        a = accV + 4 * t
        for h in range(2):
            A(f"v_pk_fma_f32 v[{a+2*h}:{a+2*h+1}], v[{L2M+4*t+2*h}:{L2M+4*t+2*h+1}], v[{csV}:{csV+1}], v[{a+2*h}:{a+2*h+1}] op_sel:[0,0,0] op_sel_hi:[1,0,1] neg_lo:[1,0,0] neg_hi:[1,0,0]")
        for h in range(2):
            A(f"v_pk_mul_f32 v[{a+2*h}:{a+2*h+1}], v[{a+2*h}:{a+2*h+1}], v[{L2R+4*t+2*h}:{L2R+4*t+2*h+1}]")
        for h in range(2):
            A(f"v_cvt_pk_bf16_f32 v{Vp+2*t+h}, v{a+2*h}, v{a+2*h+1}")
    stamp(A, "p1 fold done")
    Sp = lambda t: 48 + 8 * (t - 1)
    Sc = lambda t: 52 + 8 * (t - 1)
    for t in range(1, 5):
        A(f"{MF16} {v(Sp(t),4)}, {v(Kp+2*(t-1),2)}, {v(Qp+2*t,2)}, {v(biasF if t==1 else biasP,4)}")
        A(f"{MF16} {v(Sc(t),4)}, {v(Kp+2*t,2)}, {v(Qp+2*t,2)}, {v(biasC,4)}")
    X = lambda t, i: 80 + 4 * (t - 1) + i
    MX = lambda t: 96 + (t - 1)
    MY = lambda t: 100 + (t - 1)
    CQ = lambda t: 104 + (t - 1)
    for t in range(1, 5):
        A(f"v_mul_f32 v{CQ(t)}, {f32hex(0.25*LOG2E)}, v{L1+2*t+1}")
    for t in range(1, 5):
        A(f"""
        v_max_f32 v{X(t,0)}, v{Sp(t)}, v{Sp(t)+1}
        v_max_f32 v{X(t,1)}, v{Sp(t)+2}, v{Sp(t)+3}
        v_max_f32 v{X(t,2)}, v{Sc(t)}, v{Sc(t)+1}
        v_max_f32 v{X(t,3)}, v{Sc(t)+2}, v{Sc(t)+3}
        v_max3_f32 v{MX(t)}, v{X(t,0)}, v{X(t,1)}, v{X(t,2)}
        v_max_f32 v{MX(t)}, v{MX(t)}, v{X(t,3)}
        v_mov_b32 v{MY(t)}, v{MX(t)}
        """)
    for t in range(1, 5):
        A(f"v_permlane16_swap_b32 v{MX(t)}, v{MY(t)}")
    for t in range(1, 5):
        A(f"v_max_f32 v{MX(t)}, v{MX(t)}, v{MY(t)}")
    for t in range(1, 5):
        A(f"v_mov_b32 v{MY(t)}, v{MX(t)}")
    for t in range(1, 5):
        A(f"v_permlane32_swap_b32 v{MX(t)}, v{MY(t)}")
    for t in range(1, 5):
        A(f"v_max_f32 v{MX(t)}, v{MX(t)}, v{MY(t)}")
    for t in range(1, 5):
        A(f"v_mul_f32 v{MX(t)}, v{MX(t)}, v{CQ(t)}")
    for t in range(1, 5):
        for i in range(4):
            A(f"v_fma_f32 v{X(t,i)}, v{X(t,i)}, v{CQ(t)}, -v{MX(t)}")
    for t in range(1, 5):
        for i in range(4):
            A(f"v_exp_f32 v{X(t,i)}, v{X(t,i)}")
    Pf = lambda t: 48 + 4 * (t - 1)
    for t in range(1, 5):
        A(f"""
        v_cvt_pk_bf16_f32 v{MX(t)}, v{X(t,0)}, v{X(t,1)}
        v_cvt_pk_bf16_f32 v{MY(t)}, v{X(t,2)}, v{X(t,3)}
        """)
    for t in range(1, 5):
        A(f"""
        v_perm_b32 v{Pf(t)}, v{MX(t)}, v{MX(t)}, v{selLo}
        v_perm_b32 v{Pf(t)+1}, v{MX(t)}, v{MX(t)}, v{selHi}
        v_perm_b32 v{Pf(t)+2}, v{MY(t)}, v{MY(t)}, v{selLo}
        v_perm_b32 v{Pf(t)+3}, v{MY(t)}, v{MY(t)}, v{selHi}
        """)
    Oa = lambda t: 64 + 4 * (t - 1)
    Su = lambda t: 80 + 4 * (t - 1)
    for t in range(1, 5):
        A(f"{MF} {v(Oa(t),4)}, {v(Vp+2*(t-1),4)}, {v(Pf(t),4)}, 0")
        A(f"{MF} {v(Su(t),4)}, {v(ones,4)}, {v(Pf(t),4)}, 0")
    A(f"""
    s_lshl_b32 s{sA}, s{sRB}, 16
    s_lshl_b32 s{sB}, s{sCB}, 11
    s_add_u32 s{sA}, s{sA}, s{sB}
    s_lshr_b32 s{sB}, s{sW}, 1
    s_lshl_b32 s{sB}, s{sB}, 10
    s_add_u32 s{sA}, s{sA}, s{sB}
    s_and_b32 s{sB}, s{sW}, 1
    s_lshl_b32 s{sB}, s{sB}, 3
    s_add_u32 s{sA}, s{sA}, s{sB}
    s_add_u32 s{sA}, s{sA}, {WS_O}
    """)
    for t in range(1, 5):
        A(f"v_rcp_f32 v{Su(t)}, v{Su(t)}")
    st_lines = []
    for t in range(1, 5):
        o = Oa(t)
        A(f"""
        v_pk_mul_f32 v[{o}:{o+1}], v[{o}:{o+1}], v[{Su(t)}:{Su(t)+1}] op_sel:[0,0] op_sel_hi:[1,0]
        v_pk_mul_f32 v[{o+2}:{o+3}], v[{o+2}:{o+3}], v[{Su(t)}:{Su(t)+1}] op_sel:[0,0] op_sel_hi:[1,0]
        v_cvt_pk_bf16_f32 v{o}, v{o}, v{o+1}
        v_cvt_pk_bf16_f32 v{o+1}, v{o+2}, v{o+3}
        """)
        st_lines += [f"s_add_u32 s{sB}, s{sA}, {(t-1)*16384}", f"buffer_store_dwordx2 v[{o}:{o+1}], v{vL16}, {WSS}, s{sB} offen"]
    hstores(A, st_lines, "ost")
    stamp(A, "p1 stores issued")
    signal(A, 1, "ost")
    stamp(A, "p1 signalled")


def ksplit(A, bq, which):
    P2 = which == 2
    nst = 4 if P2 else 11
    vRr, vXo = 27, 14
    RW = [12, 13, 11]
    acc = 32
    if P2:
        Afr = lambda t, st: v(96 + (t * nst + st) * 4, 4)
        Bf = B2reg
    else:
        Afr = lambda t, st: a_((t * nst + st) * 4, 4)
        Bf = B4reg
    RED = 0
    for t in range(1, 4):
        A(f"""
        s_add_u32 s{sA}, s{sW}, {t}
        s_and_b32 s{sA}, s{sA}, 3
        s_mul_i32 s{sA}, s{sA}, 12288
        s_add_u32 s{sA}, s{sA}, {RED + (t-1)*4096}
        v_add_u32 v{RW[t-1]}, s{sA}, v{vL16}
        """)
    A(f"""
    s_mul_i32 s{sA}, s{sW}, 12288
    s_add_u32 s{sA}, s{sA}, {RED}
    v_add_u32 v{vRr}, s{sA}, v{vL16}
    v_lshlrev_b32 v{vXo}, 10, v{vJ}
    v_lshl_add_u32 v{vXo}, v{vQ}, 3, v{vXo}
    """)

    def a_loads(t):
        base = WS_O if P2 else WS_HH
        pitch = 16 if P2 else HHK
        k0 = f"s_lshl_b32 s{sB}, s{sW}, 2" if P2 else f"s_mov_b32 s{sB}, s{sK4}"
        it = [(f"""
        s_add_u32 s{sA}, s{sW}, {t}
        s_and_b32 s{sA}, s{sA}, 3
        s_lshl_b32 s{sB}, s{sRB}, 2
        s_add_u32 s{sA}, s{sA}, s{sB}
        s_mul_i32 s{sA}, s{sA}, {pitch}
        {k0}
        s_add_u32 s{sA}, s{sA}, s{sB}
        s_lshl_b32 s{sA}, s{sA}, 10
        s_add_u32 s{sA}, s{sA}, {base}""", None)]
        for st in range(nst):
            if st % 4 == 0 and st > 0:
                it.append((f"s_add_u32 s{sA}, s{sA}, 4096", None))
            it.append((f"buffer_load_dwordx4 {Afr(t,st)}, v{vL16}, {WSS}, s{sA} offen offset:{(st%4)*1024}{LSC}", f"a{t}_{st}"))
        return it

    if P2:
        A(f"""
        s_lshl_b32 s{sA}, s{sRB}, 16
        s_lshl_b32 s{sB}, s{sW}, 14
        s_add_u32 s{sA}, s{sA}, s{sB}
        s_lshl_b32 s{sB}, s{sCB}, 7
        s_add_u32 s{sC}, s{sA}, s{sB}
        """)
        for ct in range(4):
            A(f"buffer_load_dwordx2 v[{160+2*ct}:{161+2*ct}], v{vXo}, s[{SX}:{SX+3}], s{sC} offen offset:{ct*32}", tag="res")
        resreg = lambda i: f"v{160+i}"
        emit(A, bq.upto(16) + bq.take(opt("wb", 8)))
        stamp(A, "p2 before wait")
        wait_flags(A, 1, f"s[{sHM}:{sHM+1}]")
        stamp(A, "p2 flags ok")
    else:
        A(f"""
        s_lshl_b32 s{sA}, s{sRB}, 16
        s_lshl_b32 s{sB}, s{sW}, 14
        s_add_u32 s{sA}, s{sA}, s{sB}
        s_lshl_b32 s{sB}, s{sCB}, 11
        s_add_u32 s{sA}, s{sA}, s{sB}
        s_add_u32 s{sA}, s{sA}, {WS_H}
        """)
        for h in range(2):
            A(f"buffer_load_dwordx4 a[{176+4*h}:{179+4*h}], v{vL16}, {WSS}, s{sA} offen offset:{h*1024}{LSC}", tag="res")
        emit(A, bq.take(1000))
        stamp(A, "p4 before wait")
        wait_flags(A, 3, "-1")
        stamp(A, "p4 flags ok")
    if (not P2) and opt("p4rep", 0):
        for rep in range(opt("p4rep", 0)):
            for t in range(4):
                emit(A, a_loads(t))
                stamp(A, f"p4 rep{rep} tile{t} issued")
            A("s_waitcnt vmcnt(0)")
            stamp(A, f"p4 rep{rep} landed")
    for t in range(4):
        emit(A, a_loads(t))
    if P2:
        emit(A, bq.take(opt("wc", 8)))
    for t in range(4):
        for st in range(nst):
            A.wait_vm(f"a{t}_{st}")
            for ct in range(4):
                d = v(acc + (t * 4 + ct) * 4, 4)
                A(f"{MF} {d}, {r(Bf(st,ct),0,4)}, {Afr(t,st)}, {'0' if st==0 else d}")
        if t >= 2:
            tt = t - 1
            for ct in range(4):
                A(f"ds_write_b128 v{RW[tt-1]}, {v(acc+(tt*4+ct)*4,4)} offset:{ct*1024}")
    for ct in range(4):
        A(f"ds_write_b128 v{RW[2]}, {v(acc+(3*4+ct)*4,4)} offset:{ct*1024}")
    stamp(A, f"p{which} mfma done")
    A("s_waitcnt lgkmcnt(0)\ns_barrier")
    T = 96
    for k in range(3):
        for ct in range(4):
            A(f"ds_read_b128 {v(T+(k*4+ct)*4,4)}, v{vRr} offset:{k*4096+ct*1024}", tag=f"rd{k}")
    U = 48
    if not P2:
        for i in range(8):
            A(f"v_accvgpr_read_b32 v{64+i}, a{176+i}")
        resreg = lambda i: f"v{64+i}"
    for ct in range(4):
        for h in range(2):
            A(f"v_lshlrev_b32 v{U+ct*4+2*h}, 16, {resreg(2*ct+h)}")
            A(f"v_and_b32 v{U+ct*4+2*h+1}, 0xffff0000, {resreg(2*ct+h)}")
    for ct in range(4):
        for h in range(2):
            a = acc + ct * 4 + 2 * h
            A(f"v_pk_add_f32 v[{a}:{a+1}], v[{a}:{a+1}], v[{U+ct*4+2*h}:{U+ct*4+2*h+1}]")
    for k in range(3):
        A.wait_lg(f"rd{k}")
        for ct in range(4):
            for h in range(2):
                a = acc + ct * 4 + 2 * h
                b = T + (k * 4 + ct) * 4 + 2 * h
                A(f"v_pk_add_f32 v[{a}:{a+1}], v[{a}:{a+1}], v[{b}:{b+1}]")
    PK = 72
    for ct in range(4):
        for h in range(2):
            a = acc + ct * 4 + 2 * h
            A(f"v_cvt_pk_bf16_f32 v{PK+2*ct+h}, v{a}, v{a+1}")
    A(f"""
    s_lshl_b32 s{sA}, s{sRB}, 16
    s_lshl_b32 s{sB}, s{sW}, 14
    s_add_u32 s{sA}, s{sA}, s{sB}
    """)
    if P2:
        G, S_ = 80, 84
        A(f"""
        s_lshl_b32 s{sB}, s{sCB}, 11
        s_add_u32 s{sC}, s{sA}, s{sB}
        s_add_u32 s{sC}, s{sC}, {WS_H}
        {MF} {v(G,4)}, {v(PK,4)}, {v(PK,4)}, 0
        {MF} {v(S_,4)}, {v(ones,4)}, {v(PK,4)}, 0
        {MF} {v(G,4)}, {v(PK+4,4)}, {v(PK+4,4)}, {v(G,4)}
        {MF} {v(S_,4)}, {v(ones,4)}, {v(PK+4,4)}, {v(S_,4)}
        """)
        hstores(A, [f"buffer_store_dwordx4 v[{PK}:{PK+3}], v{vL16}, {WSS}, s{sC} offen",
                    f"buffer_store_dwordx4 v[{PK+4}:{PK+7}], v{vL16}, {WSS}, s{sC} offen offset:1024"], "hst")
        A(f"""
        v_lshlrev_b32 v{vT0}, 6, v{vJ}
        s_lshl_b32 s{sA}, s{sRB}, 12
        s_lshl_b32 s{sB}, s{sW}, 10
        s_add_u32 s{sA}, s{sA}, s{sB}
        s_lshl_b32 s{sB}, s{sCB}, 3
        s_add_u32 s{sA}, s{sA}, s{sB}
        s_add_u32 s{sA}, s{sA}, {WS_ST}
        v_cndmask_b32 v{S_+1}, v{G}, v{G+1}, s[{sM1}:{sM1+1}]
        v_cndmask_b32 v{S_+1}, v{S_+1}, v{G+2}, s[{sM2}:{sM2+1}]
        v_cndmask_b32 v{S_+1}, v{S_+1}, v{G+3}, s[{sM3}:{sM3+1}]
        s_mov_b64 exec, s[{sDiag}:{sDiag+1}]
        """)
        hstores(A, [f"buffer_store_dwordx2 v[{S_}:{S_+1}], v{vT0}, {WSS}, s{sA} offen"], "hst")
        A("s_mov_b64 exec, -1")
        stamp(A, "p2 stores issued")
        signal(A, 2, "hst")
        stamp(A, "p2 signalled")
    else:
        A(f"""
        s_lshl_b32 s{sB}, s{sCB}, 7
        s_add_u32 s{sC}, s{sA}, s{sB}
        """)
        for ct in range(4):
            A(f"buffer_store_dwordx2 v[{PK+2*ct}:{PK+2*ct+1}], v{vXo}, s[{SOUT}:{SOUT+3}], s{sC} offen offset:{ct*32}")


def p3(A, bq):
    vH4, vH2, vAr = 13, 14, 27
    cs = 32
    accs = [44, 68]
    Af = 92
    stts = [116, 124]
    tmp = 132
    A3 = 0
    A(f"""
    v_lshrrev_b32 v{vT0}, 1, v{vQ}
    v_mul_u32_u24 v{vT0}, {4*HHK*1024}, v{vT0}
    v_lshl_add_u32 v{vT0}, v{vJ}, 4, v{vT0}
    v_and_b32 v{vT1}, 1, v{vQ}
    s_lshr_b32 s{sA}, s{sW}, 1
    s_lshl_b32 s{sA}, s{sA}, 10
    s_and_b32 s{sB}, s{sW}, 1
    s_lshl_b32 s{sB}, s{sB}, 9
    s_add_u32 s{sA}, s{sA}, s{sB}
    v_lshl_add_u32 v{vH4}, v{vT1}, 8, v{vT0}
    v_add_u32 v{vH4}, s{sA}, v{vH4}
    s_lshl_b32 s{sA}, s{sW}, 8
    s_add_u32 s{sA}, s{sA}, 2048
    v_lshl_add_u32 v{vH2}, v{vT1}, 3, v{vT0}
    v_add_u32 v{vH2}, s{sA}, v{vH2}
    s_lshl_b32 s{sA}, s{sJ}, 2
    s_add_u32 s{sA}, s{sA}, s{sW}
    s_mul_i32 s{sA}, s{sA}, 3072
    s_add_u32 s{sA}, s{sA}, {WS_CS}
    """)
    for u in range(3):
        A(f"buffer_load_dwordx4 {v(cs+4*u,4)}, v{vSt}, {WSS}, s{sA} offen offset:{u*1024}{LSC}", tag="cs")
    emit(A, bq.take(opt("wd", 12)))
    stamp(A, "p3 before wait")
    wait_flags(A, 2, "-1")
    stamp(A, "p3 flags ok")

    def a_dma(c):
        it = []
        for ti in range(2):
            pre = f"""
            s_lshl_b32 s{sC}, s{sG}, 17
            s_add_u32 s{sC}, s{sC}, s{sW12}
            s_add_u32 s{sC}, s{sC}, {WS_H + (c+4*ti)*16384}
            s_add_u32 m0, s{sW12}, {A3 + (c%3)*32768 + ti*16384}
            """
            for n in range(4):
                it.append(((pre if n == 0 else "") + f"""
                buffer_load_dwordx4 v{vL16}, {WSS}, s{sC} offen offset:{n*1024}{LSC} lds""", f"a{c}"))
        return it

    def st_loads(c):
        it = []
        for ti in range(2):
            it.append((f"""
            s_lshl_b32 s{sA}, s{sG}, 13
            s_add_u32 s{sA}, s{sA}, {WS_ST + (c+4*ti)*1024}
            buffer_load_dwordx4 {v(stts[c%2]+4*ti,4)}, v{vSt}, {WSS}, s{sA} offen{LSC}""", f"s{c}"))
        return it

    def epilogue(c):
        acc, stt = accs[c % 2], stts[c % 2]
        it = []
        def add(t):
            if c < 3 and opt("unpk", 1) and t.startswith("v_pk_"):
                for x in unpack_pk(t):
                    it.append((x, None))
            else:
                it.append((t, None))
        it.append(lambda: A.wait_vm(f"s{c}"))
        for ti in range(2):
            b = stt + 4 * ti
            add(f"v_pk_add_f32 v[{b}:{b+1}], v[{b}:{b+1}], v[{b+2}:{b+3}]")
        for sw in ("v_permlane16_swap_b32", "v_permlane32_swap_b32"):
            for ti in range(2):
                b = stt + 4 * ti
                add(f"v_mov_b32 v{b+2}, v{b}")
                add(f"v_mov_b32 v{b+3}, v{b+1}")
            for ti in range(2):
                b = stt + 4 * ti
                add(f"{sw} v{b}, v{b+2}")
                add(f"{sw} v{b+1}, v{b+3}")
            for ti in range(2):
                b = stt + 4 * ti
                add(f"v_pk_add_f32 v[{b}:{b+1}], v[{b}:{b+1}], v[{b+2}:{b+3}]")
        for op in ("v_mul_f32 v{b}, 0x3b000000, v{b}", "v_mul_f32 v{b1}, 0x3b000000, v{b1}", "v_fma_f32 v{b1}, -v{b}, v{b}, v{b1}",
                   "v_max_f32 v{b1}, 0, v{b1}", "v_add_f32 v{b1}, " + f32hex(1e-5) + ", v{b1}", "v_rcp_f32 v{b1}, v{b1}"):
            for ti in range(2):
                b = stt + 4 * ti
                add(op.format(b=b, b1=b + 1))
        add(f"v_cmp_gt_u32 vcc, 32, v{vL}")
        for u in range(3):
            for ti in range(2):
                a = acc + (ti * 3 + u) * 4
                b = stt + 4 * ti
                for h in range(2):
                    add(f"v_pk_fma_f32 v[{a+2*h}:{a+2*h+1}], v[{cs+4*u+2*h}:{cs+4*u+2*h+1}], v[{b}:{b+1}], v[{a+2*h}:{a+2*h+1}] op_sel:[0,0,0] op_sel_hi:[1,0,1] neg_lo:[0,1,0] neg_hi:[0,1,0]")
        add(f"v_cndmask_b32 v{tmp}, v{stt+5}, v{stt+1}, vcc")
        for u in range(3):
            for r_ in range(4):
                add(f"v_permlane32_swap_b32 v{acc+u*4+r_}, v{acc+(3+u)*4+r_}")
        PK = tmp + 2
        for u in range(3):
            g, up = acc + u * 4, acc + (3 + u) * 4
            for r_ in range(4):
                add(f"v_max_f32 v{g+r_}, 0, v{g+r_}")
            for h in range(2):
                add(f"v_pk_mul_f32 v[{g+2*h}:{g+2*h+1}], v[{g+2*h}:{g+2*h+1}], v[{up+2*h}:{up+2*h+1}]")
            for h in range(2):
                add(f"v_pk_mul_f32 v[{g+2*h}:{g+2*h+1}], v[{g+2*h}:{g+2*h+1}], v[{tmp}:{tmp+1}] op_sel:[0,0] op_sel_hi:[1,0]")
            for h in range(2):
                add(f"v_cvt_pk_bf16_f32 v{PK+2*u+h}, v{g+2*h}, v{g+2*h+1}")
        def st():
            A(f"""
            s_mul_i32 s{sA}, s{sG}, {8*HHK*1024}
            s_mul_i32 s{sB}, s{sJ}, 3072
            s_add_u32 s{sA}, s{sA}, s{sB}
            s_add_u32 s{sA}, s{sA}, {WS_HH + c*HHK*1024}
            """)
            hstores(A, [f"buffer_store_dwordx4 v[{PK}:{PK+3}], v{vH4}, {WSS}, s{sA} offen",
                        f"buffer_store_dwordx2 v[{PK+4}:{PK+5}], v{vH2}, {WSS}, s{sA} offen"], "hhst")
        it.append(st)
        return it

    for rep in range(opt("p3rep", 0)):
        emit(A, a_dma(0) + a_dma(1) + a_dma(2))
        A("s_waitcnt vmcnt(0)")
        stamp(A, f"p3 rep{rep} landed")
    emit(A, a_dma(0) + st_loads(0) + a_dma(1))
    emit(A, bq.upto(64))
    emit(A, a_dma(2))
    bq.limit = 1000
    for mode in ("quad_perm:[1,0,3,2]", "quad_perm:[2,3,0,1]", "row_half_mirror", "row_mirror"):
        for i in range(12):
            A(f"v_add_f32_dpp v{cs+i}, v{cs+i}, v{cs+i} {mode} row_mask:0xf bank_mask:0xf")
    for c in range(4):
        acc = accs[c % 2]
        A.wait_vm(f"a{c}")
        A("s_waitcnt lgkmcnt(0)\ns_barrier")
        stamp(A, f"p3 chunk{c} start")
        fillv = epilogue(c - 1) if c > 0 else []
        fillm = (a_dma(3) if c == 1 else []) + (st_loads(c) if c > 0 else []) + bq.take(opt("we", 12))
        slot = c % 3
        if slot == 2:
            A(f"v_add_u32 v{vAr}, 65536, v{vL16}")
            off = 0
        else:
            A(f"v_mov_b32 v{vAr}, v{vL16}")
            off = slot * 32768
        rd = lambda ks, ti: (f"ds_read_b128 {v(Af+((ks%3)*2+ti)*4,4)}, v{vAr} offset:{off + ti*16384 + ks*1024}", f"f{ks}")
        for ks in range(2):
            emit(A, [rd(ks, 0), rd(ks, 1)])
        n = 0
        for ks in range(16):
            if ks + 2 < 16:
                emit(A, [rd(ks + 2, 0), rd(ks + 2, 1)])
            A.wait_lg(f"f{ks}")
            A.wait_vm(f"b3_{ks}")
            for ti in range(2):
                for u in range(3):
                    d = v(acc + (ti * 3 + u) * 4, 4)
                    A(f"{MF} {d}, {r(B3reg(ks,u),0,4)}, {v(Af+((ks%3)*2+ti)*4,4)}, {'0' if ks==0 else d}")
                    n += 1
                    if n > 3:
                        for _ in range(2 if n % 3 != 0 else 1):
                            if fillv:
                                emit(A, [fillv.pop(0)])
                    if n % 4 == 2 and fillm:
                        emit(A, [fillm.pop(0)])
        emit(A, fillv + fillm)
        stamp(A, f"p3 chunk{c} mfma done")
    emit(A, epilogue(3))
    stamp(A, "p3 stores issued")
    signal(A, 3, "hhst")
    stamp(A, "p3 signalled")


def main(path):
    A = Asm()
    label = NAME + "_kernel"
    A.raw("; @launch grid=(256,1,1) block=(256,1,1) lds=163840")
    A.raw('.amdgcn_target "amdgcn-amd-amdhsa--gfx950"\n.text')
    bq = BQ()
    prologue(A, label)
    p1(A, bq)
    ksplit(A, bq, 2)
    p3(A, bq)
    ksplit(A, bq, 4)
    A("s_waitcnt vmcnt(0) lgkmcnt(0)")
    if INSTR:
        stamp(A, "end")
        A(f"""
        s_memrealtime s[100:101]
        s_waitcnt lgkmcnt(0)
        v_writelane_b32 v{vSTAMP}, s100, 63
        s_lshl_b32 s{sA}, s2, 2
        s_add_u32 s{sA}, s{sA}, s{sW}
        s_lshl_b32 s{sA}, s{sA}, 8
        s_add_u32 s{sA}, s{sA}, {WS_PROF}
        buffer_store_dword v{vSTAMP}, v{vFo}, {WSS}, s{sA} offen
        s_waitcnt vmcnt(0)
        """)
        open(path + ".stamps", "w").write("\n".join(STAMPNAMES))
    A.raw("L_done:")
    A("s_endpgm")
    A.raw(f""".section .rodata,"a"
.p2align 6
.amdhsa_kernel {label}
  .amdhsa_next_free_vgpr 512
  .amdhsa_next_free_sgpr 102
  .amdhsa_accum_offset 256
  .amdhsa_group_segment_fixed_size 0
  .amdhsa_kernarg_size 80
  .amdhsa_user_sgpr_count 2
  .amdhsa_user_sgpr_kernarg_segment_ptr 1
  .amdhsa_system_sgpr_workgroup_id_x 1
.end_amdhsa_kernel""")
    open(path, "w").write(A.text())
    print("instructions", A.nins, "nops", A.nnop)


if __name__ == "__main__":
    main(sys.argv[1] if len(sys.argv) > 1 else f"k3.s")
```

```python
import sys, os, struct
from asmlib import *

NAME = "sequential_preLN__sliding_local_dilated__glu_gated_reglu__prompt"
INSTR = int(os.environ.get("INSTR", "0"))
OPT = dict(x.split("=") for x in os.environ.get("OPT", "").split(",") if x)
def opt(k, d):
    return int(OPT.get(k, d))

WS_O = 0x100000
WS_H = 0x300000
WS_HH = 0x500000
WS_ST = 0xC00000
WS_PROF = 0xE00000
WS_R3 = 0x1000000
WS_R2 = 0x1400000
WS_R4 = 0x1500000
WS_CS = 0x1700000
WS_M1 = 0x1780000
WS_R1 = 0x1790000
WS_SIZE = 0x2000000
HHK = 48

SX, SWQ, SWO, SWG, SWU, SWD, SOUT, SWS, SDBG, SB3 = 4, 8, 12, 16, 20, 24, 28, 32, 36, 40
sW, sG, sJ, sHB, sCB, sRB, sIDX = 64, 65, 66, 67, 68, 69, 70
sA, sB, sC = 71, 72, 73
sBA = 74
sFAST = 75
sOWN, sFLG, sCNT = 76, 77, 78
sK4 = 79
sB2b, sB3b, sB4b, sB4z = 80, 81, 82, 83
sM1, sM2, sM3, sDiag = 84, 86, 88, 90
sEX0, sEX2, sW0 = 92, 94, 96
sHM = 98
sKC0, sXo0, sXo1, sXo2, sXl, sXl2, sWl, sWs = 44, 45, 46, 47, 48, 49, 50, 51
sXCC = 3
sW12 = 60
sFLA = 61

vL, vJ, vQ, vL16 = 1, 2, 3, 4
vOld, vF, vFo = 5, 6, 7
vT0, vT1, vT2, vT3 = 8, 9, 10, 11
vSTAMP = 15
vDs = 16
vSt = 17
ones = 28

SLOT = 34816
STG = 104448
MISC = 153600

LOG2E = 1.4426950408889634
MF = "v_mfma_f32_16x16x32_bf16"
MF16 = "v_mfma_f32_16x16x16_bf16"
SC = " sc1"
LSC = " sc1" if opt("ldsc", 0) else ""
WSS = f"s[{SWS}:{SWS+3}]"


def f32hex(x):
    return "0x%08x" % struct.unpack("<I", struct.pack("<f", x))[0]


STAMPN = [0]
STAMPNAMES = []
def stamp(A, name=""):
    if not INSTR:
        return
    i = STAMPN[0]
    STAMPN[0] += 1
    STAMPNAMES.append(name)
    assert i < 60
    A(f"s_memtime s[100:101]\ns_waitcnt lgkmcnt(0)\nv_writelane_b32 v{vSTAMP}, s100, {i}")


def interleave(main, fill, start=0, every=1):
    out = []
    fi = 0
    for i, m in enumerate(main):
        out.append(m)
        if i >= start and (i - start) % every == 0 and fi < len(fill):
            out.append(fill[fi])
            fi += 1
    out.extend(fill[fi:])
    return out


def emit(A, items):
    for it in items:
        if callable(it):
            it()
        else:
            A(it[0], tag=it[1])


def B2reg(st, ct):
    return ("a", 192 + (st * 4 + ct) * 4)
def B4reg(st, ct):
    return ("a", 192 + (st * 4 + ct) * 4) if st < 4 else ("v", 144 + ((st - 4) * 4 + ct) * 4)
def B3reg(ks, u):
    return ("a", (ks * 3 + u) * 4)


def unpack_pk(t):
    import re
    mn, rest = t.split(None, 1)
    toks = rest.split()
    ops = [x.strip(",") for x in toks if x.startswith("v[")]
    mods = {x.split(":")[0]: eval(x.split(":", 1)[1]) for x in toks if x.startswith(("op_sel", "neg_"))}
    n = len(ops) - 1
    base = [int(re.match(r"v\[(\d+):", o).group(1)) for o in ops]
    sel_lo = mods.get("op_sel", [0] * n)
    sel_hi = mods.get("op_sel_hi", [1] * n)
    neg_lo = mods.get("neg_lo", [0] * n)
    neg_hi = mods.get("neg_hi", [0] * n)
    op = {"v_pk_add_f32": "v_add_f32", "v_pk_mul_f32": "v_mul_f32", "v_pk_fma_f32": "v_fma_f32"}[mn]
    out = []
    for half, sel, neg in ((0, sel_lo, neg_lo), (1, sel_hi, neg_hi)):
        srcs = [("-" if neg[i] else "") + f"v{base[i+1] + sel[i]}" for i in range(n)]
        out.append(f"{op} v{base[0]+half}, " + ", ".join(srcs))
    return out


class BQ:
    def __init__(self):
        q = []
        for st in range(4):
            for ct in range(4):
                q.append((f"s_add_u32 s{sBA}, s{sB2b}, {st*4096}\nbuffer_load_dwordx4 {r(B2reg(st,ct),0,4)}, v{vL16}, {WSS}, s{sBA} offen offset:{ct*1024}{LSC}", f"b2_{st}"))
        for n in range(48):
            ks, u = divmod(n, 3)
            q.append((f"s_add_u32 s{sBA}, s{sB3b}, {(n//4)*4096}\nbuffer_load_dwordx4 {r(B3reg(ks,u),0,4)}, v{vL16}, {WSS}, s{sBA} offen offset:{(n%4)*1024}{LSC}", f"b3_{ks}"))
        for st in list(range(4, 11)) + list(range(4)):
            for ct in range(4):
                base = f"s_mov_b32 s{sBA}, s{sB4z}" if st == 0 else f"s_add_u32 s{sBA}, s{sB4b}, {st*4096}"
                q.append((f"{base}\nbuffer_load_dwordx4 {r(B4reg(st,ct),0,4)}, v{vL16}, {WSS}, s{sBA} offen offset:{ct*1024}{LSC}", f"b4_{st}"))
        self.q = q
        self.pos = 0
        self.limit = 64

    def take(self, n):
        e = min(self.pos + n, self.limit, len(self.q))
        out = self.q[self.pos:e]
        self.pos = max(self.pos, e)
        return out

    def upto(self, idx):
        return self.take(max(0, idx - self.pos))


LBL = [0]
def newlbl():
    LBL[0] += 1
    return LBL[0]


def wait_flags(A, step, mask):
    n = newlbl()
    A.fence()
    A(f"s_mov_b32 s{sCNT}, 0")
    A.raw(f"L_wait{n}:")
    A(f"""
    buffer_load_dword v{vF}, v{vFo}, {WSS}, s{sFLG} offen sc1
    s_waitcnt vmcnt(0)
    v_sub_u32 v{vF}, v{vF}, v{vOld}
    v_cmp_gt_u32 vcc, {step}, v{vF}
    s_and_b64 vcc, vcc, {mask}
    s_cbranch_scc0 L_go{n}
    s_add_u32 s{sCNT}, s{sCNT}, 1
    s_cmp_lt_u32 s{sCNT}, 0x40000
    s_cbranch_scc1 L_wait{n}
    """)
    A.raw(f"L_go{n}:")
    A.fence()


def hstores(A, lines, tag):
    if not opt("fast", 1):
        for l in lines:
            A(l + SC, tag=tag) if l.startswith("buffer_") else A(l)
        return
    n = newlbl()
    A(f"s_cmp_eq_u32 s{sFAST}, 1\ns_cbranch_scc1 L_hf{n}")
    for l in lines:
        A(l + SC, tag=tag) if l.startswith("buffer_") else A(l)
    A(f"s_branch L_he{n}")
    A.raw(f"L_hf{n}:")
    flav = {0: "", 1: " nt", 2: " sc0", 3: " sc1", 4: " sc0 sc1", 5: " sc0 nt", 6: " sc1 nt"}[opt("stflav", 0) if tag is not None else 0]
    for l in lines:
        A.raw("    " + l + (flav if l.startswith("buffer_") else ""))
    A.raw(f"L_he{n}:")
    A.fence()


def signal(A, step, tags):
    A.wait_vm(tags)
    A(f"""
    s_add_u32 s{sA}, s{sOWN}, {step}
    v_mov_b32 v{vT0}, s{sA}
    v_mov_b32 v{vT1}, 0
    s_mov_b64 exec, 1
    """)
    hstores(A, [f"buffer_store_dword v{vT0}, v{vT1}, {WSS}, s{sFLA} offen"], None)
    A("s_mov_b64 exec, -1")


def arrival_check(A, lbl_ok):
    A(f"""
    v_subrev_u32 v{vT0}, 0x01010101, v{vF}
    v_not_b32 v{vT1}, v{vF}
    v_and_b32 v{vT0}, v{vT0}, v{vT1}
    v_and_b32 v{vT0}, 0x80808080, v{vT0}
    v_cmp_ne_u32 vcc, 0, v{vT0}
    s_and_b64 vcc, vcc, -1
    s_cbranch_scc0 {lbl_ok}
    """)


def wait_arrival(A):
    n = newlbl()
    A.wait_vm("arr")
    saved = list(A.vm)
    arrival_check(A, f"L_go{n}")
    A(f"s_mov_b32 s{sCNT}, 0")
    A.raw(f"L_wait{n}:")
    A(f"""
    buffer_load_dword v{vF}, v{vFo}, s[{SDBG}:{SDBG+3}], 0 offen sc1
    s_waitcnt vmcnt(0)
    """)
    arrival_check(A, f"L_go{n}")
    A(f"""
    s_add_u32 s{sCNT}, s{sCNT}, 1
    s_cmp_lt_u32 s{sCNT}, 0x40000
    s_cbranch_scc1 L_wait{n}
    """)
    A.raw(f"L_go{n}:")
    A.vm = saved
    A.fence()
    A(f"""
    s_mul_i32 s{sA}, s{sXCC}, 0x01010101
    v_cmp_ne_u32 vcc, s{sA}, v{vF}
    s_lshl_b32 s{sA}, s{sG}, 2
    s_lshr_b64 vcc, vcc, s{sA}
    s_and_b32 s{sA}, vcc_lo, 15
    s_cmp_eq_u32 s{sA}, 0
    s_cselect_b32 s{sFAST}, 1, 0
    """)


def prologue(A, label):
    A.raw(".p2align 8\n.globl %s\n.type %s,@function\n%s:" % (label, label, label))
    if INSTR:
        A("s_memrealtime s[100:101]\ns_waitcnt lgkmcnt(0)\nv_writelane_b32 v15, s100, 62")
        stamp(A, "start")
    A(f"""
    s_cmp_ge_u32 s2, 256
    s_cbranch_scc1 L_done
    s_load_dwordx16 s[44:59], s[0:1], 0
    s_load_dwordx4 s[60:63], s[0:1], 64
    v_and_b32 v{vL}, 63, v0
    v_lshrrev_b32 v{vT0}, 6, v0
    s_lshr_b32 s{sIDX}, s2, 3
    s_and_b32 s{sG}, s2, 7
    s_lshl_b32 s{sG}, s{sG}, 1
    v_readfirstlane_b32 s{sW}, v{vT0}
    s_lshr_b32 s{sA}, s{sIDX}, 4
    s_add_u32 s{sG}, s{sG}, s{sA}
    s_and_b32 s{sJ}, s{sIDX}, 15
    s_lshr_b32 s{sHB}, s{sJ}, 3
    s_and_b32 s{sCB}, s{sJ}, 7
    s_lshl_b32 s{sRB}, s{sG}, 1
    s_add_u32 s{sRB}, s{sRB}, s{sHB}
    s_lshl_b32 s{sFLG}, s{sG}, 8
    v_and_b32 v{vJ}, 15, v{vL}
    v_lshrrev_b32 v{vQ}, 4, v{vL}
    v_lshlrev_b32 v{vL16}, 4, v{vL}
    v_lshlrev_b32 v{vFo}, 2, v{vL}
    v_lshrrev_b32 v{vT0}, 3, v{vL}
    v_and_b32 v{vT1}, 7, v{vL}
    v_and_b32 v{vT2}, 6, v{vT0}
    v_xor_b32 v{vT2}, v{vT1}, v{vT2}
    v_lshlrev_b32 v{vT2}, 4, v{vT2}
    v_lshl_add_u32 v{vDs}, v{vT0}, 10, v{vT2}
    v_mov_b32 v{ones}, 0x3f803f80
    v_mov_b32 v{ones+1}, 0x3f803f80
    v_mov_b32 v{ones+2}, 0x3f803f80
    v_mov_b32 v{ones+3}, 0x3f803f80
    v_lshlrev_b32 v{vSt}, 6, v{vJ}
    v_lshl_add_u32 v{vSt}, v{vQ}, 4, v{vSt}
    s_getreg_b32 s{sXCC}, hwreg(HW_REG_XCC_ID)
    s_and_b32 s{sXCC}, s{sXCC}, 15
    s_add_u32 s{sXCC}, s{sXCC}, 1
    s_mov_b32 s{sFAST}, 0
    """)


SRDTAB = {
    "x": (SX, 44, 2048 * 512 * 2), "wq": (SWQ, 46, 512 * 1536 * 2), "wo": (SWO, 48, 512 * 512 * 2),
    "wg": (SWG, 52, 512 * 1376 * 2), "wu": (SWU, 54, 512 * 1376 * 2), "wd": (SWD, 56, 1376 * 512 * 2),
    "out": (SOUT, 58, 2048 * 512 * 2), "ws": (SWS, 62, WS_SIZE), "dbg": (SDBG, 60, 256),
}


def build_srds(A, names):
    for k in names:
        d, p, n = SRDTAB[k]
        A(f"""
        s_mov_b32 s{d}, s{p}
        s_and_b32 s{d+1}, s{p+1}, 0xffff
        s_mov_b32 s{d+2}, {n}
        s_mov_b32 s{d+3}, 0x20000
        """)


def p1(A, bq):
    ST = MISC
    vWe, vWo_, vA0, vA1, vWt = 32, 33, 34, 35, 36
    vA0b, vA1b, vWtb = 37, 38, 39
    vSa, vSc, vSl = 40, 41, 42
    accQ, accK, accV = 48, 68, 88
    Af = [108, 128]
    Wf = [148, 160]
    biasP, biasC, biasF, selLo, selHi = 196, 200, 204, 208, 209
    WO = 10240
    vD3 = 172
    vTr3 = 175
    vTrS = 178
    vXr = 179
    XR = 180
    RT = 212
    CSP = 232
    SSR = 188
    A(f"""
    v_lshrrev_b32 v{vT0}, 3, v{vL}
    v_and_b32 v{vT1}, 7, v{vL}
    v_and_b32 v{vT2}, 2, v{vT0}
    v_xor_b32 v{vT2}, v{vT1}, v{vT2}
    v_lshlrev_b32 v{vT2}, 4, v{vT2}
    v_mul_u32_u24 v{vWe}, 3072, v{vT0}
    v_add_u32 v{vWe}, v{vWe}, v{vT2}
    v_xor_b32 v{vWo_}, 64, v{vWe}
    v_add_u32 v{vWo_}, 24576, v{vWo_}
    s_and_b32 s{sA}, s{sW}, 1
    s_lshl_b32 s{sA}, s{sA}, 5
    """)
    for n in range(3):
        A(f"""
        v_add_u32 v{vT0}, {64*n}, v{vL}
        v_mul_u32_u24 v{vT1}, 43691, v{vT0}
        v_lshrrev_b32 v{vT1}, 19, v{vT1}
        v_mul_u32_u24 v{vT2}, 12, v{vT1}
        v_sub_u32 v{vT0}, v{vT0}, v{vT2}
        v_bfe_u32 v{vT2}, v{vT1}, 2, 1
        v_xor_b32 v{vT0}, v{vT0}, v{vT2}
        v_mul_u32_u24 v{vT1}, 2752, v{vT1}
        v_lshl_add_u32 v{vT0}, v{vT0}, 4, v{vT1}
        v_xor_b32 v{vT0}, s{sA}, v{vT0}
        v_subrev_u32 v{vD3+n}, {1024*n}, v{vT0}
        """)
    A(f"v_lshlrev_b32 v{vXr}, 5, v{vL}")
    A("s_waitcnt lgkmcnt(0)")
    build_srds(A, ["x", "wq", "ws", "wo", "wg", "wu", "wd", "out", "dbg"])
    stamp(A, "srds built")
    if opt("chase", 0):
        tgt = opt("ctgt", 0)
        if tgt == 0:
            A(f"s_mov_b32 s84, s50\ns_and_b32 s85, s51, 0xffff\ns_mov_b32 s86, {2048*512*2}\ns_mov_b32 s87, 0x20000\ns_mov_b32 s{sB}, 0")
        elif tgt == 1:
            A(f"s_mov_b32 s84, s62\ns_and_b32 s85, s63, 0xffff\ns_mov_b32 s86, 0x10000000\ns_mov_b32 s87, 0x20000\ns_mov_b32 s{sB}, {opt('coff', 64)*1048576}")
        elif tgt == 2:
            A(f"s_mov_b32 s84, s58\ns_and_b32 s85, s59, 0xffff\ns_mov_b32 s86, {2048*512*2}\ns_mov_b32 s87, 0x20000\ns_mov_b32 s{sB}, 0")
        elif tgt == 3:
            A(f"s_mov_b32 s84, s46\ns_and_b32 s85, s47, 0xffff\ns_mov_b32 s86, {512*1536*2}\ns_mov_b32 s87, 0x20000\ns_mov_b32 s{sB}, 0")
        A(f"""
        s_lshl_b32 s{sA}, s2, 2
        s_add_u32 s{sA}, s{sA}, s{sW}
        s_lshl_b32 s{sA}, s{sA}, 7
        s_add_u32 s{sA}, s{sA}, s{sB}
        v_mov_b32 v{vT0}, 0
        s_mov_b64 exec, 1
        """)
        for n in range(opt("chase", 0)):
            A(f"""buffer_load_dword v{vT1}, v{vT0}, s[84:87], s{sA} offen
            s_waitcnt vmcnt(0)
            s_add_u32 s{sA}, s{sA}, 131072""")
        A("s_mov_b64 exec, -1")
        stamp(A, "chase done")
    A(f"buffer_load_dword v{vOld}, v{vFo}, {WSS}, s{sFLG} offen sc1", tag="old")
    A(f"""
    s_and_b32 s{sA}, s{sW}, 1
    s_cmp_eq_u32 s{sA}, 0
    s_cselect_b32 s{SB3}, s{SWG}, s{SWU}
    s_cselect_b32 s{SB3+1}, s{SWG+1}, s{SWU+1}
    s_mov_b32 s{SB3+2}, {512*1376*2}
    s_mov_b32 s{SB3+3}, 0x20000
    s_lshr_b32 s{sA}, s{sW}, 1
    s_lshl_b32 s{sB}, s{sG}, 1
    s_add_u32 s{sA}, s{sA}, s{sB}
    s_mul_i32 s{sA}, s{sA}, {16*2752}
    s_mul_i32 s{sB}, s{sJ}, 192
    s_add_u32 s{sA}, s{sA}, s{sB}
    s_cmp_eq_u32 s{sJ}, 15
    s_cselect_b32 s{sA}, 0x7f000000, s{sA}
    s_mul_i32 s{sB}, s{sW}, 3072
    s_add_u32 m0, s{sB}, {STG}
    """)
    for n in range(3):
        A(f"buffer_load_dwordx4 v{vD3+n}, s[{SB3}:{SB3+3}], s{sA} offen offset:{n*1024} lds", tag="pre")
    A(f"""
    s_cmp_lt_u32 s2, 64
    s_cselect_b32 s52, s{SWO}, s{SWD}
    s_cselect_b32 s53, s{SWO+1}, s{SWD+1}
    s_cselect_b32 s54, s{SWO+2}, s{SWD+2}
    s_mov_b32 s55, 0x20000
    s_cselect_b32 s{sA}, 0, 128
    s_cselect_b32 s58, 16, 48
    s_mov_b32 s57, {WS_R4}
    s_cselect_b32 s57, {WS_R2}, s57
    s_lshl_b32 s56, s2, 1
    s_sub_u32 s56, s56, s{sA}
    s_lshr_b32 s{sA}, s56, 3
    s_and_b32 s{sB}, s56, 7
    s_mul_i32 s{sC}, s{sB}, s58
    s_add_u32 s{sC}, s{sC}, s{sA}
    s_lshl_b32 s{sC}, s{sC}, 12
    s_add_u32 s57, s57, s{sC}
    s_lshl_b32 s{sC}, s{sW}, 10
    s_add_u32 s57, s57, s{sC}
    s_lshl_b32 s58, s58, 12
    s_lshl_b32 s{sA}, s{sA}, 15
    s_lshl_b32 s{sB}, s{sB}, 7
    s_add_u32 s{sA}, s{sA}, s{sB}
    s_lshl_b32 s{sB}, s{sW}, 13
    s_add_u32 s{sA}, s{sA}, s{sB}
    s_add_u32 m0, s{sC}, {STG + 12288}
    """)
    A(f"buffer_load_dwordx4 v{vDs}, s[52:55], s{sA} offen lds", tag="pre")
    A(f"""
    s_add_u32 m0, s{sC}, {STG + 12288 + 4096}
    s_add_u32 s{sA}, s{sA}, 128
    """)
    A(f"buffer_load_dwordx4 v{vDs}, s[52:55], s{sA} offen lds", tag="pre")
    A(f"""
    s_lshl_b32 s{sA}, s2, 13
    s_lshl_b32 s{sB}, s{sW}, 11
    s_add_u32 s{sA}, s{sA}, s{sB}
    """)
    A(f"buffer_load_dwordx4 v[{XR}:{XR+3}], v{vXr}, s[{SX}:{SX+3}], s{sA} offen", tag="pre")
    A(f"buffer_load_dwordx4 v[{XR+4}:{XR+7}], v{vXr}, s[{SX}:{SX+3}], s{sA} offen offset:16", tag="pre")
    xrot = f"s_and_b32 s{sB}, s2, 7" if opt("xrot", 1) else f"s_mov_b32 s{sB}, 0"
    A(f"""
    s_lshr_b32 s{sA}, s{sIDX}, 3
    s_add_u32 s{sA}, s{sA}, s{sCB}
    s_and_b32 s{sA}, s{sA}, 1
    s_lshl_b32 s{sA}, s{sA}, 2
    {xrot}
    s_add_u32 s{sKC0}, s{sA}, s{sB}
    s_lshl_b32 s{sA}, s{sRB}, 16
    s_sub_u32 s{sA}, s{sA}, 16384
    s_lshl_b32 s{sB}, s{sW}, 14
    s_add_u32 s{sXo0}, s{sA}, s{sB}
    s_add_u32 s{sXo1}, s{sXo0}, 8192
    s_max_i32 s{sXo0}, s{sXo0}, 0
    s_max_i32 s{sXo1}, s{sXo1}, 0
    s_lshr_b32 s{sB}, s{sW}, 1
    s_lshl_b32 s{sC}, s{sB}, 13
    s_add_u32 s{sXo2}, s{sA}, s{sC}
    s_add_u32 s{sXo2}, s{sXo2}, 65536
    s_lshl_b32 s{sXl}, s{sW}, 11
    s_lshl_b32 s{sXl2}, s{sB}, 10
    s_add_u32 s{sXl2}, s{sXl2}, 8192
    s_mul_i32 s{sWl}, s{sW}, 6144
    s_add_u32 s{sWl}, s{sWl}, {WO}
    s_mul_i32 s{sWs}, s{sW}, 49152
    s_lshl_b32 s{sB}, s{sCB}, 7
    s_add_u32 s{sWs}, s{sWs}, s{sB}
    s_cmp_eq_u32 s{sW}, 0
    s_cselect_b32 s{sEX0}, 0xffffff00, -1
    s_mov_b32 s{sEX0+1}, -1
    s_and_b32 s{sA}, s{sW}, 1
    s_cmp_eq_u32 s{sA}, 0
    s_cselect_b32 s{sEX2}, -1, 0
    s_cselect_b32 s{sEX2+1}, 0, -1
    """)

    def dma(i):
        slot = i % 3
        it = []
        tag = f"c{i}"
        it.append((f"""
        s_add_u32 s{sA}, s{sKC0}, {i}
        s_and_b32 s{sA}, s{sA}, 7
        s_mul_i32 s{sC}, s{sA}, {64*3072}
        s_add_u32 s{sC}, s{sC}, s{sWs}
        s_lshl_b32 s{sA}, s{sA}, 7
        s_add_u32 m0, s{sWl}, {slot*SLOT}
        buffer_load_dwordx4 v{vWe}, s[{SWQ}:{SWQ+3}], s{sC} offen lds""", tag))
        for sec in (1, 2):
            it.append((f"buffer_load_dwordx4 v{vWe}, s[{SWQ}:{SWQ+3}], s{sC} offen offset:{sec*1024} lds", tag))
        for sec in range(3):
            pre = f"s_add_u32 m0, s{sWl}, {slot*SLOT+3072}\n" if sec == 0 else ""
            it.append((pre + f"buffer_load_dwordx4 v{vWo_}, s[{SWQ}:{SWQ+3}], s{sC} offen offset:{sec*1024} lds", tag))
        it.append((f"""
        s_mov_b64 exec, s[{sEX0}:{sEX0+1}]
        s_add_u32 m0, s{sXl}, {slot*SLOT}
        s_add_u32 s{sB}, s{sXo0}, s{sA}
        buffer_load_dwordx4 v{vDs}, s[{SX}:{SX+3}], s{sB} offen lds
        s_mov_b64 exec, -1""", tag))
        it.append((f"""
        s_add_u32 m0, s{sXl}, {slot*SLOT+1024}
        s_add_u32 s{sB}, s{sXo1}, s{sA}
        buffer_load_dwordx4 v{vDs}, s[{SX}:{SX+3}], s{sB} offen lds""", tag))
        it.append((f"""
        s_mov_b64 exec, s[{sEX2}:{sEX2+1}]
        s_add_u32 m0, s{sXl2}, {slot*SLOT}
        s_add_u32 s{sB}, s{sXo2}, s{sA}
        buffer_load_dwordx4 v{vDs}, s[{SX}:{SX+3}], s{sB} offen lds
        s_mov_b64 exec, -1""", tag))
        return it

    emit(A, dma(0))
    if opt("touch1", 0):
        A(f"""
        s_mul_i32 s{sA}, s2, {48*128}
        s_mul_i32 s{sB}, s{sW}, {12*128}
        s_add_u32 s{sA}, s{sA}, s{sB}
        v_lshlrev_b32 v{vT3}, 7, v{vL}
        s_mov_b64 exec, 0xfff
        buffer_load_dword v{vF}, v{vT3}, s[{SWQ}:{SWQ+3}], s{sA} offen
        s_mov_b64 exec, -1
        """)
    stamp(A, "dma0 issued")
    A(f"""
    v_lshrrev_b32 v{vT0}, 3, v{vJ}
    v_and_b32 v{vT1}, 7, v{vJ}
    v_lshlrev_b32 v{vT1}, 7, v{vT1}
    v_lshl_add_u32 v{vT0}, v{vT0}, 10, v{vT1}
    v_and_b32 v{vT1}, 6, v{vJ}
    v_xor_b32 v{vT1}, v{vQ}, v{vT1}
    v_lshl_add_u32 v{vA0}, v{vT1}, 4, v{vT0}
    v_xor_b32 v{vA1}, 64, v{vA0}
    v_bfe_u32 v{vT0}, v{vL}, 2, 2
    v_bfe_u32 v{vT1}, v{vL}, 1, 1
    s_lshl_b32 s{sA}, s{sW}, 1
    v_add_u32 v{vT1}, s{sA}, v{vT1}
    v_and_b32 v{vT2}, 1, v{vQ}
    v_lshlrev_b32 v{vT2}, 2, v{vT2}
    v_xor_b32 v{vT1}, v{vT1}, v{vT2}
    v_and_b32 v{vT2}, 2, v{vT0}
    v_xor_b32 v{vT1}, v{vT1}, v{vT2}
    v_lshlrev_b32 v{vT1}, 4, v{vT1}
    v_lshl_add_u32 v{vT1}, v{vT0}, 7, v{vT1}
    v_and_b32 v{vT2}, 1, v{vL}
    v_lshl_add_u32 v{vT1}, v{vT2}, 3, v{vT1}
    v_mul_u32_u24 v{vT2}, 3072, v{vQ}
    v_add_u32 v{vT1}, v{vT1}, v{vT2}
    v_add_u32 v{vWt}, {WO}, v{vT1}
    v_add_u32 v{vA0b}, {2*SLOT}, v{vA0}
    v_add_u32 v{vA1b}, {2*SLOT}, v{vA1}
    v_add_u32 v{vWtb}, {2*SLOT}, v{vWt}
    v_lshrrev_b32 v{vT0}, 3, v{vL}
    v_mul_u32_u24 v{vT0}, {SLOT}, v{vT0}
    v_and_b32 v{vT1}, 7, v{vL}
    v_lshl_add_u32 v{vT0}, v{vT1}, 4, v{vT0}
    s_mov_b64 exec, 0xffffff
    ds_write_b128 v{vT0}, v[{ones}:{ones+3}]
    s_mov_b64 exec, -1
    """)
    A(f"""
    v_bfe_u32 v{vT0}, v{vL}, 2, 3
    v_and_b32 v{vT1}, 6, v{vT0}
    v_bfe_u32 v{vT2}, v{vL}, 1, 1
    v_or_b32 v{vT1}, v{vT1}, v{vT2}
    v_lshlrev_b32 v{vT1}, 4, v{vT1}
    v_lshl_add_u32 v{vT1}, v{vT0}, 7, v{vT1}
    v_and_b32 v{vT2}, 1, v{vL}
    v_lshl_add_u32 v{vT1}, v{vT2}, 3, v{vT1}
    v_lshrrev_b32 v{vT2}, 5, v{vL}
    v_lshl_add_u32 v{vT1}, v{vT2}, 10, v{vT1}
    s_lshl_b32 s{sA}, s{sW}, 5
    v_xor_b32 v{vT1}, s{sA}, v{vT1}
    v_add_u32 v{vTrS}, {STG+12288}, v{vT1}
    v_lshrrev_b32 v{vT0}, 2, v{vL}
    v_mul_u32_u24 v{vT0}, 192, v{vT0}
    v_bfe_u32 v{vT1}, v{vL}, 1, 1
    v_mul_u32_u24 v{vT2}, 3072, v{vT1}
    v_add_u32 v{vT0}, v{vT0}, v{vT2}
    v_add_u32 v{vT0}, {STG}, v{vT0}
    v_and_b32 v{vT2}, 1, v{vQ}
    v_lshl_add_u32 v{vT1}, v{vT1}, 1, v{vT2}
    v_and_b32 v{vT2}, 1, v{vL}
    s_lshr_b32 s{sA}, s{sW}, 1
    s_and_b32 s{sB}, s{sW}, 1
    s_lshl_b32 s{sC}, s{sA}, 2
    s_add_u32 s{sC}, s{sC}, s{sB}
    v_xor_b32 v{vT3}, s{sC}, v{vT1}
    v_lshl_add_u32 v{vT3}, v{vT3}, 4, v{vT0}
    v_lshl_add_u32 v{vTr3}, v{vT2}, 3, v{vT3}
    s_add_u32 s{sC}, s{sC}, 2
    v_xor_b32 v{vT3}, s{sC}, v{vT1}
    v_lshl_add_u32 v{vT3}, v{vT3}, 4, v{vT0}
    v_lshl_add_u32 v{vTr3+1}, v{vT2}, 3, v{vT3}
    s_add_u32 s{sC}, s{sA}, 8
    v_lshl_add_u32 v{vT3}, v{vT2}, 1, s{sC}
    v_xor_b32 v{vT3}, v{vT3}, v{vT1}
    v_lshl_add_u32 v{vT3}, v{vT3}, 4, v{vT0}
    s_lshl_b32 s{sB}, s{sB}, 3
    v_add_u32 v{vTr3+2}, s{sB}, v{vT3}
    """)
    A(f"""
    s_lshl_b32 s{sW12}, s{sW}, 12
    s_mul_i32 s{sK4}, s{sW}, 11
    s_min_u32 s{sK4}, s{sK4}, 32
    s_lshl_b32 s{sA}, s{sJ}, 2
    s_add_u32 s{sA}, s{sA}, s{sW}
    s_mul_i32 s{sB3b}, s{sA}, 49152
    s_add_u32 s{sB3b}, s{sB3b}, {WS_R3}
    s_lshl_b32 s{sFLA}, s{sA}, 2
    s_add_u32 s{sFLA}, s{sFLA}, s{sFLG}
    s_lshl_b32 s{sB2b}, s{sCB}, 16
    s_lshl_b32 s{sA}, s{sW}, 14
    s_add_u32 s{sB2b}, s{sB2b}, s{sA}
    s_add_u32 s{sB2b}, s{sB2b}, {WS_R2}
    s_mul_i32 s{sA}, s{sCB}, 48
    s_add_u32 s{sB}, s{sA}, s{sK4}
    s_lshl_b32 s{sB4b}, s{sB}, 12
    s_add_u32 s{sB4b}, s{sB4b}, {WS_R4}
    s_add_u32 s{sA}, s{sA}, 43
    s_lshl_b32 s{sA}, s{sA}, 12
    s_add_u32 s{sA}, s{sA}, {WS_R4}
    s_cmp_eq_u32 s{sW}, 3
    s_cselect_b32 s{sB4z}, s{sA}, s{sB4b}
    v_and_b32 v{vT0}, 3, v{vJ}
    v_cmp_eq_u32 s[{sM1}:{sM1+1}], 1, v{vT0}
    v_cmp_eq_u32 s[{sM2}:{sM2+1}], 2, v{vT0}
    v_cmp_eq_u32 s[{sM3}:{sM3+1}], 3, v{vT0}
    v_lshrrev_b32 v{vT0}, 2, v{vJ}
    v_cmp_eq_u32 s[{sDiag}:{sDiag+1}], v{vT0}, v{vQ}
    s_cmp_eq_u32 s{sW}, 0
    s_cselect_b32 s{sW0}, 1, 0
    s_mov_b32 s{sW0+1}, 0
    s_cmp_eq_u32 s{sHB}, 0
    s_cselect_b32 s{sHM}, -1, 0
    s_cselect_b32 s{sHM+1}, 0, -1
    """)
    if opt("d1early", 0):
        emit(A, dma(1))
    A.wait_vm("pre")
    A("s_waitcnt lgkmcnt(0)\ns_barrier")
    stamp(A, "pre data landed")
    for u in range(3):
        for hf in range(2):
            A(f"ds_read_b64_tr_b16 v[{RT+4*u+2*hf}:{RT+4*u+2*hf+1}], v{vTr3+u} offset:{hf*6144}", tag=f"rt{u}")
    for n in range(2):
        for hf in range(2):
            A(f"ds_read_b64_tr_b16 v[{RT+12+4*n+2*hf}:{RT+12+4*n+2*hf+1}], v{vTrS} offset:{n*4096+hf*2048}", tag=f"rt{3+n}")
    S1, S2 = 188, 189
    A(f"v_mov_b32 v{S1}, 0\nv_mov_b32 v{S2}, 0")
    for i in range(8):
        A(f"v_dot2_f32_bf16 v{S1}, v{XR+i}, v{ones}, v{S1}")
        A(f"v_dot2_f32_bf16 v{S2}, v{XR+i}, v{XR+i}, v{S2}")
    A(f"""
    s_lshl_b32 s{sA}, s{sJ}, 2
    s_add_u32 s{sA}, s{sA}, s{sW}
    v_readlane_b32 s{sOWN}, v{vOld}, s{sA}
    s_mul_i32 s{sB}, s{sG}, 3072
    s_add_u32 s{sB}, s{sB}, s{sB3b}
    """)
    for u in range(3):
        A.wait_lg(f"rt{u}")
        A(f"buffer_store_dwordx4 v[{RT+4*u}:{RT+4*u+3}], v{vL16}, {WSS}, s{sB} offen offset:{u*1024} sc1", tag="prest")
        A(f"{MF} {v(CSP+4*u,4)}, {v(RT+4*u,4)}, {v(ones,4)}, 0")
    A.wait_lg("rt3")
    A(f"buffer_store_dwordx4 v[{RT+12}:{RT+15}], v{vL16}, {WSS}, s57 offen sc1", tag="prest")
    A(f"s_add_u32 s57, s57, s58")
    A.wait_lg("rt4")
    A(f"buffer_store_dwordx4 v[{RT+16}:{RT+19}], v{vL16}, {WSS}, s57 offen sc1", tag="prest")
    for mode in ("quad_perm:[1,0,3,2]", "quad_perm:[2,3,0,1]", "row_half_mirror", "row_mirror"):
        A(f"v_add_f32_dpp v{S1}, v{S1}, v{S1} {mode} row_mask:0xf bank_mask:0xf")
        A(f"v_add_f32_dpp v{S2}, v{S2}, v{S2} {mode} row_mask:0xf bank_mask:0xf")
    A(f"""
    v_mov_b32 v190, v{S1}
    v_mov_b32 v191, v{S2}
    s_mul_i32 s{sA}, s{sA}, 3072
    s_lshl_b32 s{sB}, s{sG}, 6
    s_add_u32 s{sA}, s{sA}, s{sB}
    s_add_u32 s{sA}, s{sA}, {WS_CS}
    v_permlane16_swap_b32 v{S1}, v190
    v_permlane16_swap_b32 v{S2}, v191
    v_add_f32 v{S1}, v{S1}, v190
    v_add_f32 v{S2}, v{S2}, v191
    v_mul_f32 v{S1}, 0x3b000000, v{S1}
    v_mul_f32 v{S2}, 0x3b000000, v{S2}
    v_fma_f32 v{S2}, -v{S1}, v{S1}, v{S2}
    v_max_f32 v{S2}, 0, v{S2}
    v_add_f32 v{S2}, {f32hex(1e-5)}, v{S2}
    v_rsq_f32 v{S2}, v{S2}
    s_mov_b32 exec_lo, 0x00010001
    s_mov_b32 exec_hi, 0x00010001
    """)
    for u in range(3):
        A(f"buffer_store_dwordx4 v[{CSP+4*u}:{CSP+4*u+3}], v{vSt}, {WSS}, s{sA} offen offset:{u*1024} sc1", tag="prest")
    A(f"""
    s_mov_b64 exec, -1
    v_lshrrev_b32 v{vT0}, 5, v{vL}
    v_lshlrev_b32 v{vT0}, 2, v{vT0}
    s_lshl_b32 s{sA}, s2, 5
    s_lshl_b32 s{sB}, s{sW}, 3
    s_add_u32 s{sA}, s{sA}, s{sB}
    s_add_u32 s{sB}, s{sA}, {WS_R1}
    s_add_u32 s{sA}, s{sA}, {WS_M1}
    s_mov_b32 exec_lo, 1
    s_mov_b32 exec_hi, 1
    """)
    A(f"buffer_store_dword v{S1}, v{vT0}, {WSS}, s{sA} offen sc1", tag="prest")
    A(f"buffer_store_dword v{S2}, v{vT0}, {WSS}, s{sB} offen sc1", tag="prest")
    A("s_mov_b64 exec, -1")
    stamp(A, "pre stores issued")
    if not opt("d1early", 0):
        emit(A, dma(1))
    stamp(A, "dma1 issued")
    NEG = f32hex(-1e30)
    A(f"""
    v_lshlrev_b32 v{vT0}, 2, v{vQ}
    v_sub_u32 v{vT0}, v{vT0}, v{vJ}
    v_mov_b32 v{vT3}, {NEG}
    s_cmp_eq_u32 s{sRB}, 0
    s_cselect_b64 s[58:59], -1, 0
    """)
    for r_ in range(4):
        A(f"""
        v_add_u32 v{vT1}, {r_}, v{vT0}
        v_and_b32 v{vT2}, 1, v{vT1}
        v_cmp_eq_u32 s[52:53], 0, v{vT2}
        v_cmp_le_i32 s[54:55], 2, v{vT1}
        v_cmp_ge_i32 s[56:57], 0, v{vT1}
        s_and_b64 s[54:55], s[54:55], s[52:53]
        s_and_b64 s[56:57], s[56:57], s[52:53]
        v_cndmask_b32 v{biasP+r_}, v{vT3}, 0, s[54:55]
        v_cndmask_b32 v{biasC+r_}, v{vT3}, 0, s[56:57]
        v_cndmask_b32 v{biasF+r_}, v{biasP+r_}, v{vT3}, s[58:59]
        """)
    A(f"""
    v_and_b32 v{vT1}, 1, v{vJ}
    v_cmp_eq_u32 vcc, 1, v{vT1}
    v_mov_b32 v{vT1}, 0x0c0c0100
    v_mov_b32 v{vT2}, 0x01000c0c
    v_cndmask_b32 v{selLo}, v{vT1}, v{vT2}, vcc
    v_mov_b32 v{vT1}, 0x0c0c0302
    v_mov_b32 v{vT2}, 0x03020c0c
    v_cndmask_b32 v{selHi}, v{vT1}, v{vT2}, vcc
    v_lshlrev_b32 v{vSa}, 2, v{vJ}
    v_add_u32 v{vSa}, {ST}, v{vSa}
    v_lshlrev_b32 v{vSc}, 4, v{vQ}
    v_add_u32 v{vSc}, {ST}, v{vSc}
    s_lshl_b32 s{sA}, s{sRB}, 6
    s_and_b32 s{sB}, s{sW}, 1
    s_lshl_b32 s{sB}, s{sB}, 6
    s_add_u32 s{sA}, s{sA}, s{sB}
    s_sub_u32 s{sA}, s{sA}, 16
    v_add_u32 v{vSl}, s{sA}, v{vL}
    v_max_i32 v{vSl}, 0, v{vSl}
    v_lshlrev_b32 v{vSl}, 2, v{vSl}
    """)

    def reads(i, sidx):
        slot = i % 3
        it = []
        if slot < 2:
            va, wt, so = (vA0, vA1)[sidx], vWt, slot * SLOT
        else:
            va, wt, so = (vA0b, vA1b)[sidx], vWtb, 0
        tag = f"r{i}_{sidx}"
        for sec in range(3):
            for hf in range(2):
                it.append((f"ds_read_b64_tr_b16 v[{Wf[sidx]+sec*4+hf*2}:{Wf[sidx]+sec*4+hf*2+1}], v{wt} offset:{so + sidx*12288 + sec*1024 + hf*512}", tag))
        for t in range(5):
            it.append((f"ds_read_b128 v[{Af[sidx]+4*t}:{Af[sidx]+4*t+3}], v{va} offset:{so + t*2048}", tag))
        return it

    def mfmas(i, sidx):
        first = (i == 0 and sidx == 0)
        it = []
        W = lambda sec: v(Wf[sidx] + 4 * sec, 4)
        X = lambda t: v(Af[sidx] + 4 * t, 4)
        def m(acc, a, b):
            c = "0" if first else v(acc, 4)
            it.append((f"{MF} {v(acc,4)}, {a}, {b}, {c}", None))
        for t in range(5):
            m(accQ + 4 * t, W(0), X(t))
            m(accK + 4 * t, W(1), X(t))
            m(accV + 4 * t, X(t), W(2))
        return it

    ARR_I = opt("arr_i", 1)
    POLL_I = opt("poll_i", 3)
    for i in range(8):
        A.wait_vm(f"c{i}")
        if i == ARR_I:
            A.wait_vm("prest")
        if i == POLL_I + 1:
            wait_arrival(A)
            stamp(A, "arrival ok")
        if i == 7:
            pass
        A("s_waitcnt lgkmcnt(0)\ns_barrier")
        stamp(A, f"p1 bar{i}")
        dm = dma(i + 2) if i + 2 <= 7 else []
        if i == ARR_I:
            A(f"""
            v_mov_b32 v{vT0}, s{sXCC}
            v_mov_b32 v{vT1}, 0
            s_lshl_b32 s{sA}, s{sG}, 4
            s_add_u32 s{sA}, s{sA}, s{sJ}
            s_mov_b64 exec, s[{sW0}:{sW0+1}]
            buffer_store_byte v{vT0}, v{vT1}, s[{SDBG}:{SDBG+3}], s{sA} offen sc1
            s_mov_b64 exec, -1
            """)
        extra = []
        if i == POLL_I:
            A(f"buffer_load_dword v{vF}, v{vFo}, s[{SDBG}:{SDBG+3}], 0 offen sc1", tag="arr")
        if i == POLL_I + 1:
            extra = [(f"""
            s_lshr_b32 s{sBA}, s{sW}, 1
            s_lshl_b32 s{sBA}, s{sBA}, 16
            s_add_u32 s{sBA}, s{sBA}, {WS_M1}
            s_lshl_b32 m0, s{sW}, 8
            s_add_u32 m0, m0, {ST}
            buffer_load_dword v{vSl}, {WSS}, s{sBA} offen{LSC} lds""", "st1")]
        if i > POLL_I:
            extra += bq.take(opt("wa", 8))
        if i == 0:
            emit(A, reads(i, 0) + dm)
            dm = []
        else:
            emit(A, interleave(mfmas(i - 1, 1), reads(i, 0) + dm[:4]))
            dm = dm[4:]
        A.wait_lg(f"r{i}_0")
        emit(A, interleave(mfmas(i, 0), reads(i, 1) + dm + extra))
    A.wait_lg("r7_1")
    emit(A, mfmas(7, 1))
    stamp(A, "p1 loop done")
    A.wait_vm("st1")
    A("s_barrier")
    L1 = 108
    L2M = 120
    L2R = 140
    csQ, csK, csV = 160, 164, 168
    for t in range(5):
        A(f"ds_read2_b32 v[{L1+2*t}:{L1+2*t+1}], v{vSa} offset0:{16*t} offset1:{128+16*t}", tag="st")
    for t in range(5):
        A(f"ds_read_b128 v[{L2M+4*t}:{L2M+4*t+3}], v{vSc} offset:{64*t}", tag="st")
        A(f"ds_read_b128 v[{L2R+4*t}:{L2R+4*t+3}], v{vSc} offset:{512+64*t}", tag="st")
    A(f"v_lshlrev_b32 v{vT0}, 2, v{vJ}")
    A(f"ds_bpermute_b32 v{csV}, v{vT0}, v{accV}", tag="st")
    for r_ in range(4):
        A(f"v_mov_b32_dpp v{csQ+r_}, v{accQ+r_} row_newbcast:0 row_mask:0xf bank_mask:0xf")
        A(f"v_mov_b32_dpp v{csK+r_}, v{accK+r_} row_newbcast:0 row_mask:0xf bank_mask:0xf")
    A.wait_lg("st")
    Kp, Qp, Vp = 210, 220, 230
    for t in range(5):
        for (acc, cs, P, scale) in ((accK, csK, Kp, True), (accQ, csQ, Qp, False)):
            if acc == accQ and t == 0:
                continue
            a = acc + 4 * t
            for h in range(2):
                A(f"v_pk_fma_f32 v[{a+2*h}:{a+2*h+1}], v[{cs+2*h}:{cs+2*h+1}], v[{L1+2*t}:{L1+2*t+1}], v[{a+2*h}:{a+2*h+1}] op_sel:[0,0,0] op_sel_hi:[1,0,1] neg_lo:[0,1,0] neg_hi:[0,1,0]")
            if scale:
                for h in range(2):
                    A(f"v_pk_mul_f32 v[{a+2*h}:{a+2*h+1}], v[{a+2*h}:{a+2*h+1}], v[{L1+2*t}:{L1+2*t+1}] op_sel:[0,1] op_sel_hi:[1,1]")
            for h in range(2):
                A(f"v_cvt_pk_bf16_f32 v{P+2*t+h}, v{a+2*h}, v{a+2*h+1}")
        a = accV + 4 * t
        for h in range(2):
            A(f"v_pk_fma_f32 v[{a+2*h}:{a+2*h+1}], v[{L2M+4*t+2*h}:{L2M+4*t+2*h+1}], v[{csV}:{csV+1}], v[{a+2*h}:{a+2*h+1}] op_sel:[0,0,0] op_sel_hi:[1,0,1] neg_lo:[1,0,0] neg_hi:[1,0,0]")
        for h in range(2):
            A(f"v_pk_mul_f32 v[{a+2*h}:{a+2*h+1}], v[{a+2*h}:{a+2*h+1}], v[{L2R+4*t+2*h}:{L2R+4*t+2*h+1}]")
        for h in range(2):
            A(f"v_cvt_pk_bf16_f32 v{Vp+2*t+h}, v{a+2*h}, v{a+2*h+1}")
    stamp(A, "p1 fold done")
    Sp = lambda t: 48 + 8 * (t - 1)
    Sc = lambda t: 52 + 8 * (t - 1)
    for t in range(1, 5):
        A(f"{MF16} {v(Sp(t),4)}, {v(Kp+2*(t-1),2)}, {v(Qp+2*t,2)}, {v(biasF if t==1 else biasP,4)}")
        A(f"{MF16} {v(Sc(t),4)}, {v(Kp+2*t,2)}, {v(Qp+2*t,2)}, {v(biasC,4)}")
    X = lambda t, i: 80 + 4 * (t - 1) + i
    MX = lambda t: 96 + (t - 1)
    MY = lambda t: 100 + (t - 1)
    CQ = lambda t: 104 + (t - 1)
    for t in range(1, 5):
        A(f"v_mul_f32 v{CQ(t)}, {f32hex(0.25*LOG2E)}, v{L1+2*t+1}")
    for t in range(1, 5):
        A(f"""
        v_max_f32 v{X(t,0)}, v{Sp(t)}, v{Sp(t)+1}
        v_max_f32 v{X(t,1)}, v{Sp(t)+2}, v{Sp(t)+3}
        v_max_f32 v{X(t,2)}, v{Sc(t)}, v{Sc(t)+1}
        v_max_f32 v{X(t,3)}, v{Sc(t)+2}, v{Sc(t)+3}
        v_max3_f32 v{MX(t)}, v{X(t,0)}, v{X(t,1)}, v{X(t,2)}
        v_max_f32 v{MX(t)}, v{MX(t)}, v{X(t,3)}
        v_mov_b32 v{MY(t)}, v{MX(t)}
        """)
    for t in range(1, 5):
        A(f"v_permlane16_swap_b32 v{MX(t)}, v{MY(t)}")
    for t in range(1, 5):
        A(f"v_max_f32 v{MX(t)}, v{MX(t)}, v{MY(t)}")
    for t in range(1, 5):
        A(f"v_mov_b32 v{MY(t)}, v{MX(t)}")
    for t in range(1, 5):
        A(f"v_permlane32_swap_b32 v{MX(t)}, v{MY(t)}")
    for t in range(1, 5):
        A(f"v_max_f32 v{MX(t)}, v{MX(t)}, v{MY(t)}")
    for t in range(1, 5):
        A(f"v_mul_f32 v{MX(t)}, v{MX(t)}, v{CQ(t)}")
    for t in range(1, 5):
        for i in range(4):
            A(f"v_fma_f32 v{X(t,i)}, v{X(t,i)}, v{CQ(t)}, -v{MX(t)}")
    for t in range(1, 5):
        for i in range(4):
            A(f"v_exp_f32 v{X(t,i)}, v{X(t,i)}")
    Pf = lambda t: 48 + 4 * (t - 1)
    for t in range(1, 5):
        A(f"""
        v_cvt_pk_bf16_f32 v{MX(t)}, v{X(t,0)}, v{X(t,1)}
        v_cvt_pk_bf16_f32 v{MY(t)}, v{X(t,2)}, v{X(t,3)}
        """)
    for t in range(1, 5):
        A(f"""
        v_perm_b32 v{Pf(t)}, v{MX(t)}, v{MX(t)}, v{selLo}
        v_perm_b32 v{Pf(t)+1}, v{MX(t)}, v{MX(t)}, v{selHi}
        v_perm_b32 v{Pf(t)+2}, v{MY(t)}, v{MY(t)}, v{selLo}
        v_perm_b32 v{Pf(t)+3}, v{MY(t)}, v{MY(t)}, v{selHi}
        """)
    Oa = lambda t: 64 + 4 * (t - 1)
    Su = lambda t: 80 + 4 * (t - 1)
    for t in range(1, 5):
        A(f"{MF} {v(Oa(t),4)}, {v(Vp+2*(t-1),4)}, {v(Pf(t),4)}, 0")
        A(f"{MF} {v(Su(t),4)}, {v(ones,4)}, {v(Pf(t),4)}, 0")
    A(f"""
    s_lshl_b32 s{sA}, s{sRB}, 16
    s_lshl_b32 s{sB}, s{sCB}, 11
    s_add_u32 s{sA}, s{sA}, s{sB}
    s_lshr_b32 s{sB}, s{sW}, 1
    s_lshl_b32 s{sB}, s{sB}, 10
    s_add_u32 s{sA}, s{sA}, s{sB}
    s_and_b32 s{sB}, s{sW}, 1
    s_lshl_b32 s{sB}, s{sB}, 3
    s_add_u32 s{sA}, s{sA}, s{sB}
    s_add_u32 s{sA}, s{sA}, {WS_O}
    """)
    for t in range(1, 5):
        A(f"v_rcp_f32 v{Su(t)}, v{Su(t)}")
    st_lines = []
    for t in range(1, 5):
        o = Oa(t)
        A(f"""
        v_pk_mul_f32 v[{o}:{o+1}], v[{o}:{o+1}], v[{Su(t)}:{Su(t)+1}] op_sel:[0,0] op_sel_hi:[1,0]
        v_pk_mul_f32 v[{o+2}:{o+3}], v[{o+2}:{o+3}], v[{Su(t)}:{Su(t)+1}] op_sel:[0,0] op_sel_hi:[1,0]
        v_cvt_pk_bf16_f32 v{o}, v{o}, v{o+1}
        v_cvt_pk_bf16_f32 v{o+1}, v{o+2}, v{o+3}
        """)
        st_lines += [f"s_add_u32 s{sB}, s{sA}, {(t-1)*16384}", f"buffer_store_dwordx2 v[{o}:{o+1}], v{vL16}, {WSS}, s{sB} offen"]
    hstores(A, st_lines, "ost")
    stamp(A, "p1 stores issued")
    signal(A, 1, "ost")
    stamp(A, "p1 signalled")


def ksplit(A, bq, which):
    P2 = which == 2
    nst = 4 if P2 else 11
    vRr, vXo = 27, 14
    RW = [12, 13, 11]
    acc = 32
    if P2:
        Afr = lambda t, st: v(96 + (t * nst + st) * 4, 4)
        Bf = B2reg
    else:
        Afr = lambda t, st: a_((t * nst + st) * 4, 4)
        Bf = B4reg
    RED = 0
    for t in range(1, 4):
        A(f"""
        s_add_u32 s{sA}, s{sW}, {t}
        s_and_b32 s{sA}, s{sA}, 3
        s_mul_i32 s{sA}, s{sA}, 12288
        s_add_u32 s{sA}, s{sA}, {RED + (t-1)*4096}
        v_add_u32 v{RW[t-1]}, s{sA}, v{vL16}
        """)
    A(f"""
    s_mul_i32 s{sA}, s{sW}, 12288
    s_add_u32 s{sA}, s{sA}, {RED}
    v_add_u32 v{vRr}, s{sA}, v{vL16}
    v_lshlrev_b32 v{vXo}, 10, v{vJ}
    v_lshl_add_u32 v{vXo}, v{vQ}, 3, v{vXo}
    """)

    def a_loads(t):
        base = WS_O if P2 else WS_HH
        pitch = 16 if P2 else HHK
        k0 = f"s_lshl_b32 s{sB}, s{sW}, 2" if P2 else f"s_mov_b32 s{sB}, s{sK4}"
        it = [(f"""
        s_add_u32 s{sA}, s{sW}, {t}
        s_and_b32 s{sA}, s{sA}, 3
        s_lshl_b32 s{sB}, s{sRB}, 2
        s_add_u32 s{sA}, s{sA}, s{sB}
        s_mul_i32 s{sA}, s{sA}, {pitch}
        {k0}
        s_add_u32 s{sA}, s{sA}, s{sB}
        s_lshl_b32 s{sA}, s{sA}, 10
        s_add_u32 s{sA}, s{sA}, {base}""", None)]
        for st in range(nst):
            if st % 4 == 0 and st > 0:
                it.append((f"s_add_u32 s{sA}, s{sA}, 4096", None))
            it.append((f"buffer_load_dwordx4 {Afr(t,st)}, v{vL16}, {WSS}, s{sA} offen offset:{(st%4)*1024}{LSC}", f"a{t}_{st}"))
        return it

    if P2:
        A(f"""
        s_lshl_b32 s{sA}, s{sRB}, 16
        s_lshl_b32 s{sB}, s{sW}, 14
        s_add_u32 s{sA}, s{sA}, s{sB}
        s_lshl_b32 s{sB}, s{sCB}, 7
        s_add_u32 s{sC}, s{sA}, s{sB}
        """)
        for ct in range(4):
            A(f"buffer_load_dwordx2 v[{160+2*ct}:{161+2*ct}], v{vXo}, s[{SX}:{SX+3}], s{sC} offen offset:{ct*32}", tag="res")
        resreg = lambda i: f"v{160+i}"
        emit(A, bq.upto(16) + bq.take(opt("wb", 8)))
        stamp(A, "p2 before wait")
        wait_flags(A, 1, f"s[{sHM}:{sHM+1}]")
        stamp(A, "p2 flags ok")
    else:
        A(f"""
        s_lshl_b32 s{sA}, s{sRB}, 16
        s_lshl_b32 s{sB}, s{sW}, 14
        s_add_u32 s{sA}, s{sA}, s{sB}
        s_lshl_b32 s{sB}, s{sCB}, 11
        s_add_u32 s{sA}, s{sA}, s{sB}
        s_add_u32 s{sA}, s{sA}, {WS_H}
        """)
        for h in range(2):
            A(f"buffer_load_dwordx4 a[{176+4*h}:{179+4*h}], v{vL16}, {WSS}, s{sA} offen offset:{h*1024}{LSC}", tag="res")
        emit(A, bq.take(1000))
        stamp(A, "p4 before wait")
        wait_flags(A, 3, "-1")
        stamp(A, "p4 flags ok")
    if (not P2) and opt("p4rep", 0):
        for rep in range(opt("p4rep", 0)):
            for t in range(4):
                emit(A, a_loads(t))
                stamp(A, f"p4 rep{rep} tile{t} issued")
            A("s_waitcnt vmcnt(0)")
            stamp(A, f"p4 rep{rep} landed")
    for t in range(4):
        emit(A, a_loads(t))
    if P2:
        emit(A, bq.take(opt("wc", 8)))
    for t in range(4):
        for st in range(nst):
            A.wait_vm(f"a{t}_{st}")
            for ct in range(4):
                d = v(acc + (t * 4 + ct) * 4, 4)
                A(f"{MF} {d}, {r(Bf(st,ct),0,4)}, {Afr(t,st)}, {'0' if st==0 else d}")
        if t >= 2:
            tt = t - 1
            for ct in range(4):
                A(f"ds_write_b128 v{RW[tt-1]}, {v(acc+(tt*4+ct)*4,4)} offset:{ct*1024}")
    for ct in range(4):
        A(f"ds_write_b128 v{RW[2]}, {v(acc+(3*4+ct)*4,4)} offset:{ct*1024}")
    stamp(A, f"p{which} mfma done")
    A("s_waitcnt lgkmcnt(0)\ns_barrier")
    T = 96
    for k in range(3):
        for ct in range(4):
            A(f"ds_read_b128 {v(T+(k*4+ct)*4,4)}, v{vRr} offset:{k*4096+ct*1024}", tag=f"rd{k}")
    U = 48
    if not P2:
        for i in range(8):
            A(f"v_accvgpr_read_b32 v{64+i}, a{176+i}")
        resreg = lambda i: f"v{64+i}"
    for ct in range(4):
        for h in range(2):
            A(f"v_lshlrev_b32 v{U+ct*4+2*h}, 16, {resreg(2*ct+h)}")
            A(f"v_and_b32 v{U+ct*4+2*h+1}, 0xffff0000, {resreg(2*ct+h)}")
    for ct in range(4):
        for h in range(2):
            a = acc + ct * 4 + 2 * h
            A(f"v_pk_add_f32 v[{a}:{a+1}], v[{a}:{a+1}], v[{U+ct*4+2*h}:{U+ct*4+2*h+1}]")
    for k in range(3):
        A.wait_lg(f"rd{k}")
        for ct in range(4):
            for h in range(2):
                a = acc + ct * 4 + 2 * h
                b = T + (k * 4 + ct) * 4 + 2 * h
                A(f"v_pk_add_f32 v[{a}:{a+1}], v[{a}:{a+1}], v[{b}:{b+1}]")
    PK = 72
    for ct in range(4):
        for h in range(2):
            a = acc + ct * 4 + 2 * h
            A(f"v_cvt_pk_bf16_f32 v{PK+2*ct+h}, v{a}, v{a+1}")
    A(f"""
    s_lshl_b32 s{sA}, s{sRB}, 16
    s_lshl_b32 s{sB}, s{sW}, 14
    s_add_u32 s{sA}, s{sA}, s{sB}
    """)
    if P2:
        G, S_ = 80, 84
        A(f"""
        s_lshl_b32 s{sB}, s{sCB}, 11
        s_add_u32 s{sC}, s{sA}, s{sB}
        s_add_u32 s{sC}, s{sC}, {WS_H}
        {MF} {v(G,4)}, {v(PK,4)}, {v(PK,4)}, 0
        {MF} {v(S_,4)}, {v(ones,4)}, {v(PK,4)}, 0
        {MF} {v(G,4)}, {v(PK+4,4)}, {v(PK+4,4)}, {v(G,4)}
        {MF} {v(S_,4)}, {v(ones,4)}, {v(PK+4,4)}, {v(S_,4)}
        """)
        hstores(A, [f"buffer_store_dwordx4 v[{PK}:{PK+3}], v{vL16}, {WSS}, s{sC} offen",
                    f"buffer_store_dwordx4 v[{PK+4}:{PK+7}], v{vL16}, {WSS}, s{sC} offen offset:1024"], "hst")
        A(f"""
        v_lshlrev_b32 v{vT0}, 6, v{vJ}
        s_lshl_b32 s{sA}, s{sRB}, 12
        s_lshl_b32 s{sB}, s{sW}, 10
        s_add_u32 s{sA}, s{sA}, s{sB}
        s_lshl_b32 s{sB}, s{sCB}, 3
        s_add_u32 s{sA}, s{sA}, s{sB}
        s_add_u32 s{sA}, s{sA}, {WS_ST}
        v_cndmask_b32 v{S_+1}, v{G}, v{G+1}, s[{sM1}:{sM1+1}]
        v_cndmask_b32 v{S_+1}, v{S_+1}, v{G+2}, s[{sM2}:{sM2+1}]
        v_cndmask_b32 v{S_+1}, v{S_+1}, v{G+3}, s[{sM3}:{sM3+1}]
        s_mov_b64 exec, s[{sDiag}:{sDiag+1}]
        """)
        hstores(A, [f"buffer_store_dwordx2 v[{S_}:{S_+1}], v{vT0}, {WSS}, s{sA} offen"], "hst")
        A("s_mov_b64 exec, -1")
        stamp(A, "p2 stores issued")
        signal(A, 2, "hst")
        stamp(A, "p2 signalled")
    else:
        A(f"""
        s_lshl_b32 s{sB}, s{sCB}, 7
        s_add_u32 s{sC}, s{sA}, s{sB}
        """)
        for ct in range(4):
            A(f"buffer_store_dwordx2 v[{PK+2*ct}:{PK+2*ct+1}], v{vXo}, s[{SOUT}:{SOUT+3}], s{sC} offen offset:{ct*32}")


def p3(A, bq):
    vH4, vH2, vAr = 13, 14, 27
    cs = 32
    accs = [44, 68]
    Af = 92
    stts = [116, 124]
    tmp = 132
    A3 = 0
    A(f"""
    v_lshrrev_b32 v{vT0}, 1, v{vQ}
    v_mul_u32_u24 v{vT0}, {4*HHK*1024}, v{vT0}
    v_lshl_add_u32 v{vT0}, v{vJ}, 4, v{vT0}
    v_and_b32 v{vT1}, 1, v{vQ}
    s_lshr_b32 s{sA}, s{sW}, 1
    s_lshl_b32 s{sA}, s{sA}, 10
    s_and_b32 s{sB}, s{sW}, 1
    s_lshl_b32 s{sB}, s{sB}, 9
    s_add_u32 s{sA}, s{sA}, s{sB}
    v_lshl_add_u32 v{vH4}, v{vT1}, 8, v{vT0}
    v_add_u32 v{vH4}, s{sA}, v{vH4}
    s_lshl_b32 s{sA}, s{sW}, 8
    s_add_u32 s{sA}, s{sA}, 2048
    v_lshl_add_u32 v{vH2}, v{vT1}, 3, v{vT0}
    v_add_u32 v{vH2}, s{sA}, v{vH2}
    s_lshl_b32 s{sA}, s{sJ}, 2
    s_add_u32 s{sA}, s{sA}, s{sW}
    s_mul_i32 s{sA}, s{sA}, 3072
    s_add_u32 s{sA}, s{sA}, {WS_CS}
    """)
    for u in range(3):
        A(f"buffer_load_dwordx4 {v(cs+4*u,4)}, v{vSt}, {WSS}, s{sA} offen offset:{u*1024}{LSC}", tag="cs")
    emit(A, bq.take(opt("wd", 12)))
    stamp(A, "p3 before wait")
    wait_flags(A, 2, "-1")
    stamp(A, "p3 flags ok")

    def a_dma(c):
        it = []
        for ti in range(2):
            pre = f"""
            s_lshl_b32 s{sC}, s{sG}, 17
            s_add_u32 s{sC}, s{sC}, s{sW12}
            s_add_u32 s{sC}, s{sC}, {WS_H + (c+4*ti)*16384}
            s_add_u32 m0, s{sW12}, {A3 + (c%3)*32768 + ti*16384}
            """
            for n in range(4):
                it.append(((pre if n == 0 else "") + f"""
                buffer_load_dwordx4 v{vL16}, {WSS}, s{sC} offen offset:{n*1024}{LSC} lds""", f"a{c}"))
        return it

    def st_loads(c):
        it = []
        for ti in range(2):
            it.append((f"""
            s_lshl_b32 s{sA}, s{sG}, 13
            s_add_u32 s{sA}, s{sA}, {WS_ST + (c+4*ti)*1024}
            buffer_load_dwordx4 {v(stts[c%2]+4*ti,4)}, v{vSt}, {WSS}, s{sA} offen{LSC}""", f"s{c}"))
        return it

    def epilogue(c):
        acc, stt = accs[c % 2], stts[c % 2]
        it = []
        def add(t):
            if c < 3 and opt("unpk", 1) and t.startswith("v_pk_"):
                for x in unpack_pk(t):
                    it.append((x, None))
            else:
                it.append((t, None))
        it.append(lambda: A.wait_vm(f"s{c}"))
        for ti in range(2):
            b = stt + 4 * ti
            add(f"v_pk_add_f32 v[{b}:{b+1}], v[{b}:{b+1}], v[{b+2}:{b+3}]")
        for sw in ("v_permlane16_swap_b32", "v_permlane32_swap_b32"):
            for ti in range(2):
                b = stt + 4 * ti
                add(f"v_mov_b32 v{b+2}, v{b}")
                add(f"v_mov_b32 v{b+3}, v{b+1}")
            for ti in range(2):
                b = stt + 4 * ti
                add(f"{sw} v{b}, v{b+2}")
                add(f"{sw} v{b+1}, v{b+3}")
            for ti in range(2):
                b = stt + 4 * ti
                add(f"v_pk_add_f32 v[{b}:{b+1}], v[{b}:{b+1}], v[{b+2}:{b+3}]")
        for op in ("v_mul_f32 v{b}, 0x3b000000, v{b}", "v_mul_f32 v{b1}, 0x3b000000, v{b1}", "v_fma_f32 v{b1}, -v{b}, v{b}, v{b1}",
                   "v_max_f32 v{b1}, 0, v{b1}", "v_add_f32 v{b1}, " + f32hex(1e-5) + ", v{b1}", "v_rcp_f32 v{b1}, v{b1}"):
            for ti in range(2):
                b = stt + 4 * ti
                add(op.format(b=b, b1=b + 1))
        add(f"v_cmp_gt_u32 vcc, 32, v{vL}")
        for u in range(3):
            for ti in range(2):
                a = acc + (ti * 3 + u) * 4
                b = stt + 4 * ti
                for h in range(2):
                    add(f"v_pk_fma_f32 v[{a+2*h}:{a+2*h+1}], v[{cs+4*u+2*h}:{cs+4*u+2*h+1}], v[{b}:{b+1}], v[{a+2*h}:{a+2*h+1}] op_sel:[0,0,0] op_sel_hi:[1,0,1] neg_lo:[0,1,0] neg_hi:[0,1,0]")
        add(f"v_cndmask_b32 v{tmp}, v{stt+5}, v{stt+1}, vcc")
        for u in range(3):
            for r_ in range(4):
                add(f"v_permlane32_swap_b32 v{acc+u*4+r_}, v{acc+(3+u)*4+r_}")
        PK = tmp + 2
        for u in range(3):
            g, up = acc + u * 4, acc + (3 + u) * 4
            for r_ in range(4):
                add(f"v_max_f32 v{g+r_}, 0, v{g+r_}")
            for h in range(2):
                add(f"v_pk_mul_f32 v[{g+2*h}:{g+2*h+1}], v[{g+2*h}:{g+2*h+1}], v[{up+2*h}:{up+2*h+1}]")
            for h in range(2):
                add(f"v_pk_mul_f32 v[{g+2*h}:{g+2*h+1}], v[{g+2*h}:{g+2*h+1}], v[{tmp}:{tmp+1}] op_sel:[0,0] op_sel_hi:[1,0]")
            for h in range(2):
                add(f"v_cvt_pk_bf16_f32 v{PK+2*u+h}, v{g+2*h}, v{g+2*h+1}")
        def st():
            A(f"""
            s_mul_i32 s{sA}, s{sG}, {8*HHK*1024}
            s_mul_i32 s{sB}, s{sJ}, 3072
            s_add_u32 s{sA}, s{sA}, s{sB}
            s_add_u32 s{sA}, s{sA}, {WS_HH + c*HHK*1024}
            """)
            hstores(A, [f"buffer_store_dwordx4 v[{PK}:{PK+3}], v{vH4}, {WSS}, s{sA} offen",
                        f"buffer_store_dwordx2 v[{PK+4}:{PK+5}], v{vH2}, {WSS}, s{sA} offen"], "hhst")
        it.append(st)
        return it

    for rep in range(opt("p3rep", 0)):
        emit(A, a_dma(0) + a_dma(1) + a_dma(2))
        A("s_waitcnt vmcnt(0)")
        stamp(A, f"p3 rep{rep} landed")
    emit(A, a_dma(0) + st_loads(0) + a_dma(1))
    emit(A, bq.upto(64))
    emit(A, a_dma(2))
    bq.limit = 1000
    for mode in ("quad_perm:[1,0,3,2]", "quad_perm:[2,3,0,1]", "row_half_mirror", "row_mirror"):
        for i in range(12):
            A(f"v_add_f32_dpp v{cs+i}, v{cs+i}, v{cs+i} {mode} row_mask:0xf bank_mask:0xf")
    for c in range(4):
        acc = accs[c % 2]
        A.wait_vm(f"a{c}")
        A("s_waitcnt lgkmcnt(0)\ns_barrier")
        stamp(A, f"p3 chunk{c} start")
        fillv = epilogue(c - 1) if c > 0 else []
        fillm = (a_dma(3) if c == 1 else []) + (st_loads(c) if c > 0 else []) + bq.take(opt("we", 12))
        slot = c % 3
        if slot == 2:
            A(f"v_add_u32 v{vAr}, 65536, v{vL16}")
            off = 0
        else:
            A(f"v_mov_b32 v{vAr}, v{vL16}")
            off = slot * 32768
        rd = lambda ks, ti: (f"ds_read_b128 {v(Af+((ks%3)*2+ti)*4,4)}, v{vAr} offset:{off + ti*16384 + ks*1024}", f"f{ks}")
        for ks in range(2):
            emit(A, [rd(ks, 0), rd(ks, 1)])
        n = 0
        for ks in range(16):
            if ks + 2 < 16:
                emit(A, [rd(ks + 2, 0), rd(ks + 2, 1)])
            A.wait_lg(f"f{ks}")
            A.wait_vm(f"b3_{ks}")
            for ti in range(2):
                for u in range(3):
                    d = v(acc + (ti * 3 + u) * 4, 4)
                    A(f"{MF} {d}, {r(B3reg(ks,u),0,4)}, {v(Af+((ks%3)*2+ti)*4,4)}, {'0' if ks==0 else d}")
                    n += 1
                    if n > 3:
                        for _ in range(2 if n % 3 != 0 else 1):
                            if fillv:
                                emit(A, [fillv.pop(0)])
                    if n % 4 == 2 and fillm:
                        emit(A, [fillm.pop(0)])
        emit(A, fillv + fillm)
        stamp(A, f"p3 chunk{c} mfma done")
    emit(A, epilogue(3))
    stamp(A, "p3 stores issued")
    signal(A, 3, "hhst")
    stamp(A, "p3 signalled")


def main(path):
    A = Asm()
    label = NAME + "_kernel"
    A.raw("; @launch grid=(256,1,1) block=(256,1,1) lds=163840")
    A.raw('.amdgcn_target "amdgcn-amd-amdhsa--gfx950"\n.text')
    bq = BQ()
    prologue(A, label)
    p1(A, bq)
    ksplit(A, bq, 2)
    p3(A, bq)
    ksplit(A, bq, 4)
    A("s_waitcnt vmcnt(0) lgkmcnt(0)")
    if INSTR:
        stamp(A, "end")
        A(f"""
        s_memrealtime s[100:101]
        s_waitcnt lgkmcnt(0)
        v_writelane_b32 v{vSTAMP}, s100, 63
        s_lshl_b32 s{sA}, s2, 2
        s_add_u32 s{sA}, s{sA}, s{sW}
        s_lshl_b32 s{sA}, s{sA}, 8
        s_add_u32 s{sA}, s{sA}, {WS_PROF}
        buffer_store_dword v{vSTAMP}, v{vFo}, {WSS}, s{sA} offen
        s_waitcnt vmcnt(0)
        """)
        open(path + ".stamps", "w").write("\n".join(STAMPNAMES))
    A.raw("L_done:")
    A("s_endpgm")
    A.raw(f""".section .rodata,"a"
.p2align 6
.amdhsa_kernel {label}
  .amdhsa_next_free_vgpr 512
  .amdhsa_next_free_sgpr 102
  .amdhsa_accum_offset 256
  .amdhsa_group_segment_fixed_size 0
  .amdhsa_kernarg_size 80
  .amdhsa_user_sgpr_count 2
  .amdhsa_user_sgpr_kernarg_segment_ptr 1
  .amdhsa_system_sgpr_workgroup_id_x 1
.end_amdhsa_kernel""")
    open(path, "w").write(A.text())
    print("instructions", A.nins, "nops", A.nnop)


if __name__ == "__main__":
    main(sys.argv[1] if len(sys.argv) > 1 else f"k3.s")
```

```python
import re

REG_RE = re.compile(r"\b([vas])(\d+)\b|\b([vas])\[(\d+):(\d+)\]|\b(vcc|exec|m0|scc)\b")
TRANS = ("v_exp_f32", "v_log_f32", "v_rcp_f32", "v_rsq_f32", "v_sqrt_f32", "v_sin_f32", "v_cos_f32")


def regs_of(tok):
    out = []
    for m in REG_RE.finditer(tok):
        if m.group(1):
            out.append((m.group(1), int(m.group(2))))
        elif m.group(3):
            for i in range(int(m.group(4)), int(m.group(5)) + 1):
                out.append((m.group(3), i))
        else:
            out.append((m.group(6), 0))
    return out


def split_ops(s):
    ops, depth, cur = [], 0, ""
    for ch in s:
        if ch == "[":
            depth += 1
        if ch == "]":
            depth -= 1
        if ch == "," and depth == 0:
            ops.append(cur.strip())
            cur = ""
        else:
            cur += ch
    if cur.strip():
        ops.append(cur.strip())
    return ops


class Ins:
    __slots__ = ("text", "mn", "kind", "rd", "wr", "srcc", "srcab", "states", "dpp", "lds_dma", "wide_store")


def classify(text):
    t = text.split(";")[0].strip()
    I = Ins()
    I.text = text
    parts = t.split(None, 1)
    mn = parts[0]
    rest = parts[1] if len(parts) > 1 else ""
    I.mn = mn
    I.rd, I.wr, I.srcc, I.srcab = set(), set(), set(), set()
    I.states = 1
    I.dpp = ("row_" in rest) or ("quad_perm" in rest) or mn.endswith("_dpp")
    I.lds_dma = False
    I.wide_store = False
    ops = split_ops(rest)
    if ops:
        last = ops[-1].split()
        mods = last[1:]
        ops[-1] = last[0] if last else ""
    else:
        mods = []
    R = lambda i: set(regs_of(ops[i])) if i < len(ops) else set()
    allr = lambda a: set().union(*[R(i) for i in range(a, len(ops))]) if a < len(ops) else set()
    if mn == "s_nop":
        I.kind = "nop"
        I.states = int(ops[0], 0) + 1
    elif mn.startswith("v_mfma"):
        I.kind = "mfma"
        I.wr = R(0)
        I.srcab = R(1) | R(2)
        I.srcc = R(3)
        I.rd = I.srcab | I.srcc
    elif mn.startswith("v_"):
        I.kind = "valu"
        if mn.startswith("v_permlane") and "swap" in mn:
            I.wr = R(0) | R(1)
            I.rd = R(0) | R(1)
        elif mn.startswith("v_cmp"):
            I.wr = R(0)
            I.rd = allr(1)
        elif mn in ("v_add_co_u32", "v_sub_co_u32", "v_addc_co_u32", "v_subb_co_u32"):
            I.wr = R(0) | R(1)
            I.rd = allr(2)
        else:
            I.wr = R(0)
            I.rd = allr(1)
            if mn.startswith("v_fmac") or mn.startswith("v_dot2c") or I.dpp:
                I.rd |= R(0)
            if mn.startswith("v_cndmask") and len(ops) == 3:
                I.rd |= {("vcc", 0)}
    elif mn.startswith("ds_"):
        I.kind = "ds"
        if mn.startswith("ds_read") or mn.startswith("ds_bpermute") or mn.startswith("ds_swizzle") or mn.startswith("ds_permute"):
            I.wr = R(0)
            I.rd = allr(1)
        else:
            I.rd = allr(0)
    elif mn.startswith("buffer_") or mn.startswith("global_"):
        I.kind = "vmem"
        is_lds = ("lds" in mods) or ("_lds_" in mn)
        if mn in ("buffer_inv", "buffer_wbl2"):
            pass
        elif is_lds:
            I.lds_dma = True
            I.rd = allr(0) | {("m0", 0)}
        elif "_load" in mn:
            I.wr = R(0)
            I.rd = allr(1)
        elif "_store" in mn:
            I.rd = allr(0)
            I.wide_store = mn.endswith("x4") or mn.endswith("x3")
        elif "atomic" in mn:
            I.rd = allr(0)
            if "sc0" in mods:
                I.wr = R(0)
        else:
            raise ValueError(text)
    elif mn.startswith("s_"):
        I.kind = "salu"
        if mn.startswith("s_load") or mn.startswith("s_memtime") or mn.startswith("s_memrealtime") or mn.startswith("s_atomic"):
            I.kind = "smem"
            I.wr = R(0)
            I.rd = allr(1)
        elif mn.startswith("s_cmp") or mn.startswith("s_cbranch") or mn.startswith("s_branch") or mn.startswith("s_bitcmp") or mn in (
            "s_waitcnt", "s_barrier", "s_endpgm", "s_sleep", "s_setprio"):
            I.rd = allr(0)
        elif "saveexec" in mn:
            I.wr = R(0) | {("exec", 0)}
            I.rd = allr(1)
        else:
            I.wr = R(0)
            I.rd = allr(1)
    else:
        raise ValueError("unknown instruction: " + text)
    return I


def vec(rs):
    return {r for r in rs if r[0] in ("v", "a")}


def sca(rs):
    return {r for r in rs if r[0] in ("s", "vcc")}


def mfma_passes(mn):
    if "32x32" in mn:
        return 8
    return 4


def need_states(p, c):
    n = 0
    if p.kind == "valu":
        pw = vec(p.wr)
        if c.kind == "mfma" and pw & c.rd:
            n = max(n, 2)
        if c.kind == "valu":
            if c.mn.startswith("v_permlane") and pw & c.rd:
                n = max(n, 2)
            if c.dpp and pw & c.rd:
                n = max(n, 2)
            if (c.mn.startswith("v_readfirstlane") or c.mn.startswith("v_readlane")) and pw & c.rd:
                n = max(n, 1)
            if p.mn in TRANS and c.mn not in TRANS and pw & (c.rd | c.wr):
                n = max(n, 1)
            if sca(p.wr) & c.rd:
                n = max(n, 4 if c.mn.startswith("v_readlane") or c.mn.startswith("v_writelane") else 2)
            if "op_sel" in p.text and pw & (c.rd | c.wr):
                n = max(n, 1)
        if p.mn.startswith("v_dot") and pw & (c.rd | c.wr):
            if not (c.mn == p.mn and not (pw & (set(regs_of(split_ops(c.text.split(None,1)[1])[1])) | set(regs_of(split_ops(c.text.split(None,1)[1])[2]))))):
                n = max(n, 3)
        if c.kind == "vmem" and sca(p.wr) & c.rd:
            n = max(n, 5)
        if c.kind in ("salu", "smem") and sca(p.wr) & c.rd:
            n = max(n, 2)
        if p.mn in TRANS and c.kind in ("ds", "vmem", "mfma") and pw & c.rd:
            n = max(n, 2)
    if p.kind == "mfma":
        ps = mfma_passes(p.mn)
        big = {4: 8, 8: 12}[ps]
        if c.kind == "mfma":
            if p.wr & c.srcab:
                n = max(n, big)
            if p.wr & c.srcc:
                if c.srcc == p.wr and mfma_passes(c.mn) == ps and c.mn == p.mn:
                    pass
                else:
                    n = max(n, {4: 6, 8: 10}[ps])
            elif p.wr & c.wr:
                n = max(n, {4: 6, 8: 10}[ps])
        elif c.kind in ("valu", "ds", "vmem"):
            if p.wr & (c.rd | c.wr):
                n = max(n, big)
            if c.kind == "valu" and p.srcc & c.wr:
                n = max(n, {4: 3, 8: 7}[ps])
            if c.kind in ("ds", "vmem") and p.srcc & c.wr:
                n = max(n, {4: 3, 8: 7}[ps])
    if p.kind == "salu":
        if ("m0", 0) in p.wr and c.kind == "vmem" and c.lds_dma:
            n = max(n, 1)
    if p.kind == "vmem" and p.wide_store:
        if vec(p.rd) & c.wr:
            n = max(n, 2)
    if p.kind == "ds" and p.mn in ("ds_write_b128", "ds_write_b96"):
        if vec(p.rd) & c.wr and c.kind == "valu":
            n = max(n, 1)
    return n


class Asm:
    def __init__(self):
        self.out = []
        self.hist = []
        self.vm = []
        self.lg = []
        self.nins = 0
        self.nnop = 0
        self.every = None
        self._ecnt = 0

    def raw(self, text):
        self.out.append(text)

    def comment(self, text):
        self.out.append("    ; " + text)

    def label(self, name, pad=True):
        self.out.append(name + ":")

    def fence(self, n=12):
        d = 0
        need = 0
        for p in reversed(self.hist):
            if p.kind == "mfma":
                need = max(need, 12 - d)
            elif p.kind == "valu":
                need = max(need, 5 - d)
            elif p.kind in ("salu", "vmem", "ds"):
                need = max(need, 2 - d)
            d += p.states
            if d > 24:
                break
        self._nops(need)

    def _nops(self, k):
        while k > 0:
            m = min(k, 16)
            I = classify("s_nop %d" % (m - 1))
            self.out.append("    s_nop %d" % (m - 1))
            self.hist.append(I)
            self.nnop += 1
            k -= m

    def __call__(self, text, tag=None):
        for line in text.strip().split("\n"):
            line = line.strip()
            if not line:
                continue
            if line.startswith(";"):
                self.out.append("    " + line)
                continue
            if line.endswith(":"):
                self.label(line[:-1])
                continue
            I = classify(line)
            d = 0
            need = 0
            for p in reversed(self.hist):
                n = need_states(p, I)
                if n - d > need:
                    need = n - d
                d += p.states
                if d > 24:
                    break
            self._nops(need)
            self.out.append("    " + line)
            self.hist.append(I)
            if len(self.hist) > 64:
                self.hist = self.hist[-40:]
            self.nins += 1
            if self.every and I.kind == "valu":
                self._ecnt += 1
                if self._ecnt >= self.every[0]:
                    self._ecnt = 0
                    cb, sv = self.every[1], self.every
                    self.every = None
                    cb()
                    self.every = sv
            if I.kind == "vmem" and I.mn not in ("buffer_inv", "buffer_wbl2"):
                self.vm.append(tag)
            elif I.kind == "ds":
                self.lg.append(tag)
            elif I.mn == "s_waitcnt":
                m = re.search(r"vmcnt\((\d+)\)", line)
                if m:
                    n = int(m.group(1))
                    keep, cnt = len(self.vm), 0
                    while keep > 0 and cnt < n:
                        keep -= 1
                        t = self.vm[keep]
                        if not (isinstance(t, str) and t.startswith("~")):
                            cnt += 1
                    self.vm = self.vm[keep:]
                m = re.search(r"lgkmcnt\((\d+)\)", line)
                if m:
                    n = int(m.group(1))
                    self.lg = self.lg[len(self.lg) - n:] if n < len(self.lg) else self.lg
                    if n == 0:
                        self.lg = []

    def _cnt(self, q, tags):
        if not isinstance(tags, (list, tuple, set)):
            tags = [tags]
        last = -1
        for i, t in enumerate(q):
            if t in tags:
                last = i
        if last < 0:
            return None
        return sum(1 for t in q[last + 1:] if not (isinstance(t, str) and t.startswith("~")))

    def wait_vm(self, tags):
        n = self._cnt(self.vm, tags)
        if n is None:
            return
        self("s_waitcnt vmcnt(%d)" % min(n, 63))

    def wait_lg(self, tags):
        n = self._cnt(self.lg, tags)
        if n is None:
            return
        self("s_waitcnt lgkmcnt(%d)" % min(n, 15))

    def text(self):
        return "\n".join(self.out) + "\n"


def v(a, n=1):
    return "v%d" % a if n == 1 else "v[%d:%d]" % (a, a + n - 1)


def a_(a, n=1):
    return "a%d" % a if n == 1 else "a[%d:%d]" % (a, a + n - 1)


def s(a, n=1):
    return "s%d" % a if n == 1 else "s[%d:%d]" % (a, a + n - 1)


def r(spec, off=0, n=1):
    k, b = spec
    return (v if k == "v" else a_)(b + off, n)
```

```python
import sys, os, struct, re
from asmlib import *

NAME = "sequential_preLN__sliding_local_dilated__glu_gated_reglu__prompt"
INSTR = int(os.environ.get("INSTR", "0"))
OPT = dict(x.split("=") for x in os.environ.get("OPT", "").split(",") if x)
def opt(k, d):
    return int(OPT.get(k, d))

WS_O = 0x100000
WS_H = 0x300000
WS_HH = 0x500000
WS_ST = 0xC00000
WS_PROF = 0xE00000
WS_R3 = 0x1000000
WS_R2 = 0x1400000
WS_R4 = 0x1500000
WS_CS = 0x1700000
WS_S1 = 0x1780000
WS_ARR = 0x8000
WS_SIZE = 0x2000000
HHK = 48

SX, SWQ, SWO, SWG, SWU, SWD, SOUT, SWS, SDBG, SB3 = 4, 8, 12, 16, 20, 24, 28, 32, 36, 40
sW, sG, sJ, sHB, sCB, sRB, sIDX = 64, 65, 66, 67, 68, 69, 70
sA, sB, sC = 71, 72, 73
sBA = 74
sFAST = 75
sNON, sFLG, sCNT = 76, 77, 78
sK4 = 79
sB3b = 80
sB2l, sB2h, sB4l, sB4h, sB4zl, sB4zh = 12, 13, 14, 15, 16, 17
sM1, sM2, sM3, sDiag = 84, 86, 88, 90
sEX0, sEX2, sW0 = 92, 94, 96
sHM = 98
sKC0, sXo0, sXo1, sXo2, sXl, sXl2, sWl, sWs = 44, 45, 46, 47, 48, 49, 50, 51
sXCC = 3
sW12, sFLA, sW1, sWH = 60, 61, 62, 63

vL, vJ, vQ, vL16 = 1, 2, 3, 4
vOld, vF, vFo = 5, 6, 7
vT0, vT1, vT2, vT3 = 8, 9, 10, 11
vSTAMP = 15
vDs = 16
vSt = 17
HRES = 18
ones = 28

SLOT = 34816
STG = 104448
MISC = 153600

LOG2E = 1.4426950408889634
MF = "v_mfma_f32_16x16x32_bf16"
MF16 = "v_mfma_f32_16x16x16_bf16"
WSS = f"s[{SWS}:{SWS+3}]"


def f32hex(x):
    return "0x%08x" % struct.unpack("<I", struct.pack("<f", x))[0]


STAMPN = [0]
STAMPNAMES = []
def stamp(A, name=""):
    if not INSTR:
        return
    if INSTR == 2 and not any(k in name for k in ("start", "end", "loop done", "mfma done", "bar0")):
        return
    i = STAMPN[0]
    STAMPN[0] += 1
    STAMPNAMES.append(name)
    assert i < 60
    A(f"s_memtime s[100:101]\ns_waitcnt lgkmcnt(0)\nv_writelane_b32 v{vSTAMP}, s100, {i}")


def emit(A, items):
    for it in items:
        if callable(it):
            it()
        else:
            A(it[0], tag=it[1])


def weave(main, fills):
    out = []
    pos = [0] * len(fills)
    for i, m in enumerate(main):
        out.append(m)
        for k, (items, start, per) in enumerate(fills):
            if i >= start:
                n = per(i) if callable(per) else per
                out.extend(items[pos[k]:pos[k] + n])
                pos[k] += n
    for k, (items, start, per) in enumerate(fills):
        out.extend(items[pos[k]:])
    return out


def unpack_pk(t):
    mn, rest = t.split(None, 1)
    toks = rest.split()
    ops = [x.strip(",") for x in toks if x.startswith("v[")]
    mods = {x.split(":")[0]: eval(x.split(":", 1)[1]) for x in toks if x.startswith(("op_sel", "neg_"))}
    n = len(ops) - 1
    base = [int(re.match(r"v\[(\d+):", o).group(1)) for o in ops]
    sel_lo = mods.get("op_sel", [0] * n)
    sel_hi = mods.get("op_sel_hi", [1] * n)
    neg_lo = mods.get("neg_lo", [0] * n)
    neg_hi = mods.get("neg_hi", [0] * n)
    op = {"v_pk_add_f32": "v_add_f32", "v_pk_mul_f32": "v_mul_f32", "v_pk_fma_f32": "v_fma_f32"}[mn]
    out = []
    for half, sel, neg in ((0, sel_lo, neg_lo), (1, sel_hi, neg_hi)):
        srcs = [("-" if neg[i] else "") + f"v{base[i+1] + sel[i]}" for i in range(n)]
        out.append(f"{op} v{base[0]+half}, " + ", ".join(srcs))
    return out


def B2reg(st, ct):
    return ("a", 192 + (st * 4 + ct) * 4)
def B4reg(st, ct):
    if st < 4:
        return ("a", 192 + (st * 4 + ct) * 4)
    if st < 7:
        return ("v", 208 + ((st - 4) * 4 + ct) * 4)
    return ("a", ((st - 7) * 4 + ct) * 4)
def B3reg(ks, u):
    return ("a", (ks * 3 + u) * 4)


class BQ:
    def __init__(self):
        q = []
        def kload(reg, lo, hi, st, ct, tag, zl=None, zh=None):
            base = (lo if ct < 2 else hi)
            if zl is not None:
                pre = f"s_mov_b32 s{sBA}, s{zl if ct < 2 else zh}"
            else:
                pre = f"s_add_u32 s{sBA}, s{base}, {st*4096}"
            return (f"{pre}\nbuffer_load_dwordx4 {r(reg,0,4)}, v{vL16}, {WSS}, s{sBA} offen offset:{(ct&1)*1024}", tag)
        for st in range(4):
            for ct in range(4):
                q.append(kload(B2reg(st, ct), sB2l, sB2h, st, ct, f"b2_{st}"))
        for n in range(48):
            ks, u = divmod(n, 3)
            q.append((f"s_add_u32 s{sBA}, s{sB3b}, {(n//4)*4096}\nbuffer_load_dwordx4 {r(B3reg(ks,u),0,4)}, v{vL16}, {WSS}, s{sBA} offen offset:{(n%4)*1024}", f"b3_{ks}"))
        for st in range(11):
            for ct in range(4):
                if st == 0:
                    q.append(kload(B4reg(st, ct), sB4l, sB4h, st, ct, f"b4_{st}", sB4zl, sB4zh))
                else:
                    q.append(kload(B4reg(st, ct), sB4l, sB4h, st, ct, f"b4_{st}"))
        self.q = q
        self.pos = 0
        self.limit = 64

    def take(self, n):
        e = max(self.pos, min(self.pos + n, self.limit, len(self.q)))
        out = self.q[self.pos:e]
        self.pos = e
        return out

    def upto(self, idx):
        return self.take(max(0, idx - self.pos))


LBL = [0]
def newlbl():
    LBL[0] += 1
    return LBL[0]


def wait_flags(A, step, mask):
    n = newlbl()
    A.fence()
    A(f"s_mov_b32 s{sCNT}, 0\ns_add_u32 s{sBA}, s{sNON}, {step}")
    A.raw(f"L_wait{n}:")
    A(f"""
    buffer_load_dword v{vF}, v{vFo}, {WSS}, s{sFLG} offen sc1
    s_waitcnt vmcnt(0)
    v_subrev_u32 v{vF}, s{sBA}, v{vF}
    v_cmp_lt_u32 vcc, 15, v{vF}
    s_and_b64 vcc, vcc, {mask}
    s_cbranch_scc0 L_go{n}
    s_add_u32 s{sCNT}, s{sCNT}, 1
    s_cmp_lt_u32 s{sCNT}, 0x40000
    s_cbranch_scc1 L_wait{n}
    """)
    A.raw(f"L_go{n}:")
    A.fence()


def probe(A, tag):
    A(f"buffer_load_dword v{vF}, v{vFo}, {WSS}, s{sFLG} offen sc1", tag=tag)


def check_flags(A, step, mask, tag):
    n = newlbl()
    A.wait_vm(tag)
    saved = list(A.vm)
    A.fence()
    A(f"""
    s_mov_b32 s{sCNT}, 0
    s_add_u32 s{sBA}, s{sNON}, {step}
    """)
    A.raw(f"L_wait{n}:")
    A(f"""
    v_subrev_u32 v{vF}, s{sBA}, v{vF}
    v_cmp_lt_u32 vcc, 15, v{vF}
    s_and_b64 vcc, vcc, {mask}
    s_cbranch_scc0 L_go{n}
    buffer_load_dword v{vF}, v{vFo}, {WSS}, s{sFLG} offen sc1
    s_waitcnt vmcnt(0)
    s_add_u32 s{sCNT}, s{sCNT}, 1
    s_cmp_lt_u32 s{sCNT}, 0x40000
    s_cbranch_scc1 L_wait{n}
    """)
    A.raw(f"L_go{n}:")
    A.vm = saved
    A.fence()


class SQ:
    def __init__(self):
        first = opt("sq0", 24)
        self.q = [kb * 1024 + l * 128 for kb in range(first, 48, 2) for l in range(8)]
        self.pos = 0
    def take(self, n):
        if not opt("smem", 1):
            return []
        out = self.q[self.pos:self.pos + n]
        self.pos += len(out)
        return [(f"s_load_dword s20, s[18:19], {o}", None) for o in out]
SQ_ = [None]


def signal(A, step, tags):
    A.wait_vm(tags)
    n = newlbl()
    A(f"""
    s_add_u32 s{sBA}, s{sNON}, {step}
    v_mov_b32 v{vT0}, s{sBA}
    v_mov_b32 v{vT1}, 0
    s_mov_b64 exec, 1
    s_cmp_eq_u32 s{sFAST}, 1
    s_cbranch_scc1 L_hf{n}
    buffer_store_dword v{vT0}, v{vT1}, {WSS}, s{sFLA} offen sc1
    s_branch L_he{n}
    """)
    A.raw(f"L_hf{n}:")
    A.raw(f"    buffer_store_dword v{vT0}, v{vT1}, {WSS}, s{sFLA} offen")
    A.raw(f"L_he{n}:")
    A("s_mov_b64 exec, -1")


VA = 244


def arrival_probe(A, tag):
    A(f"buffer_load_dwordx4 v[{VA}:{VA+3}], v{vOld}, {WSS}, 0 offen sc1", tag=tag)


def arrival_check(A, lbl_ok):
    A(f"""
    v_subrev_u32 v{VA}, s{sNON}, v{VA}
    v_subrev_u32 v{VA+1}, s{sNON}, v{VA+1}
    v_subrev_u32 v{VA+2}, s{sNON}, v{VA+2}
    v_subrev_u32 v{VA+3}, s{sNON}, v{VA+3}
    v_or_b32 v{vT0}, v{VA}, v{VA+1}
    v_or3_b32 v{vT0}, v{vT0}, v{VA+2}, v{VA+3}
    v_cmp_lt_u32 vcc, 15, v{vT0}
    s_and_b64 vcc, vcc, -1
    s_cbranch_scc0 {lbl_ok}
    """)


def wait_arrival(A):
    n = newlbl()
    A.wait_vm("~arr")
    saved = list(A.vm)
    A.fence()
    A(f"s_cmp_eq_u32 s{sW}, 0\ns_cbranch_scc0 L_skip{n}")
    arrival_check(A, f"L_go{n}")
    A(f"s_mov_b32 s{sCNT}, 0")
    A.raw(f"L_wait{n}:")
    A(f"s_sleep {opt('slp', 2)}")
    arrival_probe(A, None)
    A("s_waitcnt vmcnt(0)")
    arrival_check(A, f"L_go{n}")
    A(f"""
    s_add_u32 s{sCNT}, s{sCNT}, 1
    s_cmp_lt_u32 s{sCNT}, 0x20000
    s_cbranch_scc1 L_wait{n}
    """)
    A.raw(f"L_go{n}:")
    A.fence()
    A(f"""
    v_xor_b32 v{VA}, s{sXCC}, v{VA}
    v_xor_b32 v{VA+1}, s{sXCC}, v{VA+1}
    v_xor_b32 v{VA+2}, s{sXCC}, v{VA+2}
    v_xor_b32 v{VA+3}, s{sXCC}, v{VA+3}
    v_or_b32 v{vT0}, v{VA}, v{VA+1}
    v_or3_b32 v{vT0}, v{vT0}, v{VA+2}, v{VA+3}
    v_cmp_ne_u32 vcc, 0, v{vT0}
    s_lshl_b32 s{sBA}, s{sG}, 2
    s_lshr_b64 vcc, vcc, s{sBA}
    s_and_b32 s{sBA}, vcc_lo, 15
    s_cmp_eq_u32 s{sBA}, 0
    s_cselect_b32 s{sBA}, {opt("fast", 1)}, 0
    v_mov_b32 v{vT0}, s{sBA}
    v_mov_b32 v{vT1}, {MISC + 2048}
    ds_write_b32 v{vT1}, v{vT0}
    """)
    A.raw(f"L_skip{n}:")
    A.vm = saved
    A.fence()


def wait_nonce(A):
    n = newlbl()
    A.wait_vm("~non")
    saved = list(A.vm)
    A.fence()
    A(f"""
    s_cmp_eq_u32 s{sW}, 0
    s_cbranch_scc0 L_skip{n}
    s_mov_b32 s{sBA}, 0
    v_mov_b32 v{vT3}, 0
    """)
    A.raw(f"L_wait{n}:")
    A(f"""
    v_readfirstlane_b32 s{sNON}, v{vF}
    s_cmp_lg_u32 s{sNON}, 0
    s_cbranch_scc1 L_go{n}
    s_sleep 2
    """)
    A(f"buffer_load_dword v{vF}, v{vT3}, s[{SDBG}:{SDBG+3}], 0 offen sc1")
    A(f"""
    s_waitcnt vmcnt(0)
    s_add_u32 s{sBA}, s{sBA}, 1
    s_cmp_lt_u32 s{sBA}, 0x20000
    s_cbranch_scc1 L_wait{n}
    """)
    A.raw(f"L_go{n}:")
    A.fence()
    A(f"""
    v_mov_b32 v{vT1}, {MISC + 2052}
    ds_write_b32 v{vT1}, v{vF}
    """)
    A.raw(f"L_skip{n}:")
    A.vm = saved
    A.fence()


def prologue(A, label):
    A.raw(".p2align 8\n.globl %s\n.type %s,@function\n%s:" % (label, label, label))
    if INSTR:
        A("s_memrealtime s[100:101]\ns_waitcnt lgkmcnt(0)\nv_writelane_b32 v15, s100, 62")
        stamp(A, "start")
    A(f"""
    s_cmp_ge_u32 s2, 256
    s_cbranch_scc1 L_done
    s_load_dwordx16 s[44:59], s[0:1], 0
    s_load_dwordx4 s[60:63], s[0:1], 64
    """)
    if opt("cpf", 1):
        A("s_getpc_b64 s[84:85]")
        A.raw("L_pc:")
        A(f"""
        s_lshr_b32 s86, s2, 3
        s_lshl_b32 s86, s86, 10
        v_lshrrev_b32 v{vT3}, 5, v0
        v_lshlrev_b32 v{vT3}, 7, v{vT3}
        v_add_u32 v{vT3}, s86, v{vT3}
        v_min_u32 v{vT3}, L_done-L_pc, v{vT3}
        global_load_dword v{vF}, v{vT3}, s[84:85]
        """)
    A(f"""
    v_and_b32 v{vL}, 63, v0
    v_lshrrev_b32 v{vT0}, 6, v0
    s_lshr_b32 s{sIDX}, s2, 3
    s_and_b32 s{sG}, s2, 7
    s_lshl_b32 s{sG}, s{sG}, 1
    v_readfirstlane_b32 s{sW}, v{vT0}
    s_lshr_b32 s{sA}, s{sIDX}, 4
    s_add_u32 s{sG}, s{sG}, s{sA}
    s_and_b32 s{sJ}, s{sIDX}, 15
    s_lshr_b32 s{sHB}, s{sJ}, 3
    s_and_b32 s{sCB}, s{sJ}, 7
    s_lshl_b32 s{sRB}, s{sG}, 1
    s_add_u32 s{sRB}, s{sRB}, s{sHB}
    s_lshl_b32 s{sFLG}, s{sG}, 8
    v_and_b32 v{vJ}, 15, v{vL}
    v_lshrrev_b32 v{vQ}, 4, v{vL}
    v_lshlrev_b32 v{vL16}, 4, v{vL}
    v_lshlrev_b32 v{vFo}, 2, v{vL}
    v_lshrrev_b32 v{vT0}, 3, v{vL}
    v_and_b32 v{vT1}, 7, v{vL}
    v_and_b32 v{vT2}, 6, v{vT0}
    v_xor_b32 v{vT2}, v{vT1}, v{vT2}
    v_lshlrev_b32 v{vT2}, 4, v{vT2}
    v_lshl_add_u32 v{vDs}, v{vT0}, 10, v{vT2}
    v_mov_b32 v{ones}, 0x3f803f80
    v_mov_b32 v{ones+1}, 0x3f803f80
    v_mov_b32 v{ones+2}, 0x3f803f80
    v_mov_b32 v{ones+3}, 0x3f803f80
    v_lshlrev_b32 v{vSt}, 8, v{vJ}
    v_lshl_add_u32 v{vSt}, v{vQ}, 4, v{vSt}
    s_getreg_b32 s{sXCC}, hwreg(HW_REG_XCC_ID)
    s_and_b32 s{sXCC}, s{sXCC}, 15
    s_memrealtime s[86:87]
    v_lshrrev_b32 v{vT0}, 1, v{vL}
    v_and_b32 v{vT1}, 1, v{vL}
    v_lshlrev_b32 v{vT1}, 4, v{vT1}
    v_lshl_add_u32 v{vOld}, v{vT0}, 7, v{vT1}
    v_add_u32 v{vOld}, {WS_ARR}, v{vOld}
    s_mov_b32 s{sFAST}, 0
    """)


SRDTAB = {
    "x": (SX, 44, 2048 * 512 * 2), "wq": (SWQ, 46, 512 * 1536 * 2), "wo": (SWO, 48, 512 * 512 * 2),
    "wg": (SWG, 52, 512 * 1376 * 2), "wu": (SWU, 54, 512 * 1376 * 2), "wd": (SWD, 56, 1376 * 512 * 2),
    "out": (SOUT, 58, 2048 * 512 * 2), "ws": (SWS, 62, WS_SIZE), "dbg": (SDBG, 60, 256),
}


def build_srds(A, names):
    for k in names:
        d, p, n = SRDTAB[k]
        A(f"""
        s_mov_b32 s{d}, s{p}
        s_and_b32 s{d+1}, s{p+1}, 0xffff
        s_mov_b32 s{d+2}, {n}
        s_mov_b32 s{d+3}, 0x20000
        """)


def p1(A, bq):
    ST = MISC
    vWe, vWo_, vA0, vA1, vWt = 32, 33, 34, 35, 36
    vA0b, vA1b, vWtb = 37, 38, 39
    vSa, vSc, vSl, vOst = 40, 41, 42, 43
    accQ, accK, accV = 48, 68, 88
    Af = [108, 128]
    Wf = [148, 160]
    biasP, biasC, biasF, selLo, selHi = 196, 200, 204, 208, 209
    WO = 10240
    vD3 = 172
    vTr3 = 175
    vTrS = 178
    XR = 180
    S1, S2 = 188, 189
    vXr = 192
    RT = 212
    CSP = 232
    A(f"""
    s_and_b32 s{sA}, s{sW}, 1
    s_lshl_b32 s{sA}, s{sA}, 5
    """)
    for n in range(3):
        A(f"""
        v_add_u32 v{vT0}, {64*n}, v{vL}
        v_mul_u32_u24 v{vT1}, 43691, v{vT0}
        v_lshrrev_b32 v{vT1}, 19, v{vT1}
        v_mul_u32_u24 v{vT2}, 12, v{vT1}
        v_sub_u32 v{vT0}, v{vT0}, v{vT2}
        v_bfe_u32 v{vT2}, v{vT1}, 2, 1
        v_xor_b32 v{vT0}, v{vT0}, v{vT2}
        v_mul_u32_u24 v{vT1}, 2752, v{vT1}
        v_lshl_add_u32 v{vT0}, v{vT0}, 4, v{vT1}
        v_xor_b32 v{vT0}, s{sA}, v{vT0}
        v_subrev_u32 v{vD3+n}, {1024*n}, v{vT0}
        """)
    A(f"""
    v_lshlrev_b32 v{vXr}, 5, v{vL}
    v_lshrrev_b32 v{vT0}, 3, v{vL}
    v_and_b32 v{vT1}, 7, v{vL}
    v_and_b32 v{vT2}, 2, v{vT0}
    v_xor_b32 v{vT2}, v{vT1}, v{vT2}
    v_lshlrev_b32 v{vT2}, 4, v{vT2}
    v_mul_u32_u24 v{vWe}, 3072, v{vT0}
    v_add_u32 v{vWe}, v{vWe}, v{vT2}
    v_xor_b32 v{vWo_}, 64, v{vWe}
    v_add_u32 v{vWo_}, 24576, v{vWo_}
    """)
    A(f"""
    s_lshr_b32 s{sA}, s{sW}, 1
    s_lshl_b32 s{sB}, s{sG}, 1
    s_add_u32 s{sA}, s{sA}, s{sB}
    s_mul_i32 s{sA}, s{sA}, {16*2752}
    s_mul_i32 s{sB}, s{sJ}, 192
    s_add_u32 s81, s{sA}, s{sB}
    s_cmp_eq_u32 s{sJ}, 15
    s_cselect_b32 s81, 0x7f000000, s81
    s_cmp_lt_u32 s2, 64
    s_cselect_b32 s{sA}, 0, 128
    s_cselect_b32 s{sCNT}, 16, 48
    s_mov_b32 s83, {WS_R4}
    s_cselect_b32 s83, {WS_R2}, s83
    s_lshl_b32 s{sBA}, s2, 1
    s_sub_u32 s{sBA}, s{sBA}, s{sA}
    s_lshr_b32 s{sA}, s{sBA}, 3
    s_and_b32 s{sB}, s{sBA}, 7
    s_mul_i32 s{sC}, s{sB}, s{sCNT}
    s_add_u32 s{sC}, s{sC}, s{sA}
    s_lshl_b32 s{sC}, s{sC}, 12
    s_add_u32 s83, s83, s{sC}
    s_lshl_b32 s{sC}, s{sW}, 10
    s_add_u32 s83, s83, s{sC}
    s_lshl_b32 s{sCNT}, s{sCNT}, 12
    s_lshl_b32 s{sA}, s{sA}, 15
    s_lshl_b32 s{sB}, s{sB}, 7
    s_add_u32 s{sA}, s{sA}, s{sB}
    s_lshl_b32 s{sB}, s{sW}, 13
    s_add_u32 s82, s{sA}, s{sB}
    s_waitcnt lgkmcnt(0)
    s_and_b32 s{sA}, s{sW}, 1
    s_cmp_eq_u32 s{sA}, 0
    s_cselect_b32 s{SB3}, s52, s54
    s_cselect_b32 s{SB3+1}, s53, s55
    s_and_b32 s{SB3+1}, s{SB3+1}, 0xffff
    s_mov_b32 s{SB3+2}, {512*1376*2}
    s_mov_b32 s{SB3+3}, 0x20000
    s_mul_i32 s{sB}, s{sW}, 3072
    s_add_u32 m0, s{sB}, {STG}
    """)
    stamp(A, "kernarg ok")
    build_srds(A, ["dbg"])
    A(f"""
    s_lshl_b32 s86, s86, 5
    s_or_b32 s86, s86, 16
    v_mov_b32 v{vT0}, s86
    v_mov_b32 v{vT1}, 0
    v_mov_b32 v{vT2}, 0
    s_lshl_b32 s87, s2, 2
    s_add_u32 s87, s87, s{sW}
    s_and_b32 s87, s87, 0xffffffe3
    s_cmp_eq_u32 s87, 0
    s_cselect_b64 exec, 1, 0
    """)
    A(f"buffer_atomic_cmpswap v[{vT0}:{vT1}], v{vT2}, s[{SDBG}:{SDBG+3}], 0 offen sc1", tag="~cas")
    A("s_mov_b64 exec, -1")
    for n in range(3):
        A(f"buffer_load_dwordx4 v{vD3+n}, s[{SB3}:{SB3+3}], s81 offen offset:{n*1024} lds", tag="pre")
    A(f"""
    s_cmp_lt_u32 s2, 64
    s_cselect_b32 s{SWO}, s48, s56
    s_cselect_b32 s{SWO+1}, s49, s57
    s_and_b32 s{SWO+1}, s{SWO+1}, 0xffff
    s_mov_b32 s{SWO+2}, {1376*512*2}
    s_cmp_lt_u32 s2, 64
    s_cselect_b32 s{SWO+2}, {512*512*2}, s{SWO+2}
    s_mov_b32 s{SWO+3}, 0x20000
    s_add_u32 m0, s{sC}, {STG + 12288}
    """)
    A(f"buffer_load_dwordx4 v{vDs}, s[{SWO}:{SWO+3}], s82 offen lds", tag="pre")
    A(f"""
    s_add_u32 m0, s{sC}, {STG + 12288 + 4096}
    s_add_u32 s82, s82, 128
    """)
    A(f"buffer_load_dwordx4 v{vDs}, s[{SWO}:{SWO+3}], s82 offen lds", tag="pre")
    build_srds(A, ["x"])
    A(f"""
    s_lshl_b32 s{sA}, s{sRB}, 16
    s_lshl_b32 s{sB}, s{sCB}, 13
    s_add_u32 s{sA}, s{sA}, s{sB}
    s_lshl_b32 s{sB}, s{sW}, 11
    s_add_u32 s{sA}, s{sA}, s{sB}
    """)
    A(f"buffer_load_dwordx4 v[{XR}:{XR+3}], v{vXr}, s[{SX}:{SX+3}], s{sA} offen", tag="pre")
    A(f"buffer_load_dwordx4 v[{XR+4}:{XR+7}], v{vXr}, s[{SX}:{SX+3}], s{sA} offen offset:16", tag="pre")
    build_srds(A, ["ws", "wq", "out"])
    A(f"buffer_load_dword v{vF}, v{vFo}, {WSS}, s{sFLG} offen sc1", tag="pre")
    xrot = f"s_and_b32 s{sB}, s2, 7" if opt("xrot", 1) else f"s_mov_b32 s{sB}, 0"
    crot = f"s_lshl_b32 s{sA}, s{sA}, 2" if opt("crot", 1) else f"s_mov_b32 s{sA}, 0"
    A(f"""
    s_lshr_b32 s{sA}, s{sIDX}, 3
    s_add_u32 s{sA}, s{sA}, s{sCB}
    s_and_b32 s{sA}, s{sA}, 1
    {crot}
    {xrot}
    s_add_u32 s{sKC0}, s{sA}, s{sB}
    s_lshl_b32 s{sA}, s{sRB}, 16
    s_sub_u32 s{sA}, s{sA}, 16384
    s_lshl_b32 s{sB}, s{sW}, 14
    s_add_u32 s{sXo0}, s{sA}, s{sB}
    s_add_u32 s{sXo1}, s{sXo0}, 8192
    s_max_i32 s{sXo0}, s{sXo0}, 0
    s_max_i32 s{sXo1}, s{sXo1}, 0
    s_lshr_b32 s{sWH}, s{sW}, 1
    s_and_b32 s{sW1}, s{sW}, 1
    s_lshl_b32 s{sC}, s{sWH}, 13
    s_add_u32 s{sXo2}, s{sA}, s{sC}
    s_add_u32 s{sXo2}, s{sXo2}, 65536
    s_lshl_b32 s{sXl}, s{sW}, 11
    s_lshl_b32 s{sXl2}, s{sWH}, 10
    s_add_u32 s{sXl2}, s{sXl2}, 8192
    s_mul_i32 s{sWl}, s{sW}, 6144
    s_add_u32 s{sWl}, s{sWl}, {WO}
    s_mul_i32 s{sWs}, s{sW}, 49152
    s_lshl_b32 s{sB}, s{sCB}, 7
    s_add_u32 s{sWs}, s{sWs}, s{sB}
    s_cmp_eq_u32 s{sW}, 0
    s_cselect_b32 s{sEX0}, 0xffffff00, -1
    s_mov_b32 s{sEX0+1}, -1
    s_cmp_eq_u32 s{sW1}, 0
    s_cselect_b32 s{sEX2}, -1, 0
    s_cselect_b32 s{sEX2+1}, 0, -1
    """)

    def dma(i):
        slot = i % 3
        it = []
        tag = f"c{i}"
        it.append((f"""
        s_add_u32 s{sA}, s{sKC0}, {i}
        s_and_b32 s{sA}, s{sA}, 7
        s_mul_i32 s{sC}, s{sA}, {64*3072}
        s_add_u32 s{sC}, s{sC}, s{sWs}
        s_lshl_b32 s{sA}, s{sA}, 7
        s_add_u32 m0, s{sWl}, {slot*SLOT}
        buffer_load_dwordx4 v{vWe}, s[{SWQ}:{SWQ+3}], s{sC} offen lds""", tag))
        for sec in (1, 2):
            it.append((f"buffer_load_dwordx4 v{vWe}, s[{SWQ}:{SWQ+3}], s{sC} offen offset:{sec*1024} lds", tag))
        for sec in range(3):
            pre = f"s_add_u32 m0, s{sWl}, {slot*SLOT+3072}\n" if sec == 0 else ""
            it.append((pre + f"buffer_load_dwordx4 v{vWo_}, s[{SWQ}:{SWQ+3}], s{sC} offen offset:{sec*1024} lds", tag))
        it.append((f"""
        s_mov_b64 exec, s[{sEX0}:{sEX0+1}]
        s_add_u32 m0, s{sXl}, {slot*SLOT}
        s_add_u32 s{sB}, s{sXo0}, s{sA}
        buffer_load_dwordx4 v{vDs}, s[{SX}:{SX+3}], s{sB} offen lds
        s_mov_b64 exec, -1""", tag))
        it.append((f"""
        s_add_u32 m0, s{sXl}, {slot*SLOT+1024}
        s_add_u32 s{sB}, s{sXo1}, s{sA}
        buffer_load_dwordx4 v{vDs}, s[{SX}:{SX+3}], s{sB} offen lds""", tag))
        it.append((f"""
        s_mov_b64 exec, s[{sEX2}:{sEX2+1}]
        s_add_u32 m0, s{sXl2}, {slot*SLOT}
        s_add_u32 s{sB}, s{sXo2}, s{sA}
        buffer_load_dwordx4 v{vDs}, s[{SX}:{SX+3}], s{sB} offen lds
        s_mov_b64 exec, -1""", tag))
        return it

    A(f"""
    v_mov_b32 v{vT3}, 0
    s_cmp_eq_u32 s{sW}, 0
    s_cselect_b64 exec, -1, 0
    """)
    A(f"buffer_load_dword v{vF}, v{vT3}, s[{SDBG}:{SDBG+3}], 0 offen sc1", tag="~non")
    A("s_mov_b64 exec, -1")
    d0 = dma(0)
    nfirst = opt("d0first", 6)
    emit(A, d0[:nfirst])
    stamp(A, "first dmas issued")
    t1, t2, t3 = 52, 53, 54
    A(f"""
    v_lshrrev_b32 v{vT0}, 3, v{vJ}
    v_and_b32 v{vT1}, 7, v{vJ}
    v_lshlrev_b32 v{vT1}, 7, v{vT1}
    v_lshl_add_u32 v{vT0}, v{vT0}, 10, v{vT1}
    v_and_b32 v{vT1}, 6, v{vJ}
    v_xor_b32 v{vT1}, v{vQ}, v{vT1}
    v_lshl_add_u32 v{vA0}, v{vT1}, 4, v{vT0}
    v_xor_b32 v{vA1}, 64, v{vA0}
    v_bfe_u32 v{vT0}, v{vL}, 2, 2
    v_bfe_u32 v{vT1}, v{vL}, 1, 1
    s_lshl_b32 s{t1}, s{sW}, 1
    v_add_u32 v{vT1}, s{t1}, v{vT1}
    v_and_b32 v{vT2}, 1, v{vQ}
    v_lshlrev_b32 v{vT2}, 2, v{vT2}
    v_xor_b32 v{vT1}, v{vT1}, v{vT2}
    v_and_b32 v{vT2}, 2, v{vT0}
    v_xor_b32 v{vT1}, v{vT1}, v{vT2}
    v_lshlrev_b32 v{vT1}, 4, v{vT1}
    v_lshl_add_u32 v{vT1}, v{vT0}, 7, v{vT1}
    v_and_b32 v{vT2}, 1, v{vL}
    v_lshl_add_u32 v{vT1}, v{vT2}, 3, v{vT1}
    v_mul_u32_u24 v{vT2}, 3072, v{vQ}
    v_add_u32 v{vT1}, v{vT1}, v{vT2}
    v_add_u32 v{vWt}, {WO}, v{vT1}
    v_add_u32 v{vA0b}, {2*SLOT}, v{vA0}
    v_add_u32 v{vA1b}, {2*SLOT}, v{vA1}
    v_add_u32 v{vWtb}, {2*SLOT}, v{vWt}
    v_lshrrev_b32 v{vT0}, 3, v{vL}
    v_mul_u32_u24 v{vT0}, {SLOT}, v{vT0}
    v_and_b32 v{vT1}, 7, v{vL}
    v_lshl_add_u32 v{vT0}, v{vT1}, 4, v{vT0}
    s_mov_b64 exec, 0xffffff
    ds_write_b128 v{vT0}, v[{ones}:{ones+3}]
    s_mov_b64 exec, -1
    """)
    A(f"""
    v_bfe_u32 v{vT2}, v{vL}, 1, 1
    v_lshlrev_b32 v{vT2}, 4, v{vT2}
    v_and_b32 v{vT3}, 1, v{vL}
    v_lshl_add_u32 v{vT2}, v{vT3}, 3, v{vT2}
    s_lshl_b32 s{t1}, s{sW}, 5
    v_xor_b32 v{vT2}, s{t1}, v{vT2}
    v_bfe_u32 v{vT0}, v{vL}, 2, 3
    v_and_b32 v{vT1}, 6, v{vT0}
    v_lshlrev_b32 v{vT1}, 4, v{vT1}
    v_xor_b32 v{vT1}, v{vT1}, v{vT2}
    v_lshl_add_u32 v{vT1}, v{vT0}, 7, v{vT1}
    v_lshrrev_b32 v{vT0}, 5, v{vL}
    v_lshl_add_u32 v{vTrS}, v{vT0}, 10, v{vT1}
    v_add_u32 v{vTrS+1}, 2048, v{vTrS}
    v_bfe_u32 v{vT0}, v{vL}, 2, 2
    v_and_b32 v{vT1}, 2, v{vT0}
    v_lshlrev_b32 v{vT1}, 4, v{vT1}
    v_xor_b32 v{vT1}, v{vT1}, v{vT2}
    v_lshl_add_u32 v{vT1}, v{vT0}, 7, v{vT1}
    v_lshl_add_u32 v{vT1}, v{vQ}, 10, v{vT1}
    v_xor_b32 v{vT0}, 64, v{vT1}
    v_add_u32 v{vT0}, 512, v{vT0}
    s_cmp_lt_u32 s2, 64
    s_cselect_b64 vcc, -1, 0
    v_cndmask_b32 v{vTrS}, v{vTrS}, v{vT1}, vcc
    v_cndmask_b32 v{vTrS+1}, v{vTrS+1}, v{vT0}, vcc
    v_add_u32 v{vTrS}, {STG+12288}, v{vTrS}
    v_add_u32 v{vTrS+1}, {STG+12288}, v{vTrS+1}
    v_lshrrev_b32 v{vT0}, 2, v{vL}
    v_mul_u32_u24 v{vT0}, 192, v{vT0}
    v_bfe_u32 v{vT1}, v{vL}, 1, 1
    v_mul_u32_u24 v{vT2}, 3072, v{vT1}
    v_add_u32 v{vT0}, v{vT0}, v{vT2}
    v_add_u32 v{vT0}, {STG}, v{vT0}
    v_and_b32 v{vT2}, 1, v{vQ}
    v_lshl_add_u32 v{vT1}, v{vT1}, 1, v{vT2}
    v_and_b32 v{vT2}, 1, v{vL}
    s_lshl_b32 s{t3}, s{sWH}, 2
    s_add_u32 s{t3}, s{t3}, s{sW1}
    v_xor_b32 v{vT3}, s{t3}, v{vT1}
    v_lshl_add_u32 v{vT3}, v{vT3}, 4, v{vT0}
    v_lshl_add_u32 v{vTr3}, v{vT2}, 3, v{vT3}
    s_add_u32 s{t3}, s{t3}, 2
    v_xor_b32 v{vT3}, s{t3}, v{vT1}
    v_lshl_add_u32 v{vT3}, v{vT3}, 4, v{vT0}
    v_lshl_add_u32 v{vTr3+1}, v{vT2}, 3, v{vT3}
    s_add_u32 s{t3}, s{sWH}, 8
    v_lshl_add_u32 v{vT3}, v{vT2}, 1, s{t3}
    v_xor_b32 v{vT3}, v{vT3}, v{vT1}
    v_lshl_add_u32 v{vT3}, v{vT3}, 4, v{vT0}
    s_lshl_b32 s{t2}, s{sW1}, 3
    v_add_u32 v{vTr3+2}, s{t2}, v{vT3}
    """)
    A(f"""
    s_lshl_b32 s{sW12}, s{sW}, 12
    s_mul_i32 s{sK4}, s{sW}, 11
    s_min_u32 s{sK4}, s{sK4}, 32
    s_lshl_b32 s{t1}, s{sJ}, 2
    s_add_u32 s{t1}, s{t1}, s{sW}
    s_mul_i32 s{sB3b}, s{t1}, 49152
    s_add_u32 s{sB3b}, s{sB3b}, {WS_R3}
    s_lshl_b32 s{sFLA}, s{t1}, 2
    s_add_u32 s{sFLA}, s{sFLA}, s{sFLG}
    s_and_b32 s18, s{sG}, 1
    s_lshl_b32 s18, s18, 10
    s_add_u32 s18, s18, s{sB3b}
    s_add_u32 s18, s18, s{SWS}
    s_addc_u32 s19, s{SWS+1}, 0
    s_lshl_b32 s{t2}, s{sW1}, 11
    s_xor_b32 s{t3}, s{t2}, 2048
    s_lshl_b32 s55, s{sCB}, 16
    s_lshl_b32 s56, s{sW}, 14
    s_add_u32 s55, s55, s56
    s_add_u32 s55, s55, {WS_R2}
    s_add_u32 s{sB2l}, s55, s{t2}
    s_add_u32 s{sB2h}, s55, s{t3}
    s_mul_i32 s55, s{sCB}, 48
    s_add_u32 s56, s55, s{sK4}
    s_lshl_b32 s56, s56, 12
    s_add_u32 s56, s56, {WS_R4}
    s_add_u32 s{sB4l}, s56, s{t2}
    s_add_u32 s{sB4h}, s56, s{t3}
    s_add_u32 s55, s55, 43
    s_lshl_b32 s55, s55, 12
    s_add_u32 s55, s55, {WS_R4}
    s_cmp_eq_u32 s{sW}, 3
    s_cselect_b32 s{sB4zl}, s55, s{sB4l}
    s_cselect_b32 s{sB4zh}, s55, s{sB4h}
    v_and_b32 v{vT0}, 3, v{vJ}
    v_cmp_eq_u32 s[{sM1}:{sM1+1}], 1, v{vT0}
    v_cmp_eq_u32 s[{sM2}:{sM2+1}], 2, v{vT0}
    v_cmp_eq_u32 s[{sM3}:{sM3+1}], 3, v{vT0}
    v_lshrrev_b32 v{vT0}, 2, v{vJ}
    v_cmp_eq_u32 s[{sDiag}:{sDiag+1}], v{vT0}, v{vQ}
    s_cmp_eq_u32 s{sW}, 0
    s_cselect_b32 s{sW0}, 1, 0
    s_mov_b32 s{sW0+1}, 0
    s_cmp_eq_u32 s{sHB}, 0
    s_cselect_b32 s{sHM}, -1, 0
    s_cselect_b32 s{sHM+1}, 0, -1
    """)
    NEG = f32hex(-1e30)
    A(f"""
    v_lshlrev_b32 v{vT0}, 2, v{vQ}
    v_sub_u32 v{vT0}, v{vT0}, v{vJ}
    v_mov_b32 v{vT3}, {NEG}
    s_cmp_eq_u32 s{sRB}, 0
    s_cselect_b64 s[58:59], -1, 0
    """)
    for r_ in range(4):
        A(f"""
        v_add_u32 v{vT1}, {r_}, v{vT0}
        v_and_b32 v{vT2}, 1, v{vT1}
        v_cmp_eq_u32 s[52:53], 0, v{vT2}
        v_cmp_le_i32 s[54:55], 2, v{vT1}
        v_cmp_ge_i32 s[56:57], 0, v{vT1}
        s_and_b64 s[54:55], s[54:55], s[52:53]
        s_and_b64 s[56:57], s[56:57], s[52:53]
        v_cndmask_b32 v{biasP+r_}, v{vT3}, 0, s[54:55]
        v_cndmask_b32 v{biasC+r_}, v{vT3}, 0, s[56:57]
        v_cndmask_b32 v{biasF+r_}, v{biasP+r_}, v{vT3}, s[58:59]
        """)
    A(f"""
    v_and_b32 v{vT1}, 1, v{vJ}
    v_cmp_eq_u32 vcc, 1, v{vT1}
    v_mov_b32 v{vT1}, 0x0c0c0100
    v_mov_b32 v{vT2}, 0x01000c0c
    v_cndmask_b32 v{selLo}, v{vT1}, v{vT2}, vcc
    v_mov_b32 v{vT1}, 0x0c0c0302
    v_mov_b32 v{vT2}, 0x03020c0c
    v_cndmask_b32 v{selHi}, v{vT1}, v{vT2}, vcc
    v_lshlrev_b32 v{vSa}, 2, v{vJ}
    v_add_u32 v{vSa}, {ST}, v{vSa}
    v_lshlrev_b32 v{vSc}, 4, v{vQ}
    v_add_u32 v{vSc}, {ST}, v{vSc}
    s_lshl_b32 s{t1}, s{sRB}, 6
    s_lshl_b32 s{t2}, s{sW1}, 6
    s_add_u32 s{t1}, s{t1}, s{t2}
    s_sub_u32 s{t1}, s{t1}, 16
    v_add_u32 v{vSl}, s{t1}, v{vL}
    v_max_i32 v{vSl}, 0, v{vSl}
    v_min_i32 v{vSl}, 2047, v{vSl}
    v_and_b32 v{vT0}, 1, v{vSl}
    v_lshrrev_b32 v{vSl}, 1, v{vSl}
    v_lshlrev_b32 v{vSl}, 7, v{vSl}
    v_lshl_add_u32 v{vSl}, v{vT0}, 3, v{vSl}
    v_and_b32 v{vT0}, 1, v{vQ}
    v_lshlrev_b32 v{vT0}, 14, v{vT0}
    v_lshrrev_b32 v{vT1}, 1, v{vQ}
    v_lshl_add_u32 v{vT0}, v{vT1}, 8, v{vT0}
    v_lshl_add_u32 v{vOst}, v{vJ}, 4, v{vT0}
    """)
    emit(A, d0[nfirst:])
    if opt("d1early", 1):
        emit(A, dma(1))
    stamp(A, "setup done")
    A.wait_vm("pre")
    wait_nonce(A)
    A("s_waitcnt lgkmcnt(0)\ns_barrier")
    A(f"v_mov_b32 v{vT1}, {MISC + 2052}")
    A(f"ds_read_b32 v{vT2}, v{vT1}", tag="nonrd")
    stamp(A, "pre data landed")
    for u in range(3):
        for hf in range(2):
            A(f"ds_read_b64_tr_b16 v[{RT+4*u+2*hf}:{RT+4*u+2*hf+1}], v{vTr3+u} offset:{hf*6144}", tag=f"rt{u}")
    for n in range(2):
        for hf in range(2):
            A(f"ds_read_b64_tr_b16 v[{RT+12+4*n+2*hf}:{RT+12+4*n+2*hf+1}], v{vTrS+hf} offset:{n*4096}", tag=f"rt{3+n}")
    A(f"""
    s_lshl_b32 s{sA}, s{sJ}, 2
    s_add_u32 s{sA}, s{sA}, s{sW}
    s_mul_i32 s{sB}, s{sG}, 3072
    s_add_u32 s{sB}, s{sB}, s{sB3b}
    v_mov_b32 v{S1}, 0
    v_mov_b32 v{S2}, 0
    """)
    A.wait_lg("nonrd")
    A(f"v_readfirstlane_b32 s{sNON}, v{vT2}")
    for u in range(3):
        A.wait_lg(f"rt{u}")
        A(f"buffer_store_dwordx4 v[{RT+4*u}:{RT+4*u+3}], v{vL16}, {WSS}, s{sB} offen offset:{u*1024} sc1", tag="prest")
        A(f"{MF} {v(CSP+4*u,4)}, {v(RT+4*u,4)}, {v(ones,4)}, 0")
    A.wait_lg("rt3")
    A(f"buffer_store_dwordx4 v[{RT+12}:{RT+15}], v{vL16}, {WSS}, s83 offen sc1", tag="prest")
    A(f"s_add_u32 s83, s83, s{sCNT}")
    A.wait_lg("rt4")
    A(f"buffer_store_dwordx4 v[{RT+16}:{RT+19}], v{vL16}, {WSS}, s83 offen sc1", tag="prest")
    A(f"""
    s_lshl_b32 s{sA}, s{sA}, 12
    s_lshl_b32 s{sB}, s{sG}, 8
    s_add_u32 s{sA}, s{sA}, s{sB}
    s_add_u32 s{sA}, s{sA}, {WS_CS}
    s_mov_b32 exec_lo, 0x00010001
    s_mov_b32 exec_hi, 0x00010001
    """)
    for u in range(3):
        A(f"buffer_store_dwordx4 v[{CSP+4*u}:{CSP+4*u+3}], v{vSt}, {WSS}, s{sA} offen offset:{u*64} sc1", tag="prest")
    A("s_mov_b64 exec, -1")
    for i in range(8):
        A(f"v_dot2_f32_bf16 v{S1}, v{XR+i}, v{ones}, v{S1}")
        A(f"v_dot2_f32_bf16 v{S2}, v{XR+i}, v{XR+i}, v{S2}")
    for mode in ("quad_perm:[1,0,3,2]", "quad_perm:[2,3,0,1]", "row_half_mirror", "row_mirror"):
        A(f"v_add_f32_dpp v{S1}, v{S1}, v{S1} {mode} row_mask:0xf bank_mask:0xf")
        A(f"v_add_f32_dpp v{S2}, v{S2}, v{S2} {mode} row_mask:0xf bank_mask:0xf")
    A(f"""
    v_mov_b32 v190, v{S1}
    v_mov_b32 v191, v{S2}
    v_lshrrev_b32 v{vT0}, 5, v{vL}
    v_lshlrev_b32 v{vT0}, 3, v{vT0}
    v_permlane16_swap_b32 v{S1}, v190
    v_permlane16_swap_b32 v{S2}, v191
    v_add_f32 v{S1}, v{S1}, v190
    v_add_f32 v{S2}, v{S2}, v191
    v_mul_f32 v{S1}, 0x3b000000, v{S1}
    v_mul_f32 v{S2}, 0x3b000000, v{S2}
    v_fma_f32 v{S2}, -v{S1}, v{S1}, v{S2}
    v_max_f32 v{S2}, 0, v{S2}
    v_add_f32 v{S2}, {f32hex(1e-5)}, v{S2}
    v_rsq_f32 v{S2}, v{S2}
    s_lshl_b32 s{sA}, s{sRB}, 12
    s_lshl_b32 s{sB}, s{sCB}, 9
    s_add_u32 s{sA}, s{sA}, s{sB}
    s_lshl_b32 s{sB}, s{sW}, 7
    s_add_u32 s{sA}, s{sA}, s{sB}
    s_add_u32 s{sA}, s{sA}, {WS_S1}
    s_mov_b32 exec_lo, 1
    s_mov_b32 exec_hi, 1
    """)
    A(f"buffer_store_dwordx2 v[{S1}:{S2}], v{vT0}, {WSS}, s{sA} offen sc1", tag="prest")
    A("s_mov_b64 exec, -1")
    stamp(A, "pre stores issued")
    if not opt("d1early", 1):
        emit(A, dma(1))

    def reads(i, sidx):
        slot = i % 3
        it = []
        if slot < 2:
            va, wt, so = (vA0, vA1)[sidx], vWt, slot * SLOT
        else:
            va, wt, so = (vA0b, vA1b)[sidx], vWtb, 0
        tag = f"r{i}_{sidx}"
        for sec in range(3):
            for hf in range(2):
                it.append((f"ds_read_b64_tr_b16 v[{Wf[sidx]+sec*4+hf*2}:{Wf[sidx]+sec*4+hf*2+1}], v{wt} offset:{so + sidx*12288 + sec*1024 + hf*512}", tag))
        for t in range(5):
            it.append((f"ds_read_b128 v[{Af[sidx]+4*t}:{Af[sidx]+4*t+3}], v{va} offset:{so + t*2048}", tag))
        return it

    def mfmas(i, sidx):
        first = (i == 0 and sidx == 0)
        it = []
        W = lambda sec: v(Wf[sidx] + 4 * sec, 4)
        X = lambda t: v(Af[sidx] + 4 * t, 4)
        def m(acc, a, b):
            c = "0" if first else v(acc, 4)
            it.append((f"{MF} {v(acc,4)}, {a}, {b}, {c}", None))
        for t in range(5):
            m(accQ + 4 * t, W(0), X(t))
            m(accK + 4 * t, W(1), X(t))
            m(accV + 4 * t, X(t), W(2))
        return it

    ARR_I = opt("arr_i", 1)
    POLL_I = opt("poll_i", 4)
    wa = [opt(f"wa{i}", opt("wa", 8)) for i in range(8)]
    for i in range(8):
        A.wait_vm(f"c{i}")
        if i == ARR_I:
            A.wait_vm("prest")
        if i == POLL_I + 1:
            wait_arrival(A)
        A("s_waitcnt lgkmcnt(0)\ns_barrier")
        stamp(A, f"p1 bar{i}")
        dm = dma(i + 2) if i + 2 <= 7 else []
        if i == ARR_I:
            A(f"""
            s_add_u32 s{sA}, s{sNON}, s{sXCC}
            v_mov_b32 v{vT0}, s{sA}
            v_mov_b32 v{vT1}, 0
            s_lshl_b32 s{sA}, s{sRB}, 7
            s_lshl_b32 s{sB}, s{sCB}, 2
            s_add_u32 s{sA}, s{sA}, s{sB}
            s_add_u32 s{sA}, s{sA}, {WS_ARR}
            s_mov_b64 exec, s[{sW0}:{sW0+1}]
            """)
            A(f"buffer_store_dword v{vT0}, v{vT1}, {WSS}, s{sA} offen sc1", tag="~arrst")
            A("s_mov_b64 exec, -1")
        extra = []
        if i == POLL_I:
            A(f"""
            s_mov_b64 exec, s[{sW0}:{sW0+1}]
            s_cselect_b64 exec, -1, 0""".replace("s_mov_b64 exec, s[%d:%d]" % (sW0, sW0 + 1), f"s_cmp_eq_u32 s{sW}, 0"))
            arrival_probe(A, "~arr")
            A("s_mov_b64 exec, -1")
        if i == POLL_I + 1:
            A(f"v_mov_b32 v{vT1}, {MISC + 2048}")
            A(f"ds_read_b32 v{vT2}, v{vT1}", tag="fastrd")
            extra = [(f"""
            s_lshl_b32 s{sBA}, s{sWH}, 2
            s_add_u32 s{sBA}, s{sBA}, {WS_S1}
            s_lshl_b32 m0, s{sW}, 8
            s_add_u32 m0, m0, {ST}
            buffer_load_dword v{vSl}, {WSS}, s{sBA} offen lds""", "st1")]
        if i > POLL_I:
            extra += bq.take(wa[i])
        if i == 0:
            emit(A, reads(i, 0) + dm)
            dm = []
        else:
            emit(A, weave(mfmas(i - 1, 1), [(reads(i, 0), 0, 2), (dm[:5], 6, lambda k: k % 2)]))
            dm = dm[5:]
        A.wait_lg(f"r{i}_0")
        if i == POLL_I + 1:
            A(f"v_readfirstlane_b32 s{sFAST}, v{vT2}")
        rest = dm + extra
        emit(A, weave(mfmas(i, 0), [(reads(i, 1), 0, 2), (rest, 5, 1)]))
    A.wait_lg("r7_1")
    emit(A, mfmas(7, 1))
    stamp(A, "p1 loop done")
    A.wait_vm("st1")
    A("s_barrier")
    L1 = 108
    L2M = 120
    L2R = 140
    csQ, csK, csV = 160, 164, 168
    for t in range(5):
        A(f"ds_read2_b32 v[{L1+2*t}:{L1+2*t+1}], v{vSa} offset0:{16*t} offset1:{128+16*t}", tag="st")
    A(f"v_lshlrev_b32 v{vT0}, 2, v{vJ}")
    A(f"ds_bpermute_b32 v{csV}, v{vT0}, v{accV}", tag="st")
    for t in range(5):
        A(f"ds_read_b128 v[{L2M+4*t}:{L2M+4*t+3}], v{vSc} offset:{64*t}", tag="st2")
        A(f"ds_read_b128 v[{L2R+4*t}:{L2R+4*t+3}], v{vSc} offset:{512+64*t}", tag="st2")
    for r_ in range(4):
        A(f"v_mov_b32_dpp v{csQ+r_}, v{accQ+r_} row_newbcast:0 row_mask:0xf bank_mask:0xf")
        A(f"v_mov_b32_dpp v{csK+r_}, v{accK+r_} row_newbcast:0 row_mask:0xf bank_mask:0xf")
    A(f"""
    s_lshl_b32 s{sC}, s{sRB}, 16
    s_lshl_b32 s{sB}, s{sCB}, 11
    s_add_u32 s{sC}, s{sC}, s{sB}
    s_lshl_b32 s{sB}, s{sW}, 9
    s_add_u32 s{sC}, s{sC}, s{sB}
    s_add_u32 s{sC}, s{sC}, {WS_O}
    """)
    A.wait_lg("st")
    Kp, Qp, Vp = 210, 220, 230

    def fold_kq(acc, cs, P, scale, t):
        a = acc + 4 * t
        for h in range(2):
            A(f"v_pk_fma_f32 v[{a+2*h}:{a+2*h+1}], v[{cs+2*h}:{cs+2*h+1}], v[{L1+2*t}:{L1+2*t+1}], v[{a+2*h}:{a+2*h+1}] op_sel:[0,0,0] op_sel_hi:[1,0,1] neg_lo:[0,1,0] neg_hi:[0,1,0]")
        if scale:
            for h in range(2):
                A(f"v_pk_mul_f32 v[{a+2*h}:{a+2*h+1}], v[{a+2*h}:{a+2*h+1}], v[{L1+2*t}:{L1+2*t+1}] op_sel:[0,1] op_sel_hi:[1,1]")
        for h in range(2):
            A(f"v_cvt_pk_bf16_f32 v{P+2*t+h}, v{a+2*h}, v{a+2*h+1}")

    def fold_v(t):
        a = accV + 4 * t
        for h in range(2):
            A(f"v_pk_fma_f32 v[{a+2*h}:{a+2*h+1}], v[{L2M+4*t+2*h}:{L2M+4*t+2*h+1}], v[{csV}:{csV+1}], v[{a+2*h}:{a+2*h+1}] op_sel:[0,0,0] op_sel_hi:[1,0,1] neg_lo:[1,0,0] neg_hi:[1,0,0]")
        for h in range(2):
            A(f"v_pk_mul_f32 v[{a+2*h}:{a+2*h+1}], v[{a+2*h}:{a+2*h+1}], v[{L2R+4*t+2*h}:{L2R+4*t+2*h+1}]")
        for h in range(2):
            A(f"v_cvt_pk_bf16_f32 v{Vp+2*t+h}, v{a+2*h}, v{a+2*h+1}")

    def attn(step):
        ts = (1, 2) if step == 0 else (3, 4)
        k = lambda t: t - ts[0]
        Sp = lambda t: 172 + 8 * k(t)
        Sc = lambda t: 176 + 8 * k(t)
        X = lambda t, i: 240 + 4 * k(t) + i
        MX = lambda t: 188 + k(t)
        MY = lambda t: 190 + k(t)
        CQ = lambda t: 192 + k(t)
        Pf = lambda t: 172 + 4 * k(t)
        Oa = lambda t: 180 + 4 * k(t)
        Su = lambda t: 240 + 4 * k(t)
        OP = 248 + 4 * step
        for t in (((0,) if step == 0 else ()) + ts):
            fold_kq(accK, csK, Kp, True, t)
        for t in ts:
            fold_kq(accQ, csQ, Qp, False, t)
        for t in ts:
            A(f"{MF16} {v(Sp(t),4)}, {v(Kp+2*(t-1),2)}, {v(Qp+2*t,2)}, {v(biasF if t==1 else biasP,4)}")
            A(f"{MF16} {v(Sc(t),4)}, {v(Kp+2*t,2)}, {v(Qp+2*t,2)}, {v(biasC,4)}")
        if step == 0:
            A.wait_lg("st2")
            A.every = (opt("sqper", 16), lambda: emit(A, SQ_[0].take(1)))
        for t in (((0,) if step == 0 else ()) + ts):
            fold_v(t)
        for t in ts:
            A(f"v_mul_f32 v{CQ(t)}, {f32hex(0.25*LOG2E)}, v{L1+2*t+1}")
        for t in ts:
            A(f"""
            v_max_f32 v{X(t,0)}, v{Sp(t)}, v{Sp(t)+1}
            v_max_f32 v{X(t,1)}, v{Sp(t)+2}, v{Sp(t)+3}
            v_max_f32 v{X(t,2)}, v{Sc(t)}, v{Sc(t)+1}
            v_max_f32 v{X(t,3)}, v{Sc(t)+2}, v{Sc(t)+3}
            v_max3_f32 v{MX(t)}, v{X(t,0)}, v{X(t,1)}, v{X(t,2)}
            v_max_f32 v{MX(t)}, v{MX(t)}, v{X(t,3)}
            v_mov_b32 v{MY(t)}, v{MX(t)}
            """)
        for sw in ("v_permlane16_swap_b32", "v_permlane32_swap_b32"):
            for t in ts:
                A(f"{sw} v{MX(t)}, v{MY(t)}")
            for t in ts:
                A(f"v_max_f32 v{MX(t)}, v{MX(t)}, v{MY(t)}")
            if sw.startswith("v_permlane16"):
                for t in ts:
                    A(f"v_mov_b32 v{MY(t)}, v{MX(t)}")
        for t in ts:
            A(f"v_mul_f32 v{MX(t)}, v{MX(t)}, v{CQ(t)}")
        for t in ts:
            for i in range(4):
                A(f"v_fma_f32 v{X(t,i)}, v{X(t,i)}, v{CQ(t)}, -v{MX(t)}")
        for t in ts:
            for i in range(4):
                A(f"v_exp_f32 v{X(t,i)}, v{X(t,i)}")
        for t in ts:
            A(f"""
            v_cvt_pk_bf16_f32 v{MX(t)}, v{X(t,0)}, v{X(t,1)}
            v_cvt_pk_bf16_f32 v{MY(t)}, v{X(t,2)}, v{X(t,3)}
            """)
        for t in ts:
            A(f"""
            v_perm_b32 v{Pf(t)}, v{MX(t)}, v{MX(t)}, v{selLo}
            v_perm_b32 v{Pf(t)+1}, v{MX(t)}, v{MX(t)}, v{selHi}
            v_perm_b32 v{Pf(t)+2}, v{MY(t)}, v{MY(t)}, v{selLo}
            v_perm_b32 v{Pf(t)+3}, v{MY(t)}, v{MY(t)}, v{selHi}
            """)
        for t in ts:
            A(f"{MF} {v(Su(t),4)}, {v(ones,4)}, {v(Pf(t),4)}, 0")
            A(f"{MF} {v(Oa(t),4)}, {v(Vp+2*(t-1),4)}, {v(Pf(t),4)}, 0")
        for t in ts:
            A(f"v_rcp_f32 v{Su(t)}, v{Su(t)}")
        for t in ts:
            o = Oa(t)
            A(f"""
            v_pk_mul_f32 v[{o}:{o+1}], v[{o}:{o+1}], v[{Su(t)}:{Su(t)+1}] op_sel:[0,0] op_sel_hi:[1,0]
            v_pk_mul_f32 v[{o+2}:{o+3}], v[{o+2}:{o+3}], v[{Su(t)}:{Su(t)+1}] op_sel:[0,0] op_sel_hi:[1,0]
            v_cvt_pk_bf16_f32 v{OP+2*k(t)}, v{o}, v{o+1}
            v_cvt_pk_bf16_f32 v{OP+2*k(t)+1}, v{o+2}, v{o+3}
            """)
        A(f"""
        v_permlane16_swap_b32 v{OP}, v{OP+2}
        v_permlane16_swap_b32 v{OP+1}, v{OP+3}
        s_add_u32 s{sB}, s{sC}, {step*32768}
        """)
        if step == 1:
            signal(A, 1, "ost0")
        A(f"buffer_store_dwordx4 v[{OP}:{OP+3}], v{vOst}, {WSS}, s{sB} offen sc1", tag=f"ost{step}")

    sq = SQ_[0]
    A.hook = None
    attn(0)
    stamp(A, "p1 step A stored")
    attn(1)
    stamp(A, "p1 step B stored")


class KS:
    def __init__(self, A, which):
        self.A, self.P2 = A, which == 2
        self.nst = 4 if self.P2 else 11
        self.RW = [12, 13, 14]
        self.vRr, self.vXo = 26, 27
        self.acc = [32, 64]
        self.T = 96
        self.U = 120
        if self.P2:
            self.Afr = lambda h, t, st: v(128 + ((h * 2 + t) * 4 + st) * 4, 4)
            self.Bf = B2reg
        else:
            def Afr(h, t, st):
                idx = (h * 2 + t) * 11 + st
                return a_(64 + idx * 4, 4) if idx < 32 else v(128 + (idx - 32) * 4, 4)
            self.Afr = Afr
            self.Bf = B4reg
        self.RED = [0, 24576]
        self.REDB = 65536 if self.P2 else 0

    def setup(self):
        A = self.A
        for k in range(1, 4):
            A(f"""
            s_xor_b32 s{sA}, s{sW}, {k}
            s_mul_i32 s{sA}, s{sA}, 6144
            s_add_u32 s{sA}, s{sA}, {(k-1)*2048 + self.REDB}
            v_add_u32 v{self.RW[k-1]}, s{sA}, v{vL16}
            """)
        A(f"""
        s_mul_i32 s{sA}, s{sW}, 6144
        s_add_u32 s{sA}, s{sA}, {self.REDB}
        v_add_u32 v{self.vRr}, s{sA}, v{vL16}
        v_lshlrev_b32 v{self.vXo}, 10, v{vJ}
        v_lshl_add_u32 v{self.vXo}, v{vQ}, 3, v{self.vXo}
        """)

    def rowcol(self, h, dst):
        return f"""
        s_lshl_b32 s{dst}, s{sRB}, 16
        s_lshl_b32 s{sB}, s{sWH}, 14
        s_add_u32 s{dst}, s{dst}, s{sB}
        s_lshl_b32 s{sB}, s{sCB}, 7
        s_add_u32 s{dst}, s{dst}, s{sB}
        s_lshl_b32 s{sB}, s{sW1}, 6
        s_add_u32 s{dst}, s{dst}, s{sB}
        s_add_u32 s{dst}, s{dst}, {h*32768}
        """

    def res_loads(self):
        A = self.A
        for h in range(2):
            A(self.rowcol(h, sC))
            for i in range(2):
                A(f"buffer_load_dwordx2 v[{HRES+4*h+2*i}:{HRES+4*h+2*i+1}], v{self.vXo}, s[{SX}:{SX+3}], s{sC} offen offset:{i*32}", tag="res")

    def a_loads(self, h, skip=0):
        base = WS_O if self.P2 else WS_HH
        pitch = 16 if self.P2 else HHK
        k0 = f"s_lshl_b32 s{sB}, s{sW}, 2" if self.P2 else f"s_mov_b32 s{sB}, s{sK4}"
        it = []
        for t in range(2):
            pre = f"""
            s_xor_b32 s{sA}, s{sWH}, {t}
            s_lshl_b32 s{sB}, s{sRB}, 2
            s_add_u32 s{sA}, s{sA}, s{sB}
            s_add_u32 s{sA}, s{sA}, {2*h}
            s_mul_i32 s{sA}, s{sA}, {pitch}
            {k0}
            s_add_u32 s{sA}, s{sA}, s{sB}
            s_lshl_b32 s{sA}, s{sA}, 10
            s_add_u32 s{sA}, s{sA}, {base}
            """
            for st in range(self.nst):
                if st % 4 == 0 and st > 0:
                    pre += f"s_add_u32 s{sA}, s{sA}, 4096\n"
                if t * self.nst + st < skip:
                    continue
                it.append((pre + f"buffer_load_dwordx4 {self.Afr(h,t,st)}, v{vL16}, {WSS}, s{sA} offen offset:{(st%4)*1024}", f"a{h}_{t}_{st}"))
                pre = ""
        return it

    def mfmas(self, h, fill=()):
        A = self.A
        fill = list(fill)
        acc = self.acc[h]
        for t in range(2):
            for st in range(self.nst):
                A.wait_vm([f"a{h}_{t}_{st}", f"b{2 if self.P2 else 4}_{st}"])
                for ct in range(4):
                    d = v(acc + (t * 4 + ct) * 4, 4)
                    A(f"{MF} {d}, {r(self.Bf(st,ct),0,4)}, {self.Afr(h,t,st)}, {'0' if st==0 else d}")
                    if ct == 1 and fill:
                        emit(A, [fill.pop(0)])
                if t == 1 and st == 1:
                    for i in range(2):
                        A(f"ds_write_b128 v{self.RW[0]}, {v(acc+(2+i)*4,4)} offset:{self.RED[h]+i*1024}")
        emit(A, fill)
        for k in (2, 3):
            for i in range(2):
                A(f"ds_write_b128 v{self.RW[k-1]}, {v(acc+(k*2+i)*4,4)} offset:{self.RED[h]+i*1024}")

    def reduce(self, h):
        A = self.A
        acc, T, U = self.acc[h], self.T, self.U
        A("s_waitcnt lgkmcnt(0)\ns_barrier")
        for k in range(3):
            for i in range(2):
                A(f"ds_read_b128 {v(T+(k*2+i)*4,4)}, v{self.vRr} offset:{self.RED[h]+k*2048+i*1024}", tag=f"rd{k}")
        A.wait_vm("res")
        for i in range(4):
            A(f"v_lshlrev_b32 v{U+2*i}, 16, v{HRES+4*h+i}")
            A(f"v_and_b32 v{U+2*i+1}, 0xffff0000, v{HRES+4*h+i}")
        for i in range(4):
            A(f"v_pk_add_f32 v[{acc+2*i}:{acc+2*i+1}], v[{acc+2*i}:{acc+2*i+1}], v[{U+2*i}:{U+2*i+1}]")
        for k in range(3):
            A.wait_lg(f"rd{k}")
            for i in range(4):
                b = T + k * 8 + 2 * i
                A(f"v_pk_add_f32 v[{acc+2*i}:{acc+2*i+1}], v[{acc+2*i}:{acc+2*i+1}], v[{b}:{b+1}]")
        PK = HRES + 4 * h
        for i in range(4):
            A(f"v_cvt_pk_bf16_f32 v{PK+i}, v{acc+2*i}, v{acc+2*i+1}")
        if self.P2:
            G, S_ = acc + 8, acc + 12
            A(f"""
            s_lshl_b32 s{sC}, s{sRB}, 16
            s_lshl_b32 s{sB}, s{sWH}, 14
            s_add_u32 s{sC}, s{sC}, s{sB}
            s_lshl_b32 s{sB}, s{sCB}, 11
            s_add_u32 s{sC}, s{sC}, s{sB}
            s_lshl_b32 s{sB}, s{sW1}, 10
            s_add_u32 s{sC}, s{sC}, s{sB}
            s_add_u32 s{sC}, s{sC}, {WS_H + h*32768}
            {MF} {v(G,4)}, {v(PK,4)}, {v(PK,4)}, 0
            {MF} {v(S_,4)}, {v(ones,4)}, {v(PK,4)}, 0
            """)
            A(f"buffer_store_dwordx4 v[{PK}:{PK+3}], v{vL16}, {WSS}, s{sC} offen sc1", tag=f"hst{h}")
            A(f"""
            v_lshlrev_b32 v{vT2}, 3, v{vJ}
            s_lshl_b32 s{sA}, s{sRB}, 13
            s_lshl_b32 s{sB}, s{sWH}, 11
            s_add_u32 s{sA}, s{sA}, s{sB}
            s_lshl_b32 s{sB}, s{sCB}, 8
            s_add_u32 s{sA}, s{sA}, s{sB}
            s_lshl_b32 s{sB}, s{sW1}, 7
            s_add_u32 s{sA}, s{sA}, s{sB}
            s_add_u32 s{sA}, s{sA}, {WS_ST + h*4096}
            v_cndmask_b32 v{S_+1}, v{G}, v{G+1}, s[{sM1}:{sM1+1}]
            v_cndmask_b32 v{S_+1}, v{S_+1}, v{G+2}, s[{sM2}:{sM2+1}]
            v_cndmask_b32 v{S_+1}, v{S_+1}, v{G+3}, s[{sM3}:{sM3+1}]
            s_mov_b64 exec, s[{sDiag}:{sDiag+1}]
            """)
            A(f"buffer_store_dwordx2 v[{S_}:{S_+1}], v{vT2}, {WSS}, s{sA} offen sc1", tag=f"hst{h}")
            A("s_mov_b64 exec, -1")
        else:
            A(self.rowcol(h, sC))
            for i in range(2):
                A(f"buffer_store_dwordx2 v[{PK+2*i}:{PK+2*i+1}], v{self.vXo}, s[{SOUT}:{SOUT+3}], s{sC} offen offset:{i*32}")


def p2(A, bq):
    K = KS(A, 2)
    K.setup()
    K.res_loads()
    emit(A, bq.upto(16))
    signal(A, 2, "ost1")
    stamp(A, "p1 signalled both")
    emit(A, bq.take(opt("wb", 0)) + SQ_[0].take(opt("sqb", 8)))
    wait_flags(A, 1, f"s[{sHM}:{sHM+1}]")
    stamp(A, "p2 flags1 ok")
    emit(A, K.a_loads(0) + SQ_[0].take(opt("sqb", 8)))
    wait_flags(A, 2, f"s[{sHM}:{sHM+1}]")
    stamp(A, "p2 flags2 ok")
    emit(A, K.a_loads(1))
    A.every = None
    A(f"""
    s_lshl_b32 s{sA}, s{sJ}, 2
    s_add_u32 s{sA}, s{sA}, s{sW}
    s_lshl_b32 s{sA}, s{sA}, 12
    s_add_u32 s{sA}, s{sA}, {WS_CS}
    """)
    for u in range(3):
        A(f"buffer_load_dwordx4 {v(192+4*u,4)}, v{vSt}, {WSS}, s{sA} offen offset:{u*64}", tag="cs")
    K.mfmas(0, bq.take(opt("wc", 4)))
    K.reduce(0)
    stamp(A, "p2 h0 stored")
    K.mfmas(1)
    signal(A, 3, "hst0")
    K.reduce(1)
    stamp(A, "p2 h1 stored")


def p3(A, bq):
    vH4, vH2, vAr, vS2 = 12, 13, 14, 26
    cs = 192
    accs = [32, 80]
    Af = 128
    stts = 160
    tmp = 204
    A(f"""
    v_lshrrev_b32 v{vT0}, 1, v{vQ}
    v_mul_u32_u24 v{vT0}, {4*HHK*1024}, v{vT0}
    v_lshl_add_u32 v{vT0}, v{vJ}, 4, v{vT0}
    v_and_b32 v{vT1}, 1, v{vQ}
    s_lshl_b32 s{sA}, s{sWH}, 10
    s_lshl_b32 s{sB}, s{sW1}, 9
    s_add_u32 s{sA}, s{sA}, s{sB}
    v_lshl_add_u32 v{vH4}, v{vT1}, 8, v{vT0}
    v_add_u32 v{vH4}, s{sA}, v{vH4}
    s_lshl_b32 s{sA}, s{sW}, 8
    s_add_u32 s{sA}, s{sA}, 2048
    v_mul_u32_u24 v{vT1}, {HHK*1024}, v{vT1}
    v_add_u32 v{vH2}, v{vT1}, v{vT0}
    v_add_u32 v{vH2}, s{sA}, v{vH2}
    v_lshlrev_b32 v{vS2}, 3, v{vJ}
    v_lshl_add_u32 v{vS2}, v{vQ}, 9, v{vS2}
    v_add_u32 v{vS2}, 131072, v{vS2}
    """)
    emit(A, SQ_[0].take(opt("sqc", 14)))
    wait_flags(A, 3, "-1")
    signal(A, 4, "hst1")
    stamp(A, "p3 flags3 ok + sig4")

    def a_dma(p):
        it = []
        for idx in range(4):
            c, ti = 2 * p + (idx >> 1), idx & 1
            pre = f"""
            s_lshl_b32 s{sC}, s{sG}, 17
            s_add_u32 s{sC}, s{sC}, s{sW12}
            s_add_u32 s{sC}, s{sC}, {WS_H + (c+4*ti)*16384}
            s_add_u32 m0, s{sW12}, {p*65536 + idx*16384}
            """
            for n in range(4):
                it.append(((pre if n == 0 else "") + f"""
                buffer_load_dwordx4 v{vL16}, {WSS}, s{sC} offen offset:{n*1024} lds""", f"a{p}"))
        return it

    RAW = [stts, accs[1]]
    RES = lambda p, idx: stts + 8 * idx + 4 * p

    def st_loads(p):
        return [(f"""
        s_lshl_b32 s{sA}, s{sG}, 14
        s_lshl_b32 s{sB}, s{sWH}, 11
        s_add_u32 s{sA}, s{sA}, s{sB}
        s_lshl_b32 s{sB}, s{sW1}, 13
        s_add_u32 s{sA}, s{sA}, s{sB}
        s_add_u32 s{sA}, s{sA}, {WS_ST + 2*p*2048}
        s_lshl_b32 s{sB}, s{sW}, 11
        s_add_u32 m0, s{sB}, {131072 + p*8192}
        buffer_load_dwordx4 v{vL16}, {WSS}, s{sA} offen lds
        buffer_load_dwordx4 v{vL16}, {WSS}, s{sA} offen offset:1024 lds""", f"s{p}")]

    def mk(unpk):
        it = []
        def add(t):
            if unpk and t.startswith("v_pk_"):
                for x in unpack_pk(t):
                    it.append((x, None))
            else:
                it.append((t, None))
        return it, add

    def stats(p):
        it, add = mk(1)
        B = [RAW[p] + 8 * idx for idx in range(4)]
        for idx, b in enumerate(B):
            if idx:
                add(f"v_add_u32 v{vS2}, 2048, v{vS2}")
            it.append((f"ds_read2_b64 v[{b}:{b+3}], v{vS2} offset0:0 offset1:16", f"sr{p}"))
            it.append((f"ds_read2_b64 v[{b+4}:{b+7}], v{vS2} offset0:32 offset1:48", f"sr{p}"))
        add(f"v_add_u32 v{vS2}, 2048, v{vS2}")
        it += [lambda: None] * 6
        it.append(lambda: A.wait_lg(f"sr{p}"))
        for b in B:
            add(f"v_pk_add_f32 v[{b}:{b+1}], v[{b}:{b+1}], v[{b+2}:{b+3}]")
            add(f"v_pk_add_f32 v[{b+4}:{b+5}], v[{b+4}:{b+5}], v[{b+6}:{b+7}]")
        for b in B:
            add(f"v_pk_add_f32 v[{b}:{b+1}], v[{b}:{b+1}], v[{b+4}:{b+5}]")
        for sw in ("v_permlane16_swap_b32", "v_permlane32_swap_b32"):
            for b in B:
                add(f"v_mov_b32 v{b+2}, v{b}")
                add(f"v_mov_b32 v{b+3}, v{b+1}")
            for b in B:
                add(f"{sw} v{b}, v{b+2}")
                add(f"{sw} v{b+1}, v{b+3}")
            for b in B:
                add(f"v_pk_add_f32 v[{b}:{b+1}], v[{b}:{b+1}], v[{b+2}:{b+3}]")
        for op in ("v_mul_f32 v{m}, 0x3b000000, v{b}", "v_mul_f32 v{b1}, 0x3b000000, v{b1}", "v_fma_f32 v{b1}, -v{m}, v{m}, v{b1}",
                   "v_max_f32 v{b1}, 0, v{b1}", "v_add_f32 v{b1}, " + f32hex(1e-5) + ", v{b1}", "v_rcp_f32 v{m1}, v{b1}"):
            for idx, b in enumerate(B):
                add(op.format(b=b, b1=b + 1, m=RES(p, idx), m1=RES(p, idx) + 1))
        add(f"v_cmp_gt_u32 vcc, 32, v{vL}")
        add("s_nop 1")
        for cc in range(2):
            add(f"v_cndmask_b32 v{RES(p,2*cc)+2}, v{RES(p,2*cc+1)+1}, v{RES(p,2*cc)+1}, vcc")
        return it

    def epilogue(p, unpk):
        it, add = mk(unpk)
        Q = accs[p] + 16
        for cc in range(2):
            acc = accs[p] + 24 * cc
            rs = RES(p, 2 * cc) + 2
            for u in range(3):
                for ti in range(2):
                    a = acc + (ti * 3 + u) * 4
                    b = RES(p, 2 * cc + ti)
                    for h in range(2):
                        add(f"v_pk_fma_f32 v[{a+2*h}:{a+2*h+1}], v[{cs+4*u+2*h}:{cs+4*u+2*h+1}], v[{b}:{b+1}], v[{a+2*h}:{a+2*h+1}] op_sel:[0,0,0] op_sel_hi:[1,0,1] neg_lo:[0,1,0] neg_hi:[0,1,0]")
            for u in range(3):
                for r_ in range(4):
                    add(f"v_permlane32_swap_b32 v{acc+u*4+r_}, v{acc+(3+u)*4+r_}")
            PK = acc + 12
            for u in range(3):
                g, up = acc + u * 4, acc + (3 + u) * 4
                for r_ in range(4):
                    add(f"v_max_f32 v{g+r_}, 0, v{g+r_}")
                for h in range(2):
                    add(f"v_pk_mul_f32 v[{g+2*h}:{g+2*h+1}], v[{g+2*h}:{g+2*h+1}], v[{up+2*h}:{up+2*h+1}]")
                for h in range(2):
                    add(f"v_pk_mul_f32 v[{g+2*h}:{g+2*h+1}], v[{g+2*h}:{g+2*h+1}], v[{rs}:{rs+1}] op_sel:[0,0] op_sel_hi:[1,0]")
                for h in range(2):
                    add(f"v_cvt_pk_bf16_f32 v{(PK+2*u if u < 2 else Q+2*cc)+h}, v{g+2*h}, v{g+2*h+1}")
                if u == 1:
                    it.append((f"""
                    s_mul_i32 s{sA}, s{sG}, {8*HHK*1024}
                    s_mul_i32 s{sB}, s{sJ}, 3072
                    s_add_u32 s{sA}, s{sA}, s{sB}
                    s_add_u32 s{sA}, s{sA}, {WS_HH + (2*p+cc)*HHK*1024}
                    buffer_store_dwordx4 v[{PK}:{PK+3}], v{vH4}, {WSS}, s{sA} offen sc1""", f"hh{p}"))
        add(f"v_permlane16_swap_b32 v{Q}, v{Q+2}")
        add(f"v_permlane16_swap_b32 v{Q+1}, v{Q+3}")
        it.append((f"""
        s_mul_i32 s{sA}, s{sG}, {8*HHK*1024}
        s_mul_i32 s{sB}, s{sJ}, 3072
        s_add_u32 s{sA}, s{sA}, s{sB}
        s_add_u32 s{sA}, s{sA}, {WS_HH + (2*p)*HHK*1024}
        buffer_store_dwordx4 v[{Q}:{Q+3}], v{vH2}, {WSS}, s{sA} offen sc1""", f"hh{p}"))
        return it

    emit(A, a_dma(0) + st_loads(0))
    for mode in ("quad_perm:[1,0,3,2]", "quad_perm:[2,3,0,1]", "row_half_mirror", "row_mirror"):
        for i in range(12):
            A(f"v_add_f32_dpp v{cs+i}, v{cs+i}, v{cs+i} {mode} row_mask:0xf bank_mask:0xf")
    emit(A, bq.take(opt("wd", 8)) + SQ_[0].take(opt("sqd", 14)))
    for p in range(2):
        acc = accs[p]
        A.wait_vm([f"a{p}", f"s{p}"])
        A("s_waitcnt lgkmcnt(0)\ns_barrier")
        stamp(A, f"p3 pass{p} start")
        if p == 0:
            b3 = bq.upto(64)
            bq.limit = 64 + 28
            nb = opt("b3burst", 8)
            emit(A, b3[:nb])
            fillm = b3[nb:]
            fillv = stats(0)
            late = []
        else:
            fillm = bq.take(1000)
            fillv = [lambda: None] * opt("sig5gap", 60) + [lambda: signal(A, 5, "hh0")]
            bq.limit = 1000
            late = bq.take(1000)
        post = []
        if p == 1 and opt("nob4", 0):
            post += fillm + late
            fillm, late = [], []
        if p == 1 and opt("noepi", 0):
            post = fillv + post
            fillv = []
        if p == 0 and opt("preb3", 0):
            emit(A, fillm)
            fillm = []
            A("s_waitcnt vmcnt(0)")
            stamp(A, "all b3/a1 landed")
        A(f"v_add_u32 v{vAr}, {p*65536}, v{vL16}")
        rd = lambda ks: [(f"ds_read_b128 {v(Af+((ks%2)*4+idx)*4,4)}, v{vAr} offset:{idx*16384 + ks*1024}", f"f{ks}") for idx in range(4)]
        emit(A, rd(0))
        n = 0
        for ks in range(16):
            nxt = rd(ks + 1) if ks + 1 < 16 else []
            if p == 0 and ks == opt("poll4ks", 3):
                wait_flags(A, 4, "-1")
                k_ = opt("a1pos", 6)
                fillm = st_loads(1) + fillm[:k_] + a_dma(1) + fillm[k_:] + bq.take(opt("we0", 0))
            if p == 0 and ks == 9:
                emit(A, fillv)
                A.wait_vm("s1")
                A("s_barrier")
                fillv = stats(1)
            A.wait_lg(f"f{ks}")
            while any((not callable(x)) and x[1] == f"b3_{ks}" for x in fillm):
                emit(A, [fillm.pop(0)])
            A.wait_vm(f"b3_{ks}")
            for idx in range(4):
                for u in range(3):
                    d = v(acc + (idx * 3 + u) * 4, 4)
                    A(f"{MF} {d}, {r(B3reg(ks,u),0,4)}, {v(Af+((ks%2)*4+idx)*4,4)}, {'0' if ks==0 else d}")
                    n += 1
                    if nxt and u == 0:
                        emit(A, [nxt.pop(0)])
                    elif n > 6:
                        for _ in range(2):
                            if fillv:
                                emit(A, [fillv.pop(0)])
                    if n % opt("p3mper", 4) == 2:
                        if fillm:
                            emit(A, [fillm.pop(0)])
                        elif late and ks >= 7:
                            emit(A, [late.pop(0)])
        emit(A, fillv + fillm + late)
        stamp(A, f"p3 pass{p} mfma done")
        emit(A, post)
        if p == 0:
            emit(A, epilogue(0, 0))
            stamp(A, "p3 epi0 done")
    return lambda: emit(A, epilogue(1, 0))


def p4(A, bq, epi1):
    K = KS(A, 4)
    K.RW = [204, 205, 206]
    K.vRr, K.vXo = 207, 27
    probe(A, "pr5")
    epi1()
    stamp(A, "p3 stores issued")
    check_flags(A, 5, "-1", "pr5")
    l0 = K.a_loads(0)
    n0 = opt("p4n0", 8)
    emit(A, l0[:n0])
    signal(A, 6, "hh1")
    stamp(A, "p3 signalled")
    n1 = opt("p4n1", 16)
    emit(A, l0[n0:n1])
    probe(A, "pr6")
    emit(A, l0[n1:])
    K.setup()
    check_flags(A, 6, "-1", "pr6")
    stamp(A, "p4 flags6 ok")
    K.mfmas(0, K.a_loads(1))
    K.reduce(0)
    stamp(A, "p4 h0 stored")
    K.mfmas(1)
    K.reduce(1)


def main(path):
    A = Asm()
    label = NAME + "_kernel"
    A.raw("; @launch grid=(256,1,1) block=(256,1,1) lds=163840")
    A.raw('.amdgcn_target "amdgcn-amd-amdhsa--gfx950"\n.text')
    bq = BQ()
    SQ_[0] = SQ()
    prologue(A, label)
    p1(A, bq)
    p2(A, bq)
    epi1 = p3(A, bq)
    p4(A, bq, epi1)
    if INSTR:
        A("s_waitcnt vmcnt(0) lgkmcnt(0)")
        stamp(A, "end")
        A(f"""
        s_memrealtime s[100:101]
        s_waitcnt lgkmcnt(0)
        v_writelane_b32 v{vSTAMP}, s100, 63
        s_lshl_b32 s{sA}, s2, 2
        s_add_u32 s{sA}, s{sA}, s{sW}
        s_lshl_b32 s{sA}, s{sA}, 8
        s_add_u32 s{sA}, s{sA}, {WS_PROF}
        buffer_store_dword v{vSTAMP}, v{vFo}, {WSS}, s{sA} offen
        s_waitcnt vmcnt(0)
        """)
        open(path + ".stamps", "w").write("\n".join(STAMPNAMES))
    A.raw("L_done:")
    A("s_endpgm")
    A.raw(f""".section .rodata,"a"
.p2align 6
.amdhsa_kernel {label}
  .amdhsa_next_free_vgpr 512
  .amdhsa_next_free_sgpr 102
  .amdhsa_accum_offset 256
  .amdhsa_group_segment_fixed_size 0
  .amdhsa_kernarg_size 80
  .amdhsa_user_sgpr_count 2
  .amdhsa_user_sgpr_kernarg_segment_ptr 1
  .amdhsa_system_sgpr_workgroup_id_x 1
.end_amdhsa_kernel""")
    open(path, "w").write(A.text())
    print("instructions", A.nins, "nops", A.nnop)


if __name__ == "__main__":
    main(sys.argv[1] if len(sys.argv) > 1 else f"k6.s")
```

```python
import sys, os, struct, re
from asmlib import *

NAME = "sequential_preLN__sliding_local_dilated__glu_gated_reglu__prompt"
INSTR = int(os.environ.get("INSTR", "0"))
OPT = dict(x.split("=") for x in os.environ.get("OPT", "").split(",") if x)
def opt(k, d):
    return int(OPT.get(k, d))

WS_ARR = 0x8000
WS_F2 = 0x10000
WS_F3 = 0x20000
WS_O = 0x100000
WS_H = 0x300000
WS_HH = 0x500000
WS_ST = 0xC00000
WS_PROF = 0xE00000
WS_R3 = 0x1000000
WS_R2 = 0x1400000
WS_R4 = 0x1500000
WS_CS = 0x1700000
WS_S1 = 0x1780000
WS_SIZE = 0x2000000
HHK = 48
OOB = 0x7f000000

sXCC = 3
SX, SWQ, SWS, SOUT, SDBG, SB3, SWO, SWD = 4, 8, 12, 16, 20, 24, 28, 32
sW, sG, sJ, sHB, sCB, sRB, sIDX, sW1, sWH, sW12, sG3, sJ3 = range(36, 48)
sA, sB, sC, sBA, sCNT = 48, 49, 50, 51, 52
sFAST, sNON, sFLG, sFLA, sK4, sB3b = 53, 54, 55, 56, 57, 58
sKC0, sXo0, sXo1, sXo2 = 60, 61, 62, 63
KA = 64
sM1, sM2, sM3, sDiag = 64, 66, 68, 70
sB2l, sB2h, sB4l, sB4h, sB4zl, sB4zh = 72, 73, 74, 75, 76, 77
sSQ, sDUM = 78, 80
t1, t2, t3 = 81, 82, 83
sXl, sXl2, sWl, sWs = 84, 85, 86, 87
sEX0, sEX2, sW0, sHM = 88, 90, 92, 94

vL, vJ, vQ, vL16 = 1, 2, 3, 4
vAo, vF, vFo = 5, 6, 7
vT0, vT1, vT2, vT3 = 8, 9, 10, 11
vSTAMP = 15
vDs = 16
vSt = 17
HRES = 18
ones = 28
VA = 244

SLOT = 34816
STG = 104448
MISC = 153600

LOG2E = 1.4426950408889634
MF = "v_mfma_f32_16x16x32_bf16"
MF16 = "v_mfma_f32_16x16x16_bf16"
WSS = f"s[{SWS}:{SWS+3}]"


def f32hex(x):
    return "0x%08x" % struct.unpack("<I", struct.pack("<f", x))[0]


STAMPN = [0]
STAMPNAMES = []
def stamp(A, name=""):
    if not INSTR:
        return
    if INSTR == 2 and not any(k in name for k in ("start", "end", "loop done", "mfma done", "bar0")):
        return
    i = STAMPN[0]
    STAMPN[0] += 1
    STAMPNAMES.append(name)
    assert i < 60
    A(f"s_memtime s[100:101]\ns_waitcnt lgkmcnt(0)\nv_writelane_b32 v{vSTAMP}, s100, {i}")


def emit(A, items):
    for it in items:
        if callable(it):
            it()
        else:
            A(it[0], tag=it[1])


def weave(main, fills):
    out = []
    pos = [0] * len(fills)
    for i, m in enumerate(main):
        out.append(m)
        for k, (items, start, per) in enumerate(fills):
            if i >= start:
                n = per(i) if callable(per) else per
                out.extend(items[pos[k]:pos[k] + n])
                pos[k] += n
    for k, (items, start, per) in enumerate(fills):
        out.extend(items[pos[k]:])
    return out


def unpack_pk(t):
    mn, rest = t.split(None, 1)
    toks = rest.split()
    ops = [x.strip(",") for x in toks if x.startswith("v[")]
    mods = {x.split(":")[0]: eval(x.split(":", 1)[1]) for x in toks if x.startswith(("op_sel", "neg_"))}
    n = len(ops) - 1
    base = [int(re.match(r"v\[(\d+):", o).group(1)) for o in ops]
    sel_lo = mods.get("op_sel", [0] * n)
    sel_hi = mods.get("op_sel_hi", [1] * n)
    neg_lo = mods.get("neg_lo", [0] * n)
    neg_hi = mods.get("neg_hi", [0] * n)
    op = {"v_pk_add_f32": "v_add_f32", "v_pk_mul_f32": "v_mul_f32", "v_pk_fma_f32": "v_fma_f32"}[mn]
    out = []
    for half, sel, neg in ((0, sel_lo, neg_lo), (1, sel_hi, neg_hi)):
        srcs = [("-" if neg[i] else "") + f"v{base[i+1] + sel[i]}" for i in range(n)]
        out.append(f"{op} v{base[0]+half}, " + ", ".join(srcs))
    return out


def B2reg(st, ct):
    return ("a", 192 + (st * 4 + ct) * 4)
def B4reg(st, ct):
    if st < 4:
        return ("a", 192 + (st * 4 + ct) * 4)
    if st < 7:
        return ("v", 208 + ((st - 4) * 4 + ct) * 4)
    return ("a", ((st - 7) * 4 + ct) * 4)
def B3reg(ks, u):
    return ("a", (ks * 3 + u) * 4)


class BQ:
    def __init__(self):
        q = []
        def kload(reg, lo, hi, st, ct, tag, zl=None, zh=None):
            if zl is not None:
                pre = f"s_mov_b32 s{sBA}, s{zl if ct < 2 else zh}"
            else:
                pre = f"s_add_u32 s{sBA}, s{lo if ct < 2 else hi}, {st*4096}"
            return (f"{pre}\nbuffer_load_dwordx4 {r(reg,0,4)}, v{vL16}, {WSS}, s{sBA} offen offset:{(ct&1)*1024}", tag)
        for st in range(4):
            for ct in range(4):
                q.append(kload(B2reg(st, ct), sB2l, sB2h, st, ct, f"b2_{st}"))
        for n in range(48):
            ks, u = divmod(n, 3)
            q.append((f"s_add_u32 s{sBA}, s{sB3b}, {(n//4)*4096}\nbuffer_load_dwordx4 {r(B3reg(ks,u),0,4)}, v{vL16}, {WSS}, s{sBA} offen offset:{(n%4)*1024}", f"b3_{ks}"))
        for st in range(11):
            for ct in range(4):
                q.append(kload(B4reg(st, ct), sB4l, sB4h, st, ct, f"b4_{st}", *((sB4zl, sB4zh) if st == 0 else ())))
        self.q = q
        self.pos = 0
        self.limit = 16

    def take(self, n):
        e = max(self.pos, min(self.pos + n, self.limit, len(self.q)))
        out = self.q[self.pos:e]
        self.pos = e
        return out

    def upto(self, idx):
        return self.take(max(0, idx - self.pos))


LBL = [0]
def newlbl():
    LBL[0] += 1
    return LBL[0]


def spin(A, tag, test, reprobe, limit=0x40000, only_w0=False, after=None, sleep=0):
    n = newlbl()
    A.wait_vm(tag)
    saved = list(A.vm)
    A.fence()
    if only_w0:
        A(f"s_cmp_eq_u32 s{sW}, 0\ns_cbranch_scc0 L_skip{n}")
    A(f"s_mov_b32 s{sCNT}, 0")
    A.raw(f"L_wait{n}:")
    test(f"L_go{n}")
    if sleep:
        A(f"s_sleep {sleep}")
    reprobe()
    A(f"""
    s_waitcnt vmcnt(0)
    s_add_u32 s{sCNT}, s{sCNT}, 1
    s_cmp_lt_u32 s{sCNT}, {limit}
    s_cbranch_scc1 L_wait{n}
    """)
    A.raw(f"L_go{n}:")
    A.fence()
    if after:
        after()
    if only_w0:
        A.raw(f"L_skip{n}:")
    A.vm = saved
    A.fence()


def flag_test(A, step, mask):
    def t(lbl):
        A(f"""
        s_add_u32 s{sBA}, s{sNON}, {step}
        v_subrev_u32 v{vF}, s{sBA}, v{vF}
        v_cmp_lt_u32 vcc, 15, v{vF}
        s_and_b64 vcc, vcc, {mask}
        s_cbranch_scc0 {lbl}
        """)
    return t


def probe1(A, tag):
    A(f"buffer_load_dword v{vF}, v{vFo}, {WSS}, s{sFLG} offen sc1", tag=tag)

def check1(A, step, tag):
    spin(A, tag, flag_test(A, step, f"s[{sHM}:{sHM+1}]"), lambda: probe1(A, None))

def signal1(A, step, tags):
    A.wait_vm(tags)
    n = newlbl()
    A(f"""
    s_add_u32 s{sBA}, s{sNON}, {step}
    v_mov_b32 v{vT0}, s{sBA}
    v_mov_b32 v{vT1}, 0
    s_mov_b64 exec, 1
    s_cmp_eq_u32 s{sFAST}, 1
    s_cbranch_scc1 L_hf{n}
    buffer_store_dword v{vT0}, v{vT1}, {WSS}, s{sFLA} offen sc1
    s_branch L_he{n}
    """)
    A.raw(f"L_hf{n}:")
    A.raw(f"    buffer_store_dword v{vT0}, v{vT1}, {WSS}, s{sFLA} offen")
    A.raw(f"L_he{n}:")
    A("s_mov_b64 exec, -1")


def wg_signal(A, base, sg, sj, step):
    A(f"""
    s_add_u32 s{sBA}, s{sNON}, {step}
    v_mov_b32 v{vT0}, s{sBA}
    v_mov_b32 v{vT1}, 0
    s_lshl_b32 s{sBA}, s{sg}, 4
    s_add_u32 s{sBA}, s{sBA}, s{sj}
    s_lshl_b32 s{sBA}, s{sBA}, 7
    s_add_u32 s{sBA}, s{sBA}, {base}
    s_mov_b64 exec, s[{sW0}:{sW0+1}]
    """)
    A(f"buffer_store_dword v{vT0}, v{vT1}, {WSS}, s{sBA} offen sc1", tag="~wgf")
    A("s_mov_b64 exec, -1")

def wg_probe(A, base, sg, tag):
    A(f"""
    s_lshl_b32 s{sBA}, s{sg}, 11
    s_add_u32 s{sBA}, s{sBA}, {base}
    v_lshlrev_b32 v{vT3}, 7, v{vJ}
    """)
    A(f"buffer_load_dword v{vF}, v{vT3}, {WSS}, s{sBA} offen sc1", tag=tag)

def wg_check(A, base, sg, step, tag):
    spin(A, tag, flag_test(A, step, "-1"), lambda: wg_probe(A, base, sg, None))


def arr_probe(A, tag, which):
    A(f"buffer_load_dwordx4 v[{VA}:{VA+3}], v{vAo}, {WSS}, 0 offen offset:{which*2048} sc1", tag=tag)

def arr_store(A, which):
    A(f"""
    s_add_u32 s{sBA}, s{sNON}, s{sXCC}
    v_mov_b32 v{vT0}, s{sBA}
    v_mov_b32 v{vT1}, 0
    s_lshl_b32 s{sBA}, s{sRB}, 10
    s_lshl_b32 s{sCNT}, s{sCB}, 2
    s_add_u32 s{sBA}, s{sBA}, s{sCNT}
    s_lshl_b32 s{sBA}, s{sBA}, 0
    s_add_u32 s{sBA}, s{sBA}, {WS_ARR*4 + which*2048*0}
    s_mov_b64 exec, s[{sW0}:{sW0+1}]
    """) if False else A(f"""
    s_add_u32 s{sBA}, s{sNON}, s{sXCC}
    v_mov_b32 v{vT0}, s{sBA}
    v_mov_b32 v{vT1}, 0
    s_lshl_b32 s{sBA}, s{sRB}, 12
    s_lshl_b32 s{sCNT}, s{sCB}, 2
    s_add_u32 s{sBA}, s{sBA}, s{sCNT}
    s_add_u32 s{sBA}, s{sBA}, {WS_ARRB + which*2048}
    s_mov_b64 exec, s[{sW0}:{sW0+1}]
    """)
    A(f"buffer_store_dword v{vT0}, v{vT1}, {WSS}, s{sBA} offen sc1", tag="~arrst")
    A("s_mov_b64 exec, -1")

WS_ARRB = 0x40000

def arr_test(A):
    def t(lbl):
        A(f"""
        v_subrev_u32 v{VA}, s{sNON}, v{VA}
        v_subrev_u32 v{VA+1}, s{sNON}, v{VA+1}
        v_subrev_u32 v{VA+2}, s{sNON}, v{VA+2}
        v_subrev_u32 v{VA+3}, s{sNON}, v{VA+3}
        v_or_b32 v{vT0}, v{VA}, v{VA+1}
        v_or3_b32 v{vT0}, v{vT0}, v{VA+2}, v{VA+3}
        v_cmp_lt_u32 vcc, 15, v{vT0}
        s_and_b64 vcc, vcc, -1
        s_cbranch_scc0 {lbl}
        """)
    return t


class SQ:
    def __init__(self):
        first = opt("sq0", 24)
        self.q = [kb * 1024 + l * 128 for kb in range(first, 48, 4) for l in range(8)]
        self.pos = 0
    def take(self, n):
        if not opt("smem", 0):
            return []
        out = self.q[self.pos:self.pos + n]
        self.pos += len(out)
        return [(f"s_load_dword s{sDUM}, s[{sSQ}:{sSQ+1}], {o}", None) for o in out]


def srd(A, d, p, n):
    A(f"""
    s_mov_b32 s{d}, s{p}
    s_and_b32 s{d+1}, s{p+1}, 0xffff
    s_mov_b32 s{d+2}, {n}
    s_mov_b32 s{d+3}, 0x20000
    """)


def p1(A, bq, sq, label):
    ST = MISC
    vWe, vWo_, vA0, vA1, vWt = 32, 33, 34, 35, 36
    vA0b, vA1b, vWtb = 37, 38, 39
    vSa, vSc, vSl, vOst = 40, 41, 42, 43
    vTrA, vTrB = 44, 46
    accQ, accK, accV = 48, 68, 88
    Af = [108, 128]
    Wf = [148, 160]
    biasP, biasC, biasF, selLo, selHi = 196, 200, 204, 208, 209
    WO = 10240
    vD3, vTr3 = 172, 175
    XR = 180
    S1, S2 = 188, 189
    vXr = 192
    RT = 212
    CSP = 232
    STG_E, STG_3, STG_4 = STG, STG + 4096, STG + 16384

    A.raw(".p2align 8\n.globl %s\n.type %s,@function\n%s:" % (label, label, label))
    if INSTR:
        A("s_memrealtime s[100:101]\ns_waitcnt lgkmcnt(0)\nv_writelane_b32 v15, s100, 62")
        stamp(A, "start")
    xrot = f"s_and_b32 s{sB}, s2, 7" if opt("xrot", 1) else f"s_mov_b32 s{sB}, 0"
    crot = f"s_lshl_b32 s{sA}, s{sA}, 2" if opt("crot", 1) else f"s_mov_b32 s{sA}, 0"
    A(f"""
    s_cmp_ge_u32 s2, 256
    s_cbranch_scc1 L_done
    s_load_dwordx16 s[{KA}:{KA+15}], s[0:1], 0
    s_load_dwordx4 s[{KA+16}:{KA+19}], s[0:1], 64
    s_memrealtime s[98:99]
    v_and_b32 v{vL}, 63, v0
    v_lshrrev_b32 v{vT0}, 6, v0
    s_lshr_b32 s{sIDX}, s2, 3
    s_and_b32 s{sG}, s2, 7
    s_lshl_b32 s{sG}, s{sG}, 1
    v_readfirstlane_b32 s{sW}, v{vT0}
    s_lshr_b32 s{sA}, s{sIDX}, 4
    s_add_u32 s{sG}, s{sG}, s{sA}
    s_and_b32 s{sJ}, s{sIDX}, 15
    s_lshr_b32 s{sHB}, s{sJ}, 3
    s_and_b32 s{sCB}, s{sJ}, 7
    s_lshl_b32 s{sRB}, s{sG}, 1
    s_add_u32 s{sRB}, s{sRB}, s{sHB}
    s_lshr_b32 s{sWH}, s{sW}, 1
    s_and_b32 s{sW1}, s{sW}, 1
    v_lshrrev_b32 v{vT0}, 3, v{vL}
    v_and_b32 v{vT1}, 7, v{vL}
    v_and_b32 v{vT2}, 6, v{vT0}
    v_xor_b32 v{vT2}, v{vT1}, v{vT2}
    v_lshlrev_b32 v{vT2}, 4, v{vT2}
    v_lshl_add_u32 v{vDs}, v{vT0}, 10, v{vT2}
    v_and_b32 v{vT2}, 2, v{vT0}
    v_xor_b32 v{vT2}, v{vT1}, v{vT2}
    v_lshlrev_b32 v{vT2}, 4, v{vT2}
    v_mul_u32_u24 v{vWe}, 3072, v{vT0}
    v_add_u32 v{vWe}, v{vWe}, v{vT2}
    v_xor_b32 v{vWo_}, 64, v{vWe}
    v_add_u32 v{vWo_}, 24576, v{vWo_}
    s_lshr_b32 s{sA}, s{sIDX}, 3
    s_add_u32 s{sA}, s{sA}, s{sCB}
    s_and_b32 s{sA}, s{sA}, 1
    {crot}
    {xrot}
    s_add_u32 s{sKC0}, s{sA}, s{sB}
    s_lshl_b32 s{sA}, s{sRB}, 16
    s_sub_u32 s{sA}, s{sA}, 16384
    s_lshl_b32 s{sB}, s{sW}, 14
    s_add_u32 s{sXo0}, s{sA}, s{sB}
    s_add_u32 s{sXo1}, s{sXo0}, 8192
    s_max_i32 s{sXo0}, s{sXo0}, 0
    s_max_i32 s{sXo1}, s{sXo1}, 0
    s_lshl_b32 s{sC}, s{sWH}, 13
    s_add_u32 s{sXo2}, s{sA}, s{sC}
    s_add_u32 s{sXo2}, s{sXo2}, 65536
    s_lshl_b32 s{sXl}, s{sW}, 11
    s_lshl_b32 s{sXl2}, s{sWH}, 10
    s_add_u32 s{sXl2}, s{sXl2}, 8192
    s_mul_i32 s{sWl}, s{sW}, 6144
    s_add_u32 s{sWl}, s{sWl}, {WO}
    s_mul_i32 s{sWs}, s{sW}, 49152
    s_lshl_b32 s{sB}, s{sCB}, 7
    s_add_u32 s{sWs}, s{sWs}, s{sB}
    s_cmp_eq_u32 s{sW}, 0
    s_cselect_b32 s{sEX0}, 0xffffff00, -1
    s_mov_b32 s{sEX0+1}, -1
    s_cselect_b32 s{sW0}, 1, 0
    s_mov_b32 s{sW0+1}, 0
    s_cmp_eq_u32 s{sW1}, 0
    s_cselect_b32 s{sEX2}, -1, 0
    s_cselect_b32 s{sEX2+1}, 0, -1
    s_lshl_b32 s{sFLG}, s{sG}, 8
    v_and_b32 v{vJ}, 15, v{vL}
    v_lshrrev_b32 v{vQ}, 4, v{vL}
    v_lshlrev_b32 v{vL16}, 4, v{vL}
    v_lshlrev_b32 v{vFo}, 2, v{vL}
    v_lshlrev_b32 v{vXr}, 5, v{vL}
    s_waitcnt lgkmcnt(0)
    """)
    srd(A, SWQ, KA + 2, 512 * 1536 * 2)
    srd(A, SX, KA + 0, 2048 * 512 * 2)
    stamp(A, "kernarg ok")

    def dma(i):
        slot = i % 3
        it = []
        tag = f"c{i}"
        it.append((f"""
        s_add_u32 s{sA}, s{sKC0}, {i}
        s_and_b32 s{sA}, s{sA}, 7
        s_mul_i32 s{sC}, s{sA}, {64*3072}
        s_add_u32 s{sC}, s{sC}, s{sWs}
        s_lshl_b32 s{sA}, s{sA}, 7
        s_add_u32 m0, s{sWl}, {slot*SLOT}
        buffer_load_dwordx4 v{vWe}, s[{SWQ}:{SWQ+3}], s{sC} offen lds""", tag))
        for sec in (1, 2):
            it.append((f"buffer_load_dwordx4 v{vWe}, s[{SWQ}:{SWQ+3}], s{sC} offen offset:{sec*1024} lds", tag))
        for sec in range(3):
            pre = f"s_add_u32 m0, s{sWl}, {slot*SLOT+3072}\n" if sec == 0 else ""
            it.append((pre + f"buffer_load_dwordx4 v{vWo_}, s[{SWQ}:{SWQ+3}], s{sC} offen offset:{sec*1024} lds", tag))
        it.append((f"""
        s_mov_b64 exec, s[{sEX0}:{sEX0+1}]
        s_add_u32 m0, s{sXl}, {slot*SLOT}
        s_add_u32 s{sB}, s{sXo0}, s{sA}
        buffer_load_dwordx4 v{vDs}, s[{SX}:{SX+3}], s{sB} offen lds
        s_mov_b64 exec, -1""", tag))
        it.append((f"""
        s_add_u32 m0, s{sXl}, {slot*SLOT+1024}
        s_add_u32 s{sB}, s{sXo1}, s{sA}
        buffer_load_dwordx4 v{vDs}, s[{SX}:{SX+3}], s{sB} offen lds""", tag))
        it.append((f"""
        s_mov_b64 exec, s[{sEX2}:{sEX2+1}]
        s_add_u32 m0, s{sXl2}, {slot*SLOT}
        s_add_u32 s{sB}, s{sXo2}, s{sA}
        buffer_load_dwordx4 v{vDs}, s[{SX}:{SX+3}], s{sB} offen lds
        s_mov_b64 exec, -1""", tag))
        return it

    emit(A, dma(0))
    srd(A, SDBG, KA + 16, 256)
    A(f"""
    s_mov_b32 s59, s98
    s_lshl_b32 s98, s98, 5
    s_or_b32 s98, s98, 16
    v_mov_b32 v{vT0}, s98
    v_mov_b32 v{vT1}, 0
    v_mov_b32 v{vT2}, 0
    s_lshl_b32 s99, s2, 2
    s_add_u32 s99, s99, s{sW}
    s_and_b32 s99, s99, 0xffffffe3
    s_cmp_eq_u32 s99, 0
    s_cselect_b64 exec, 1, 0
    """)
    A(f"buffer_atomic_cmpswap v[{vT0}:{vT1}], v{vT2}, s[{SDBG}:{SDBG+3}], 0 offen sc1", tag="~cas")
    A("s_mov_b64 exec, -1")
    srd(A, SWO, KA + 4, 512 * 512 * 2)
    srd(A, SWS, KA + 18, WS_SIZE)
    A(f"""
    s_lshr_b32 s{sA}, s2, 3
    s_lshl_b32 s{sA}, s{sA}, 15
    s_and_b32 s{sB}, s2, 7
    s_lshl_b32 s{sB}, s{sB}, 7
    s_add_u32 s{sA}, s{sA}, s{sB}
    s_lshl_b32 s{sB}, s{sW}, 13
    s_add_u32 s{sA}, s{sA}, s{sB}
    s_lshl_b32 s{sB}, s{sW}, 10
    s_add_u32 m0, s{sB}, {STG_E}
    """)
    A(f"buffer_load_dwordx4 v{vDs}, s[{SWO}:{SWO+3}], s{sA} offen lds", tag="e")
    A(f"""
    s_lshl_b32 s{sA}, s{sRB}, 16
    s_lshl_b32 s{sB}, s{sCB}, 13
    s_add_u32 s{sA}, s{sA}, s{sB}
    s_lshl_b32 s{sB}, s{sW}, 11
    s_add_u32 s{sA}, s{sA}, s{sB}
    """)
    A(f"buffer_load_dwordx4 v[{XR}:{XR+3}], v{vXr}, s[{SX}:{SX+3}], s{sA} offen", tag="e")
    A(f"buffer_load_dwordx4 v[{XR+4}:{XR+7}], v{vXr}, s[{SX}:{SX+3}], s{sA} offen offset:16", tag="e")
    if opt("cpf", 1):
        A("s_getpc_b64 s[96:97]")
        A.raw("L_pc:")
        A(f"""
        s_lshl_b32 s{sA}, s{sIDX}, 10
        v_lshrrev_b32 v{vT3}, 5, v0
        v_lshlrev_b32 v{vT3}, 7, v{vT3}
        v_add_u32 v{vT3}, s{sA}, v{vT3}
        v_min_u32 v{vT3}, L_done-L_pc, v{vT3}
        global_load_dword v{vF}, v{vT3}, s[96:97]
        """)
    stamp(A, "c0+early issued")
    srd(A, SOUT, KA + 14, 2048 * 512 * 2)
    srd(A, SWD, KA + 12, 1376 * 512 * 2)
    A(f"""
    s_cmp_eq_u32 s{sW1}, 0
    s_cselect_b32 s{SB3}, s{KA+8}, s{KA+10}
    s_cselect_b32 s{SB3+1}, s{KA+9}, s{KA+11}
    s_and_b32 s{SB3+1}, s{SB3+1}, 0xffff
    s_mov_b32 s{SB3+2}, {512*1376*2}
    s_mov_b32 s{SB3+3}, 0x20000
    s_getreg_b32 s{sXCC}, hwreg(HW_REG_XCC_ID)
    s_and_b32 s{sXCC}, s{sXCC}, 15
    s_mov_b32 s{sFAST}, 0
    v_mov_b32 v{ones}, 0x3f803f80
    v_mov_b32 v{ones+1}, 0x3f803f80
    v_mov_b32 v{ones+2}, 0x3f803f80
    v_mov_b32 v{ones+3}, 0x3f803f80
    v_lshrrev_b32 v{vT0}, 3, v{vJ}
    v_and_b32 v{vT1}, 7, v{vJ}
    v_lshlrev_b32 v{vT1}, 7, v{vT1}
    v_lshl_add_u32 v{vT0}, v{vT0}, 10, v{vT1}
    v_and_b32 v{vT1}, 6, v{vJ}
    v_xor_b32 v{vT1}, v{vQ}, v{vT1}
    v_lshl_add_u32 v{vA0}, v{vT1}, 4, v{vT0}
    v_xor_b32 v{vA1}, 64, v{vA0}
    v_bfe_u32 v{vT0}, v{vL}, 2, 2
    v_bfe_u32 v{vT1}, v{vL}, 1, 1
    s_lshl_b32 s{sA}, s{sW}, 1
    v_add_u32 v{vT1}, s{sA}, v{vT1}
    v_and_b32 v{vT2}, 1, v{vQ}
    v_lshlrev_b32 v{vT2}, 2, v{vT2}
    v_xor_b32 v{vT1}, v{vT1}, v{vT2}
    v_and_b32 v{vT2}, 2, v{vT0}
    v_xor_b32 v{vT1}, v{vT1}, v{vT2}
    v_lshlrev_b32 v{vT1}, 4, v{vT1}
    v_lshl_add_u32 v{vT1}, v{vT0}, 7, v{vT1}
    v_and_b32 v{vT2}, 1, v{vL}
    v_lshl_add_u32 v{vT1}, v{vT2}, 3, v{vT1}
    v_mul_u32_u24 v{vT2}, 3072, v{vQ}
    v_add_u32 v{vT1}, v{vT1}, v{vT2}
    v_add_u32 v{vWt}, {WO}, v{vT1}
    v_add_u32 v{vA0b}, {2*SLOT}, v{vA0}
    v_add_u32 v{vA1b}, {2*SLOT}, v{vA1}
    v_add_u32 v{vWtb}, {2*SLOT}, v{vWt}
    v_lshrrev_b32 v{vT0}, 3, v{vL}
    v_mul_u32_u24 v{vT0}, {SLOT}, v{vT0}
    v_and_b32 v{vT1}, 7, v{vL}
    v_lshl_add_u32 v{vT0}, v{vT1}, 4, v{vT0}
    s_mov_b64 exec, 0xffffff
    ds_write_b128 v{vT0}, v[{ones}:{ones+3}]
    s_mov_b64 exec, -1
    v_bfe_u32 v{vT2}, v{vL}, 1, 1
    v_lshlrev_b32 v{vT2}, 4, v{vT2}
    v_and_b32 v{vT3}, 1, v{vL}
    v_lshl_add_u32 v{vT2}, v{vT3}, 3, v{vT2}
    s_lshl_b32 s{sA}, s{sW}, 5
    v_xor_b32 v{vT2}, s{sA}, v{vT2}
    v_bfe_u32 v{vT0}, v{vL}, 2, 3
    v_and_b32 v{vT1}, 6, v{vT0}
    v_lshlrev_b32 v{vT1}, 4, v{vT1}
    v_xor_b32 v{vT1}, v{vT1}, v{vT2}
    v_lshl_add_u32 v{vT1}, v{vT0}, 7, v{vT1}
    v_lshrrev_b32 v{vT0}, 5, v{vL}
    v_lshl_add_u32 v{vTrB}, v{vT0}, 10, v{vT1}
    v_add_u32 v{vTrB}, {STG_4}, v{vTrB}
    v_bfe_u32 v{vT0}, v{vL}, 2, 2
    v_and_b32 v{vT1}, 2, v{vT0}
    v_lshlrev_b32 v{vT1}, 4, v{vT1}
    v_xor_b32 v{vT1}, v{vT1}, v{vT2}
    v_lshl_add_u32 v{vT1}, v{vT0}, 7, v{vT1}
    v_lshl_add_u32 v{vT1}, v{vQ}, 10, v{vT1}
    v_xor_b32 v{vT0}, 64, v{vT1}
    v_add_u32 v{vTrA}, {STG_E}, v{vT1}
    v_add_u32 v{vTrA+1}, {STG_E+512}, v{vT0}
    """)
    A(f"buffer_load_dword v{vF}, v{vFo}, {WSS}, s{sFLG} offen sc1", tag="e")
    A(f"""
    v_mov_b32 v{vT3}, 0
    s_cmp_eq_u32 s{sW}, 0
    s_cselect_b64 exec, -1, 0
    """)
    A(f"buffer_load_dword v{vF}, v{vT3}, s[{SDBG}:{SDBG+3}], 0 offen sc1", tag="~non")
    A("s_mov_b64 exec, -1")
    emit(A, dma(1))
    stamp(A, "c1 issued")
    p3x = opt("p3x", 1)
    role = f"""
    s_and_b32 s{t1}, s2, 7
    s_lshr_b32 s{t2}, s{t1}, 1
    s_lshl_b32 s{sG3}, s{t2}, 2
    s_lshr_b32 s{t2}, s{sIDX}, 3
    s_add_u32 s{sG3}, s{sG3}, s{t2}
    s_and_b32 s{t1}, s{t1}, 1
    s_lshl_b32 s{sJ3}, s{t1}, 3
    s_and_b32 s{t2}, s{sIDX}, 7
    s_add_u32 s{sJ3}, s{sJ3}, s{t2}
    """ if p3x else f"""
    s_mov_b32 s{sG3}, s{sG}
    s_mov_b32 s{sJ3}, s{sJ}
    """
    A(role + f"""
    s_lshl_b32 s{sA}, s{sW1}, 5
    """)
    for n in range(3):
        A(f"""
        v_add_u32 v{vT0}, {64*n}, v{vL}
        v_mul_u32_u24 v{vT1}, 43691, v{vT0}
        v_lshrrev_b32 v{vT1}, 19, v{vT1}
        v_mul_u32_u24 v{vT2}, 12, v{vT1}
        v_sub_u32 v{vT0}, v{vT0}, v{vT2}
        v_bfe_u32 v{vT2}, v{vT1}, 2, 1
        v_xor_b32 v{vT0}, v{vT0}, v{vT2}
        v_mul_u32_u24 v{vT1}, 2752, v{vT1}
        v_lshl_add_u32 v{vT0}, v{vT0}, 4, v{vT1}
        v_xor_b32 v{vT0}, s{sA}, v{vT0}
        v_subrev_u32 v{vD3+n}, {1024*n}, v{vT0}
        """)
    A(f"""
    v_lshrrev_b32 v{vT0}, 2, v{vL}
    v_mul_u32_u24 v{vT0}, 192, v{vT0}
    v_bfe_u32 v{vT1}, v{vL}, 1, 1
    v_mul_u32_u24 v{vT2}, 3072, v{vT1}
    v_add_u32 v{vT0}, v{vT0}, v{vT2}
    v_add_u32 v{vT0}, {STG_3}, v{vT0}
    v_and_b32 v{vT2}, 1, v{vQ}
    v_lshl_add_u32 v{vT1}, v{vT1}, 1, v{vT2}
    v_and_b32 v{vT2}, 1, v{vL}
    s_lshl_b32 s{t3}, s{sWH}, 2
    s_add_u32 s{t3}, s{t3}, s{sW1}
    v_xor_b32 v{vT3}, s{t3}, v{vT1}
    v_lshl_add_u32 v{vT3}, v{vT3}, 4, v{vT0}
    v_lshl_add_u32 v{vTr3}, v{vT2}, 3, v{vT3}
    s_add_u32 s{t3}, s{t3}, 2
    v_xor_b32 v{vT3}, s{t3}, v{vT1}
    v_lshl_add_u32 v{vT3}, v{vT3}, 4, v{vT0}
    v_lshl_add_u32 v{vTr3+1}, v{vT2}, 3, v{vT3}
    s_add_u32 s{t3}, s{sWH}, 8
    v_lshl_add_u32 v{vT3}, v{vT2}, 1, s{t3}
    v_xor_b32 v{vT3}, v{vT3}, v{vT1}
    v_lshl_add_u32 v{vT3}, v{vT3}, 4, v{vT0}
    s_lshl_b32 s{t2}, s{sW1}, 3
    v_add_u32 v{vTr3+2}, s{t2}, v{vT3}
    v_lshlrev_b32 v{vSt}, 8, v{vJ}
    v_lshl_add_u32 v{vSt}, v{vQ}, 4, v{vSt}
    v_lshrrev_b32 v{vT0}, 1, v{vL}
    v_and_b32 v{vT1}, 1, v{vL}
    v_lshlrev_b32 v{vT1}, 4, v{vT1}
    v_lshl_add_u32 v{vAo}, v{vT0}, 12, v{vT1}
    v_add_u32 v{vAo}, {WS_ARRB}, v{vAo}
    s_lshl_b32 s{sW12}, s{sW}, 12
    s_mul_i32 s{sK4}, s{sW}, 11
    s_min_u32 s{sK4}, s{sK4}, 32
    s_lshl_b32 s{t1}, s{sJ3}, 2
    s_add_u32 s{t1}, s{t1}, s{sW}
    s_mul_i32 s{sB3b}, s{t1}, 49152
    s_add_u32 s{sB3b}, s{sB3b}, {WS_R3}
    s_lshl_b32 s{t1}, s{sJ}, 2
    s_add_u32 s{t1}, s{t1}, s{sW}
    s_lshl_b32 s{sFLA}, s{t1}, 2
    s_add_u32 s{sFLA}, s{sFLA}, s{sFLG}
    s_and_b32 s{sSQ}, s{sG3}, 3
    s_lshl_b32 s{sSQ}, s{sSQ}, 10
    s_add_u32 s{sSQ}, s{sSQ}, s{sB3b}
    s_add_u32 s{sSQ}, s{sSQ}, s{SWS}
    s_addc_u32 s{sSQ+1}, s{SWS+1}, 0
    s_lshl_b32 s{t2}, s{sW1}, 11
    s_xor_b32 s{t3}, s{t2}, 2048
    s_lshl_b32 s{sA}, s{sCB}, 16
    s_lshl_b32 s{sB}, s{sW}, 14
    s_add_u32 s{sA}, s{sA}, s{sB}
    s_add_u32 s{sA}, s{sA}, {WS_R2}
    s_add_u32 s{sB2l}, s{sA}, s{t2}
    s_add_u32 s{sB2h}, s{sA}, s{t3}
    s_mul_i32 s{sA}, s{sCB}, 48
    s_add_u32 s{sB}, s{sA}, s{sK4}
    s_lshl_b32 s{sB}, s{sB}, 12
    s_add_u32 s{sB}, s{sB}, {WS_R4}
    s_add_u32 s{sB4l}, s{sB}, s{t2}
    s_add_u32 s{sB4h}, s{sB}, s{t3}
    s_add_u32 s{sA}, s{sA}, 43
    s_lshl_b32 s{sA}, s{sA}, 12
    s_add_u32 s{sA}, s{sA}, {WS_R4}
    s_cmp_eq_u32 s{sW}, 3
    s_cselect_b32 s{sB4zl}, s{sA}, s{sB4l}
    s_cselect_b32 s{sB4zh}, s{sA}, s{sB4h}
    s_cmp_eq_u32 s{sHB}, 0
    s_cselect_b32 s{sHM}, -1, 0
    s_cselect_b32 s{sHM+1}, 0, -1
    """)
    NEG = f32hex(-1e30)
    A(f"""
    v_lshlrev_b32 v{vT0}, 2, v{vQ}
    v_sub_u32 v{vT0}, v{vT0}, v{vJ}
    v_mov_b32 v{vT3}, {NEG}
    s_cmp_eq_u32 s{sRB}, 0
    s_cselect_b64 s[96:97], -1, 0
    """)
    for r_ in range(4):
        A(f"""
        v_add_u32 v{vT1}, {r_}, v{vT0}
        v_and_b32 v{vT2}, 1, v{vT1}
        v_cmp_eq_u32 s[64:65], 0, v{vT2}
        v_cmp_le_i32 s[66:67], 2, v{vT1}
        v_cmp_ge_i32 s[68:69], 0, v{vT1}
        s_and_b64 s[66:67], s[66:67], s[64:65]
        s_and_b64 s[68:69], s[68:69], s[64:65]
        v_cndmask_b32 v{biasP+r_}, v{vT3}, 0, s[66:67]
        v_cndmask_b32 v{biasC+r_}, v{vT3}, 0, s[68:69]
        v_cndmask_b32 v{biasF+r_}, v{biasP+r_}, v{vT3}, s[96:97]
        """)
    A(f"""
    v_and_b32 v{vT0}, 3, v{vJ}
    v_cmp_eq_u32 s[{sM1}:{sM1+1}], 1, v{vT0}
    v_cmp_eq_u32 s[{sM2}:{sM2+1}], 2, v{vT0}
    v_cmp_eq_u32 s[{sM3}:{sM3+1}], 3, v{vT0}
    v_lshrrev_b32 v{vT0}, 2, v{vJ}
    v_cmp_eq_u32 s[{sDiag}:{sDiag+1}], v{vT0}, v{vQ}
    v_and_b32 v{vT1}, 1, v{vJ}
    v_cmp_eq_u32 vcc, 1, v{vT1}
    v_mov_b32 v{vT1}, 0x0c0c0100
    v_mov_b32 v{vT2}, 0x01000c0c
    v_cndmask_b32 v{selLo}, v{vT1}, v{vT2}, vcc
    v_mov_b32 v{vT1}, 0x0c0c0302
    v_mov_b32 v{vT2}, 0x03020c0c
    v_cndmask_b32 v{selHi}, v{vT1}, v{vT2}, vcc
    v_lshlrev_b32 v{vSa}, 2, v{vJ}
    v_add_u32 v{vSa}, {ST}, v{vSa}
    v_lshlrev_b32 v{vSc}, 4, v{vQ}
    v_add_u32 v{vSc}, {ST}, v{vSc}
    s_lshl_b32 s{t1}, s{sRB}, 6
    s_lshl_b32 s{t2}, s{sW1}, 6
    s_add_u32 s{t1}, s{t1}, s{t2}
    s_sub_u32 s{t1}, s{t1}, 16
    v_add_u32 v{vSl}, s{t1}, v{vL}
    v_max_i32 v{vSl}, 0, v{vSl}
    v_min_i32 v{vSl}, 2047, v{vSl}
    v_and_b32 v{vT0}, 1, v{vSl}
    v_lshrrev_b32 v{vSl}, 1, v{vSl}
    v_lshlrev_b32 v{vSl}, 7, v{vSl}
    v_lshl_add_u32 v{vSl}, v{vT0}, 3, v{vSl}
    v_and_b32 v{vT0}, 1, v{vQ}
    v_lshlrev_b32 v{vT0}, 14, v{vT0}
    v_lshrrev_b32 v{vT1}, 1, v{vQ}
    v_lshl_add_u32 v{vT0}, v{vT1}, 8, v{vT0}
    v_lshl_add_u32 v{vOst}, v{vJ}, 4, v{vT0}
    """)
    stamp(A, "setup done")

    def early_compute():
        for hf in range(2):
            A(f"ds_read_b64_tr_b16 v[{RT+2*hf}:{RT+2*hf+1}], v{vTrA+hf}", tag="rte")
        A(f"v_mov_b32 v{S1}, 0\nv_mov_b32 v{S2}, 0")
        for i in range(8):
            A(f"v_dot2_f32_bf16 v{S1}, v{XR+i}, v{ones}, v{S1}")
            A(f"v_dot2_f32_bf16 v{S2}, v{XR+i}, v{XR+i}, v{S2}")
        A(f"""
        s_and_b32 s{sA}, s2, 7
        s_lshl_b32 s{sA}, s{sA}, 16
        s_lshr_b32 s{sB}, s2, 3
        s_lshl_b32 s{sB}, s{sB}, 12
        s_add_u32 s{sA}, s{sA}, s{sB}
        s_lshl_b32 s{sB}, s{sW}, 10
        s_add_u32 s{sA}, s{sA}, s{sB}
        s_add_u32 s{sA}, s{sA}, {WS_R2}
        s_cmp_lt_u32 s2, 128
        s_cselect_b32 s{sA}, s{sA}, {OOB}
        """)
        A.wait_lg("rte")
        A(f"buffer_store_dwordx4 v[{RT}:{RT+3}], v{vL16}, {WSS}, s{sA} offen sc1", tag="est")
        for mode in ("quad_perm:[1,0,3,2]", "quad_perm:[2,3,0,1]", "row_half_mirror", "row_mirror"):
            A(f"v_add_f32_dpp v{S1}, v{S1}, v{S1} {mode} row_mask:0xf bank_mask:0xf")
            A(f"v_add_f32_dpp v{S2}, v{S2}, v{S2} {mode} row_mask:0xf bank_mask:0xf")
        A(f"""
        v_mov_b32 v190, v{S1}
        v_mov_b32 v191, v{S2}
        v_lshrrev_b32 v{vT0}, 5, v{vL}
        v_lshlrev_b32 v{vT0}, 3, v{vT0}
        v_permlane16_swap_b32 v{S1}, v190
        v_permlane16_swap_b32 v{S2}, v191
        v_add_f32 v{S1}, v{S1}, v190
        v_add_f32 v{S2}, v{S2}, v191
        v_mul_f32 v{S1}, 0x3b000000, v{S1}
        v_mul_f32 v{S2}, 0x3b000000, v{S2}
        v_fma_f32 v{S2}, -v{S1}, v{S1}, v{S2}
        v_max_f32 v{S2}, 0, v{S2}
        v_add_f32 v{S2}, {f32hex(1e-5)}, v{S2}
        v_rsq_f32 v{S2}, v{S2}
        s_lshl_b32 s{sA}, s{sRB}, 12
        s_lshl_b32 s{sB}, s{sCB}, 9
        s_add_u32 s{sA}, s{sA}, s{sB}
        s_lshl_b32 s{sB}, s{sW}, 7
        s_add_u32 s{sA}, s{sA}, s{sB}
        s_add_u32 s{sA}, s{sA}, {WS_S1}
        s_mov_b32 exec_lo, 1
        s_mov_b32 exec_hi, 1
        """)
        A(f"buffer_store_dwordx2 v[{S1}:{S2}], v{vT0}, {WSS}, s{sA} offen sc1", tag="est")
        A("s_mov_b64 exec, -1")

    def late_loads():
        it = [(f"""
        s_lshl_b32 s{t1}, s{sG}, 1
        s_add_u32 s{t1}, s{t1}, s{sWH}
        s_mul_i32 s{t1}, s{t1}, {16*2752}
        s_mul_i32 s{t2}, s{sJ}, 192
        s_add_u32 s{t1}, s{t1}, s{t2}
        s_cmp_eq_u32 s{sJ}, 15
        s_cselect_b32 s{t1}, {OOB}, s{t1}
        s_mul_i32 s{t2}, s{sW}, 3072
        s_add_u32 m0, s{t2}, {STG_3}
        buffer_load_dwordx4 v{vD3}, s[{SB3}:{SB3+3}], s{t1} offen lds""", "l")]
        for n in (1, 2):
            it.append((f"buffer_load_dwordx4 v{vD3+n}, s[{SB3}:{SB3+3}], s{t1} offen offset:{n*1024} lds", "l"))
        it.append((f"""
        s_lshr_b32 s{t1}, s2, 2
        s_lshl_b32 s{t1}, s{t1}, 15
        s_and_b32 s{t2}, s2, 3
        s_lshl_b32 s{t2}, s{t2}, 8
        s_add_u32 s{t1}, s{t1}, s{t2}
        s_lshl_b32 s{t2}, s{sW}, 13
        s_add_u32 s{t1}, s{t1}, s{t2}
        s_lshl_b32 s{t2}, s{sW}, 10
        s_add_u32 m0, s{t2}, {STG_4}
        buffer_load_dwordx4 v{vDs}, s[{SWD}:{SWD+3}], s{t1} offen lds""", "l"))
        it.append((f"""
        s_add_u32 m0, s{t2}, {STG_4 + 4096}
        s_add_u32 s{t1}, s{t1}, 128
        buffer_load_dwordx4 v{vDs}, s[{SWD}:{SWD+3}], s{t1} offen lds""", "l"))
        return it

    def late_reads():
        it = []
        for u in range(3):
            for hf in range(2):
                it.append((f"ds_read_b64_tr_b16 v[{RT+4*u+2*hf}:{RT+4*u+2*hf+1}], v{vTr3+u} offset:{hf*6144}", "rtl"))
        for n in range(2):
            for hf in range(2):
                it.append((f"ds_read_b64_tr_b16 v[{RT+12+4*n+2*hf}:{RT+12+4*n+2*hf+1}], v{vTrB} offset:{n*4096+hf*2048}", "rtl"))
        return it

    def late_stores():
        it = [lambda: A.wait_lg("rtl")]
        for u in range(3):
            it.append((f"{MF} {v(CSP+4*u,4)}, {v(RT+4*u,4)}, {v(ones,4)}, 0", None))
        it.append((f"""
        s_lshl_b32 s{t1}, s{sJ}, 2
        s_add_u32 s{t1}, s{t1}, s{sW}
        s_mul_i32 s{t2}, s{t1}, 49152
        s_mul_i32 s{t3}, s{sG}, 3072
        s_add_u32 s{t2}, s{t2}, s{t3}
        s_add_u32 s{t2}, s{t2}, {WS_R3}
        buffer_store_dwordx4 v[{RT}:{RT+3}], v{vL16}, {WSS}, s{t2} offen sc1""", "lst"))
        for u in (1, 2):
            it.append((f"buffer_store_dwordx4 v[{RT+4*u}:{RT+4*u+3}], v{vL16}, {WSS}, s{t2} offen offset:{u*1024} sc1", "lst"))
        it.append((f"""
        s_and_b32 s{t2}, s2, 3
        s_mul_i32 s{t2}, s{t2}, 96
        s_lshr_b32 s{t3}, s2, 2
        s_add_u32 s{t2}, s{t2}, s{t3}
        s_lshl_b32 s{t2}, s{t2}, 12
        s_lshl_b32 s{t3}, s{sW}, 10
        s_add_u32 s{t2}, s{t2}, s{t3}
        s_add_u32 s{t2}, s{t2}, {WS_R4}
        s_cmp_lt_u32 s2, 176
        s_cselect_b32 s{t2}, s{t2}, {OOB}
        buffer_store_dwordx4 v[{RT+12}:{RT+15}], v{vL16}, {WSS}, s{t2} offen sc1""", "lst"))
        it.append((f"""
        s_add_u32 s{t2}, s{t2}, {48*4096}
        buffer_store_dwordx4 v[{RT+16}:{RT+19}], v{vL16}, {WSS}, s{t2} offen sc1""", "lst"))
        it.append((f"""
        s_lshl_b32 s{t1}, s{t1}, 12
        s_lshl_b32 s{t3}, s{sG}, 8
        s_add_u32 s{t1}, s{t1}, s{t3}
        s_add_u32 s{t1}, s{t1}, {WS_CS}
        s_mov_b32 exec_lo, 0x00010001
        s_mov_b32 exec_hi, 0x00010001
        buffer_store_dwordx4 v[{CSP}:{CSP+3}], v{vSt}, {WSS}, s{t1} offen sc1
        buffer_store_dwordx4 v[{CSP+4}:{CSP+7}], v{vSt}, {WSS}, s{t1} offen offset:64 sc1
        buffer_store_dwordx4 v[{CSP+8}:{CSP+11}], v{vSt}, {WSS}, s{t1} offen offset:128 sc1
        s_mov_b64 exec, -1""", "lst"))
        return it

    def reads(i, sidx):
        slot = i % 3
        it = []
        if slot < 2:
            va, wt, so = (vA0, vA1)[sidx], vWt, slot * SLOT
        else:
            va, wt, so = (vA0b, vA1b)[sidx], vWtb, 0
        tag = f"r{i}_{sidx}"
        for sec in range(3):
            for hf in range(2):
                it.append((f"ds_read_b64_tr_b16 v[{Wf[sidx]+sec*4+hf*2}:{Wf[sidx]+sec*4+hf*2+1}], v{wt} offset:{so + sidx*12288 + sec*1024 + hf*512}", tag))
        for t in range(5):
            it.append((f"ds_read_b128 v[{Af[sidx]+4*t}:{Af[sidx]+4*t+3}], v{va} offset:{so + t*2048}", tag))
        return it

    def mfmas(i, sidx):
        first = (i == 0 and sidx == 0)
        it = []
        W = lambda sec: v(Wf[sidx] + 4 * sec, 4)
        X = lambda t: v(Af[sidx] + 4 * t, 4)
        def m(acc, a, b):
            c = "0" if first else v(acc, 4)
            it.append((f"{MF} {v(acc,4)}, {a}, {b}, {c}", None))
        for t in range(5):
            m(accQ + 4 * t, W(0), X(t))
            m(accK + 4 * t, W(1), X(t))
            m(accV + 4 * t, X(t), W(2))
        return it

    def nonce_test(lbl):
        A(f"""
        v_readfirstlane_b32 s{sBA}, v{vF}
        s_cmp_lg_u32 s{sBA}, 0
        s_cbranch_scc1 {lbl}
        """)
    def nonce_reprobe():
        A(f"v_mov_b32 v{vT3}, 0")
        A(f"buffer_load_dword v{vF}, v{vT3}, s[{SDBG}:{SDBG+3}], 0 offen sc1")
    def nonce_pub():
        A(f"v_mov_b32 v{vT1}, {MISC + 2052}\nds_write_b32 v{vT1}, v{vF}")
    def fast_pub():
        A(f"""
        v_xor_b32 v{VA}, s{sXCC}, v{VA}
        v_xor_b32 v{VA+1}, s{sXCC}, v{VA+1}
        v_xor_b32 v{VA+2}, s{sXCC}, v{VA+2}
        v_xor_b32 v{VA+3}, s{sXCC}, v{VA+3}
        v_or_b32 v{vT0}, v{VA}, v{VA+1}
        v_or3_b32 v{vT0}, v{vT0}, v{VA+2}, v{VA+3}
        v_cmp_ne_u32 vcc, 0, v{vT0}
        s_lshl_b32 s{sBA}, s{sG}, 2
        s_lshr_b64 vcc, vcc, s{sBA}
        s_and_b32 s{sBA}, vcc_lo, 15
        s_cmp_eq_u32 s{sBA}, 0
        s_cselect_b32 s{sBA}, {opt("fast", 1)}, 0
        v_mov_b32 v{vT0}, s{sBA}
        v_mov_b32 v{vT1}, {MISC + 2048}
        ds_write_b32 v{vT1}, v{vT0}
        """)

    ARR1 = opt("arr1", 2)
    LATE = opt("late", 3)
    LCMP = opt("lcmp", 6)
    POLL = opt("poll", 5)
    for i in range(8):
        A.wait_vm(f"c{i}")
        if i == 0:
            A.wait_vm("e")
            spin(A, "~non", nonce_test, nonce_reprobe, 0x20000, True, nonce_pub, 2)
        if i == ARR1:
            A.wait_vm("est")
        if i == LCMP:
            A.wait_vm("l")
        if i == POLL + 1:
            spin(A, "~arr", arr_test(A), lambda: arr_probe(A, None, 0), 0x20000, True, fast_pub, 2)
        A("s_waitcnt lgkmcnt(0)\ns_barrier")
        stamp(A, f"p1 bar{i}")
        dm = dma(i + 2) if i + 2 <= 7 else []
        extra = []
        lr = []
        if i == ARR1:
            arr_store(A, 0)
        if i == POLL:
            A(f"s_cmp_eq_u32 s{sW}, 0\ns_cselect_b64 exec, -1, 0")
            arr_probe(A, "~arr", 0)
            A("s_mov_b64 exec, -1")
        if i == LATE:
            extra += late_loads()
        if i == LCMP:
            lr = late_reads()
            extra += late_stores()
        if i == POLL + 1:
            A(f"v_mov_b32 v{vT1}, {MISC + 2048}")
            A(f"ds_read_b32 v{vT2}, v{vT1}", tag="fastrd")
            extra += [(f"""
            s_lshl_b32 s{sBA}, s{sWH}, 2
            s_add_u32 s{sBA}, s{sBA}, {WS_S1}
            s_lshl_b32 m0, s{sW}, 8
            s_add_u32 m0, m0, {ST}
            buffer_load_dword v{vSl}, {WSS}, s{sBA} offen lds""", "st1")]
        if i > POLL:
            extra += bq.take(opt("wa", 8))
        if i == 0:
            A(f"v_mov_b32 v{vT1}, {MISC + 2052}")
            A(f"ds_read_b32 v{vT2}, v{vT1}", tag="nonrd")
            emit(A, reads(i, 0))
            A.wait_lg("nonrd")
            A(f"v_readfirstlane_b32 s{sNON}, v{vT2}")
            early_compute()
        else:
            emit(A, weave(mfmas(i - 1, 1), [(reads(i, 0) + lr, 0, 2), (dm[:5], 6, lambda k: k % 2)]))
            dm = dm[5:]
        A.wait_lg(f"r{i}_0")
        if i == POLL + 1:
            A(f"v_readfirstlane_b32 s{sFAST}, v{vT2}")
        rest = dm + extra
        emit(A, weave(mfmas(i, 0), [(reads(i, 1), 0, 2), (rest, 5 if i else 1, 1 if len(rest) < 11 else 2)]))
    A.wait_lg("r7_1")
    emit(A, mfmas(7, 1))
    stamp(A, "p1 loop done")
    A.wait_vm(["st1", "lst"])
    A("s_barrier")
    arr_store(A, 1)
    L1 = 108
    L2M = 120
    L2R = 140
    csQ, csK, csV = 160, 164, 168
    for t in range(5):
        A(f"ds_read2_b32 v[{L1+2*t}:{L1+2*t+1}], v{vSa} offset0:{16*t} offset1:{128+16*t}", tag="st")
    A(f"v_lshlrev_b32 v{vT2}, 2, v{vJ}")
    A(f"ds_bpermute_b32 v{csV}, v{vT2}, v{accV}", tag="st")
    for t in range(5):
        A(f"ds_read_b128 v[{L2M+4*t}:{L2M+4*t+3}], v{vSc} offset:{64*t}", tag="st2")
        A(f"ds_read_b128 v[{L2R+4*t}:{L2R+4*t+3}], v{vSc} offset:{512+64*t}", tag="st2")
    for r_ in range(4):
        A(f"v_mov_b32_dpp v{csQ+r_}, v{accQ+r_} row_newbcast:0 row_mask:0xf bank_mask:0xf")
        A(f"v_mov_b32_dpp v{csK+r_}, v{accK+r_} row_newbcast:0 row_mask:0xf bank_mask:0xf")
    A(f"""
    s_lshl_b32 s{sC}, s{sRB}, 16
    s_lshl_b32 s{sB}, s{sCB}, 11
    s_add_u32 s{sC}, s{sC}, s{sB}
    s_lshl_b32 s{sB}, s{sW}, 9
    s_add_u32 s{sC}, s{sC}, s{sB}
    s_add_u32 s{sC}, s{sC}, {WS_O}
    """)
    A.wait_lg("st")
    Kp, Qp, Vp = 210, 220, 230

    def fold_kq(acc, cs, P, scale, t):
        a = acc + 4 * t
        for h in range(2):
            A(f"v_pk_fma_f32 v[{a+2*h}:{a+2*h+1}], v[{cs+2*h}:{cs+2*h+1}], v[{L1+2*t}:{L1+2*t+1}], v[{a+2*h}:{a+2*h+1}] op_sel:[0,0,0] op_sel_hi:[1,0,1] neg_lo:[0,1,0] neg_hi:[0,1,0]")
        if scale:
            for h in range(2):
                A(f"v_pk_mul_f32 v[{a+2*h}:{a+2*h+1}], v[{a+2*h}:{a+2*h+1}], v[{L1+2*t}:{L1+2*t+1}] op_sel:[0,1] op_sel_hi:[1,1]")
        for h in range(2):
            A(f"v_cvt_pk_bf16_f32 v{P+2*t+h}, v{a+2*h}, v{a+2*h+1}")

    def fold_v(t):
        a = accV + 4 * t
        for h in range(2):
            A(f"v_pk_fma_f32 v[{a+2*h}:{a+2*h+1}], v[{L2M+4*t+2*h}:{L2M+4*t+2*h+1}], v[{csV}:{csV+1}], v[{a+2*h}:{a+2*h+1}] op_sel:[0,0,0] op_sel_hi:[1,0,1] neg_lo:[1,0,0] neg_hi:[1,0,0]")
        for h in range(2):
            A(f"v_pk_mul_f32 v[{a+2*h}:{a+2*h+1}], v[{a+2*h}:{a+2*h+1}], v[{L2R+4*t+2*h}:{L2R+4*t+2*h+1}]")
        for h in range(2):
            A(f"v_cvt_pk_bf16_f32 v{Vp+2*t+h}, v{a+2*h}, v{a+2*h+1}")

    def attn(step):
        ts = (1, 2) if step == 0 else (3, 4)
        k = lambda t: t - ts[0]
        Sp = lambda t: 172 + 8 * k(t)
        Sc = lambda t: 176 + 8 * k(t)
        X = lambda t, i: 240 + 4 * k(t) + i
        MX = lambda t: 188 + k(t)
        MY = lambda t: 190 + k(t)
        CQ = lambda t: 192 + k(t)
        Pf = lambda t: 172 + 4 * k(t)
        Oa = lambda t: 180 + 4 * k(t)
        Su = lambda t: 240 + 4 * k(t)
        OP = 248 + 4 * step
        for t in (((0,) if step == 0 else ()) + ts):
            fold_kq(accK, csK, Kp, True, t)
        for t in ts:
            fold_kq(accQ, csQ, Qp, False, t)
        for t in ts:
            A(f"{MF16} {v(Sp(t),4)}, {v(Kp+2*(t-1),2)}, {v(Qp+2*t,2)}, {v(biasF if t==1 else biasP,4)}")
            A(f"{MF16} {v(Sc(t),4)}, {v(Kp+2*t,2)}, {v(Qp+2*t,2)}, {v(biasC,4)}")
        if step == 0:
            A.wait_lg("st2")
        for t in (((0,) if step == 0 else ()) + ts):
            fold_v(t)
        for t in ts:
            A(f"v_mul_f32 v{CQ(t)}, {f32hex(0.25*LOG2E)}, v{L1+2*t+1}")
        for t in ts:
            A(f"""
            v_max_f32 v{X(t,0)}, v{Sp(t)}, v{Sp(t)+1}
            v_max_f32 v{X(t,1)}, v{Sp(t)+2}, v{Sp(t)+3}
            v_max_f32 v{X(t,2)}, v{Sc(t)}, v{Sc(t)+1}
            v_max_f32 v{X(t,3)}, v{Sc(t)+2}, v{Sc(t)+3}
            v_max3_f32 v{MX(t)}, v{X(t,0)}, v{X(t,1)}, v{X(t,2)}
            v_max_f32 v{MX(t)}, v{MX(t)}, v{X(t,3)}
            v_mov_b32 v{MY(t)}, v{MX(t)}
            """)
        for sw in ("v_permlane16_swap_b32", "v_permlane32_swap_b32"):
            for t in ts:
                A(f"{sw} v{MX(t)}, v{MY(t)}")
            for t in ts:
                A(f"v_max_f32 v{MX(t)}, v{MX(t)}, v{MY(t)}")
            if sw.startswith("v_permlane16"):
                for t in ts:
                    A(f"v_mov_b32 v{MY(t)}, v{MX(t)}")
        for t in ts:
            A(f"v_mul_f32 v{MX(t)}, v{MX(t)}, v{CQ(t)}")
        for t in ts:
            for i in range(4):
                A(f"v_fma_f32 v{X(t,i)}, v{X(t,i)}, v{CQ(t)}, -v{MX(t)}")
        for t in ts:
            for i in range(4):
                A(f"v_exp_f32 v{X(t,i)}, v{X(t,i)}")
        for t in ts:
            A(f"""
            v_cvt_pk_bf16_f32 v{MX(t)}, v{X(t,0)}, v{X(t,1)}
            v_cvt_pk_bf16_f32 v{MY(t)}, v{X(t,2)}, v{X(t,3)}
            """)
        for t in ts:
            A(f"""
            v_perm_b32 v{Pf(t)}, v{MX(t)}, v{MX(t)}, v{selLo}
            v_perm_b32 v{Pf(t)+1}, v{MX(t)}, v{MX(t)}, v{selHi}
            v_perm_b32 v{Pf(t)+2}, v{MY(t)}, v{MY(t)}, v{selLo}
            v_perm_b32 v{Pf(t)+3}, v{MY(t)}, v{MY(t)}, v{selHi}
            """)
        for t in ts:
            A(f"{MF} {v(Su(t),4)}, {v(ones,4)}, {v(Pf(t),4)}, 0")
            A(f"{MF} {v(Oa(t),4)}, {v(Vp+2*(t-1),4)}, {v(Pf(t),4)}, 0")
        for t in ts:
            A(f"v_rcp_f32 v{Su(t)}, v{Su(t)}")
        for t in ts:
            o = Oa(t)
            A(f"""
            v_pk_mul_f32 v[{o}:{o+1}], v[{o}:{o+1}], v[{Su(t)}:{Su(t)+1}] op_sel:[0,0] op_sel_hi:[1,0]
            v_pk_mul_f32 v[{o+2}:{o+3}], v[{o+2}:{o+3}], v[{Su(t)}:{Su(t)+1}] op_sel:[0,0] op_sel_hi:[1,0]
            v_cvt_pk_bf16_f32 v{OP+2*k(t)}, v{o}, v{o+1}
            v_cvt_pk_bf16_f32 v{OP+2*k(t)+1}, v{o+2}, v{o+3}
            """)
        A(f"""
        v_permlane16_swap_b32 v{OP}, v{OP+2}
        v_permlane16_swap_b32 v{OP+1}, v{OP+3}
        s_add_u32 s{sB}, s{sC}, {step*32768}
        """)
        if step == 1:
            signal1(A, 1, "ost0")
        A(f"buffer_store_dwordx4 v[{OP}:{OP+3}], v{vOst}, {WSS}, s{sB} offen sc1", tag=f"ost{step}")

    attn(0)
    stamp(A, "p1 step A stored")
    attn(1)
    stamp(A, "p1 step B stored")


class KS:
    def __init__(self, A, which):
        self.A, self.P2 = A, which == 2
        self.nst = 4 if self.P2 else 11
        self.RW = [12, 13, 14] if self.P2 else [204, 205, 206]
        self.vRr, self.vXo = (26, 27) if self.P2 else (207, 27)
        self.acc = [32, 64]
        self.T = 96
        self.U = 120
        if self.P2:
            self.Afr = lambda h, t, st: v(128 + ((h * 2 + t) * 4 + st) * 4, 4)
            self.Bf = B2reg
        else:
            def Afr(h, t, st):
                idx = (h * 2 + t) * 11 + st
                return a_(64 + idx * 4, 4) if idx < 32 else v(128 + (idx - 32) * 4, 4)
            self.Afr = Afr
            self.Bf = B4reg
        self.RED = [0, 24576]
        self.REDB = 65536 if self.P2 else 0

    def setup(self):
        A = self.A
        for k in range(1, 4):
            A(f"""
            s_xor_b32 s{t1}, s{sW}, {k}
            s_mul_i32 s{t1}, s{t1}, 6144
            s_add_u32 s{t1}, s{t1}, {(k-1)*2048 + self.REDB}
            v_add_u32 v{self.RW[k-1]}, s{t1}, v{vL16}
            """)
        A(f"""
        s_mul_i32 s{t1}, s{sW}, 6144
        s_add_u32 s{t1}, s{t1}, {self.REDB}
        v_add_u32 v{self.vRr}, s{t1}, v{vL16}
        v_lshlrev_b32 v{self.vXo}, 10, v{vJ}
        v_lshl_add_u32 v{self.vXo}, v{vQ}, 3, v{self.vXo}
        """)

    def rowcol(self, h, dst):
        return f"""
        s_lshl_b32 s{dst}, s{sRB}, 16
        s_lshl_b32 s{sB}, s{sWH}, 14
        s_add_u32 s{dst}, s{dst}, s{sB}
        s_lshl_b32 s{sB}, s{sCB}, 7
        s_add_u32 s{dst}, s{dst}, s{sB}
        s_lshl_b32 s{sB}, s{sW1}, 6
        s_add_u32 s{dst}, s{dst}, s{sB}
        s_add_u32 s{dst}, s{dst}, {h*32768}
        """

    def res_loads(self):
        A = self.A
        for h in range(2):
            A(self.rowcol(h, sC))
            for i in range(2):
                A(f"buffer_load_dwordx2 v[{HRES+4*h+2*i}:{HRES+4*h+2*i+1}], v{self.vXo}, s[{SX}:{SX+3}], s{sC} offen offset:{i*32}", tag="res")

    def a_loads(self, h):
        base = WS_O if self.P2 else WS_HH
        pitch = 16 if self.P2 else HHK
        k0 = f"s_lshl_b32 s{sB}, s{sW}, 2" if self.P2 else f"s_mov_b32 s{sB}, s{sK4}"
        it = []
        for t in range(2):
            pre = f"""
            s_xor_b32 s{sA}, s{sWH}, {t}
            s_lshl_b32 s{sB}, s{sRB}, 2
            s_add_u32 s{sA}, s{sA}, s{sB}
            s_add_u32 s{sA}, s{sA}, {2*h}
            s_mul_i32 s{sA}, s{sA}, {pitch}
            {k0}
            s_add_u32 s{sA}, s{sA}, s{sB}
            s_lshl_b32 s{sA}, s{sA}, 10
            s_add_u32 s{sA}, s{sA}, {base}
            """
            for st in range(self.nst):
                if st % 4 == 0 and st > 0:
                    pre += f"s_add_u32 s{sA}, s{sA}, 4096\n"
                it.append((pre + f"buffer_load_dwordx4 {self.Afr(h,t,st)}, v{vL16}, {WSS}, s{sA} offen offset:{(st%4)*1024}", f"a{h}_{t}_{st}"))
                pre = ""
        return it

    def mfmas(self, h, fill=()):
        A = self.A
        fill = list(fill)
        acc = self.acc[h]
        for t in range(2):
            for st in range(self.nst):
                A.wait_vm([f"a{h}_{t}_{st}", f"b{2 if self.P2 else 4}_{st}"])
                for ct in range(4):
                    d = v(acc + (t * 4 + ct) * 4, 4)
                    A(f"{MF} {d}, {r(self.Bf(st,ct),0,4)}, {self.Afr(h,t,st)}, {'0' if st==0 else d}")
                    if ct == 1 and fill:
                        emit(A, [fill.pop(0)])
                if t == 1 and st == 1:
                    for i in range(2):
                        A(f"ds_write_b128 v{self.RW[0]}, {v(acc+(2+i)*4,4)} offset:{self.RED[h]+i*1024}")
        emit(A, fill)
        for k in (2, 3):
            for i in range(2):
                A(f"ds_write_b128 v{self.RW[k-1]}, {v(acc+(k*2+i)*4,4)} offset:{self.RED[h]+i*1024}")

    def reduce(self, h, pre_barrier=None, post_barrier=None):
        A = self.A
        acc, T, U = self.acc[h], self.T, self.U
        if pre_barrier:
            pre_barrier()
        A("s_waitcnt lgkmcnt(0)\ns_barrier")
        for k in range(3):
            for i in range(2):
                A(f"ds_read_b128 {v(T+(k*2+i)*4,4)}, v{self.vRr} offset:{self.RED[h]+k*2048+i*1024}", tag=f"rd{k}")
        if post_barrier:
            post_barrier()
        A.wait_vm("res")
        for i in range(4):
            A(f"v_lshlrev_b32 v{U+2*i}, 16, v{HRES+4*h+i}")
            A(f"v_and_b32 v{U+2*i+1}, 0xffff0000, v{HRES+4*h+i}")
        for i in range(4):
            A(f"v_pk_add_f32 v[{acc+2*i}:{acc+2*i+1}], v[{acc+2*i}:{acc+2*i+1}], v[{U+2*i}:{U+2*i+1}]")
        for k in range(3):
            A.wait_lg(f"rd{k}")
            for i in range(4):
                b = T + k * 8 + 2 * i
                A(f"v_pk_add_f32 v[{acc+2*i}:{acc+2*i+1}], v[{acc+2*i}:{acc+2*i+1}], v[{b}:{b+1}]")
        PK = HRES + 4 * h
        for i in range(4):
            A(f"v_cvt_pk_bf16_f32 v{PK+i}, v{acc+2*i}, v{acc+2*i+1}")
        if self.P2:
            G, S_ = acc + 8, acc + 12
            A(f"""
            s_lshl_b32 s{sC}, s{sRB}, 16
            s_lshl_b32 s{sB}, s{sWH}, 14
            s_add_u32 s{sC}, s{sC}, s{sB}
            s_lshl_b32 s{sB}, s{sCB}, 11
            s_add_u32 s{sC}, s{sC}, s{sB}
            s_lshl_b32 s{sB}, s{sW1}, 10
            s_add_u32 s{sC}, s{sC}, s{sB}
            s_add_u32 s{sC}, s{sC}, {WS_H + h*32768}
            {MF} {v(G,4)}, {v(PK,4)}, {v(PK,4)}, 0
            {MF} {v(S_,4)}, {v(ones,4)}, {v(PK,4)}, 0
            """)
            A(f"buffer_store_dwordx4 v[{PK}:{PK+3}], v{vL16}, {WSS}, s{sC} offen sc1", tag=f"hst{h}")
            A(f"""
            v_lshlrev_b32 v{vT2}, 3, v{vJ}
            s_lshl_b32 s{sC}, s{sRB}, 13
            s_lshl_b32 s{sB}, s{sWH}, 11
            s_add_u32 s{sC}, s{sC}, s{sB}
            s_lshl_b32 s{sB}, s{sCB}, 8
            s_add_u32 s{sC}, s{sC}, s{sB}
            s_lshl_b32 s{sB}, s{sW1}, 7
            s_add_u32 s{sC}, s{sC}, s{sB}
            s_add_u32 s{sC}, s{sC}, {WS_ST + h*4096}
            v_cndmask_b32 v{S_+1}, v{G}, v{G+1}, s[{sM1}:{sM1+1}]
            v_cndmask_b32 v{S_+1}, v{S_+1}, v{G+2}, s[{sM2}:{sM2+1}]
            v_cndmask_b32 v{S_+1}, v{S_+1}, v{G+3}, s[{sM3}:{sM3+1}]
            s_mov_b64 exec, s[{sDiag}:{sDiag+1}]
            """)
            A(f"buffer_store_dwordx2 v[{S_}:{S_+1}], v{vT2}, {WSS}, s{sC} offen sc1", tag=f"hst{h}")
            A("s_mov_b64 exec, -1")
        else:
            A(self.rowcol(h, sC))
            for i in range(2):
                A(f"buffer_store_dwordx2 v[{PK+2*i}:{PK+2*i+1}], v{self.vXo}, s[{SOUT}:{SOUT+3}], s{sC} offen offset:{i*32}")


def p2(A, bq, sq):
    K = KS(A, 2)
    K.setup()
    K.res_loads()
    emit(A, bq.upto(16))
    signal1(A, 2, "ost1")
    stamp(A, "p1 signalled both")
    probe1(A, "pa")
    check1(A, 1, "pa")
    stamp(A, "p2 flags1 ok")
    emit(A, K.a_loads(0))
    probe1(A, "pb")
    arr_probe(A, "arr2", 1)
    check1(A, 2, "pb")
    stamp(A, "p2 flags2 ok")
    emit(A, K.a_loads(1))
    spin(A, "arr2", arr_test(A), lambda: arr_probe(A, None, 1), 0x20000, False, None, 2)
    bq.limit = 64
    A(f"""
    s_lshl_b32 s{sA}, s{sJ3}, 2
    s_add_u32 s{sA}, s{sA}, s{sW}
    s_lshl_b32 s{sA}, s{sA}, 12
    s_add_u32 s{sA}, s{sA}, {WS_CS}
    """)
    csl = [(f"buffer_load_dwordx4 {v(192+4*u,4)}, v{vSt}, {WSS}, s{sA} offen offset:{u*64}", "cs") for u in range(3)]
    K.mfmas(0, bq.take(opt("wc", 0)))
    K.reduce(0)
    stamp(A, "p2 h0 stored")
    K.mfmas(1, csl + bq.take(opt("wc1", 4)))
    K.reduce(1, lambda: A.wait_vm("hst0"), lambda: wg_signal(A, WS_F2, sG, sJ, 3))
    stamp(A, "p2 h1 stored")


def p3(A, bq, sq):
    vH4, vH2, vAr, vS2 = 12, 13, 14, 26
    cs = 192
    accs = [32, 80]
    Af = 128
    stts = 160
    A(f"""
    v_lshrrev_b32 v{vT0}, 1, v{vQ}
    v_mul_u32_u24 v{vT0}, {4*HHK*1024}, v{vT0}
    v_lshl_add_u32 v{vT0}, v{vJ}, 4, v{vT0}
    v_and_b32 v{vT1}, 1, v{vQ}
    s_lshl_b32 s{sA}, s{sWH}, 10
    s_lshl_b32 s{sB}, s{sW1}, 9
    s_add_u32 s{sA}, s{sA}, s{sB}
    v_lshl_add_u32 v{vH4}, v{vT1}, 8, v{vT0}
    v_add_u32 v{vH4}, s{sA}, v{vH4}
    s_lshl_b32 s{sA}, s{sW}, 8
    s_add_u32 s{sA}, s{sA}, 2048
    v_mul_u32_u24 v{vT1}, {HHK*1024}, v{vT1}
    v_add_u32 v{vH2}, v{vT1}, v{vT0}
    v_add_u32 v{vH2}, s{sA}, v{vH2}
    v_lshlrev_b32 v{vS2}, 3, v{vJ}
    v_lshl_add_u32 v{vS2}, v{vQ}, 9, v{vS2}
    v_add_u32 v{vS2}, 131072, v{vS2}
    """)
    wg_probe(A, WS_F2, sG3, "p3a")
    A.wait_vm("hst1")
    A("s_barrier")
    wg_signal(A, WS_F2, sG, sJ, 4)
    stamp(A, "p2 signalled 4")
    wg_check(A, WS_F2, sG3, 3, "p3a")
    stamp(A, "p3 flags3 ok")

    def a_dma(p):
        it = []
        for idx in range(4):
            c, ti = 2 * p + (idx >> 1), idx & 1
            pre = f"""
            s_lshl_b32 s{sC}, s{sG3}, 17
            s_add_u32 s{sC}, s{sC}, s{sW12}
            s_add_u32 s{sC}, s{sC}, {WS_H + (c+4*ti)*16384}
            s_add_u32 m0, s{sW12}, {p*65536 + idx*16384}
            """
            for n in range(4):
                it.append(((pre if n == 0 else "") + f"""
                buffer_load_dwordx4 v{vL16}, {WSS}, s{sC} offen offset:{n*1024} lds""", f"a{p}"))
        return it

    RAW = [stts, accs[1]]
    RES = lambda p, idx: stts + 8 * idx + 4 * p

    def st_loads(p):
        return [(f"""
        s_lshl_b32 s{sA}, s{sG3}, 14
        s_lshl_b32 s{sB}, s{sWH}, 11
        s_add_u32 s{sA}, s{sA}, s{sB}
        s_lshl_b32 s{sB}, s{sW1}, 13
        s_add_u32 s{sA}, s{sA}, s{sB}
        s_add_u32 s{sA}, s{sA}, {WS_ST + 2*p*2048}
        s_lshl_b32 s{sB}, s{sW}, 11
        s_add_u32 m0, s{sB}, {131072 + p*8192}
        buffer_load_dwordx4 v{vL16}, {WSS}, s{sA} offen lds
        buffer_load_dwordx4 v{vL16}, {WSS}, s{sA} offen offset:1024 lds""", f"s{p}")]

    def mk(unpk):
        it = []
        def add(t):
            if unpk and t.startswith("v_pk_"):
                for x in unpack_pk(t):
                    it.append((x, None))
            else:
                it.append((t, None))
        return it, add

    def stats(p):
        it, add = mk(1)
        B = [RAW[p] + 8 * idx for idx in range(4)]
        for idx, b in enumerate(B):
            if idx:
                add(f"v_add_u32 v{vS2}, 2048, v{vS2}")
            it.append((f"ds_read2_b64 v[{b}:{b+3}], v{vS2} offset0:0 offset1:16", f"sr{p}"))
            it.append((f"ds_read2_b64 v[{b+4}:{b+7}], v{vS2} offset0:32 offset1:48", f"sr{p}"))
        add(f"v_add_u32 v{vS2}, 2048, v{vS2}")
        it += [lambda: None] * 6
        it.append(lambda: A.wait_lg(f"sr{p}"))
        for b in B:
            add(f"v_pk_add_f32 v[{b}:{b+1}], v[{b}:{b+1}], v[{b+2}:{b+3}]")
            add(f"v_pk_add_f32 v[{b+4}:{b+5}], v[{b+4}:{b+5}], v[{b+6}:{b+7}]")
        for b in B:
            add(f"v_pk_add_f32 v[{b}:{b+1}], v[{b}:{b+1}], v[{b+4}:{b+5}]")
        for sw in ("v_permlane16_swap_b32", "v_permlane32_swap_b32"):
            for b in B:
                add(f"v_mov_b32 v{b+2}, v{b}")
                add(f"v_mov_b32 v{b+3}, v{b+1}")
            for b in B:
                add(f"{sw} v{b}, v{b+2}")
                add(f"{sw} v{b+1}, v{b+3}")
            for b in B:
                add(f"v_pk_add_f32 v[{b}:{b+1}], v[{b}:{b+1}], v[{b+2}:{b+3}]")
        for op in ("v_mul_f32 v{m}, 0x3b000000, v{b}", "v_mul_f32 v{b1}, 0x3b000000, v{b1}", "v_fma_f32 v{b1}, -v{m}, v{m}, v{b1}",
                   "v_max_f32 v{b1}, 0, v{b1}", "v_add_f32 v{b1}, " + f32hex(1e-5) + ", v{b1}", "v_rcp_f32 v{m1}, v{b1}"):
            for idx, b in enumerate(B):
                add(op.format(b=b, b1=b + 1, m=RES(p, idx), m1=RES(p, idx) + 1))
        it.append((f"""
        v_cmp_gt_u32 vcc, 32, v{vL}
        v_cndmask_b32 v{RES(p,0)+2}, v{RES(p,1)+1}, v{RES(p,0)+1}, vcc
        v_cndmask_b32 v{RES(p,2)+2}, v{RES(p,3)+1}, v{RES(p,2)+1}, vcc""", None))
        return it

    def epilogue(p):
        it, add = mk(0)
        Q = accs[p] + 16
        base = f"""
        s_mul_i32 s{sA}, s{sG3}, {8*HHK*1024}
        s_mul_i32 s{sB}, s{sJ3}, 3072
        s_add_u32 s{sA}, s{sA}, s{sB}
        """
        for cc in range(2):
            acc = accs[p] + 24 * cc
            rs = RES(p, 2 * cc) + 2
            for u in range(3):
                for ti in range(2):
                    a = acc + (ti * 3 + u) * 4
                    b = RES(p, 2 * cc + ti)
                    for h in range(2):
                        add(f"v_pk_fma_f32 v[{a+2*h}:{a+2*h+1}], v[{cs+4*u+2*h}:{cs+4*u+2*h+1}], v[{b}:{b+1}], v[{a+2*h}:{a+2*h+1}] op_sel:[0,0,0] op_sel_hi:[1,0,1] neg_lo:[0,1,0] neg_hi:[0,1,0]")
            for u in range(3):
                for r_ in range(4):
                    add(f"v_permlane32_swap_b32 v{acc+u*4+r_}, v{acc+(3+u)*4+r_}")
            PK = acc + 12
            for u in range(3):
                g, up = acc + u * 4, acc + (3 + u) * 4
                for r_ in range(4):
                    add(f"v_max_f32 v{g+r_}, 0, v{g+r_}")
                for h in range(2):
                    add(f"v_pk_mul_f32 v[{g+2*h}:{g+2*h+1}], v[{g+2*h}:{g+2*h+1}], v[{up+2*h}:{up+2*h+1}]")
                for h in range(2):
                    add(f"v_pk_mul_f32 v[{g+2*h}:{g+2*h+1}], v[{g+2*h}:{g+2*h+1}], v[{rs}:{rs+1}] op_sel:[0,0] op_sel_hi:[1,0]")
                for h in range(2):
                    add(f"v_cvt_pk_bf16_f32 v{(PK+2*u if u < 2 else Q+2*cc)+h}, v{g+2*h}, v{g+2*h+1}")
                if u == 1:
                    it.append((base + f"""
                    s_add_u32 s{sA}, s{sA}, {WS_HH + (2*p+cc)*HHK*1024}
                    buffer_store_dwordx4 v[{PK}:{PK+3}], v{vH4}, {WSS}, s{sA} offen sc1""", f"hh{p}"))
        add(f"v_permlane16_swap_b32 v{Q}, v{Q+2}")
        add(f"v_permlane16_swap_b32 v{Q+1}, v{Q+3}")
        it.append((base + f"""
        s_add_u32 s{sA}, s{sA}, {WS_HH + (2*p)*HHK*1024}
        buffer_store_dwordx4 v[{Q}:{Q+3}], v{vH2}, {WSS}, s{sA} offen sc1""", f"hh{p}"))
        return it

    emit(A, a_dma(0) + st_loads(0))
    emit(A, bq.take(opt("wd", 9)))
    A.wait_vm("cs")
    for mode in ("quad_perm:[1,0,3,2]", "quad_perm:[2,3,0,1]", "row_half_mirror", "row_mirror"):
        for i in range(12):
            A(f"v_add_f32_dpp v{cs+i}, v{cs+i}, v{cs+i} {mode} row_mask:0xf bank_mask:0xf")
    for p in range(2):
        acc = accs[p]
        A.wait_vm([f"a{p}", f"s{p}"])
        A("s_waitcnt lgkmcnt(0)\ns_barrier")
        stamp(A, f"p3 pass{p} start")
        if p == 0:
            b3 = bq.upto(64)
            bq.limit = 64 + 28
            nb = opt("b3burst", 6)
            emit(A, b3[:nb])
            wg_probe(A, WS_F2, sG3, "p3b")
            fillm = b3[nb:]
            fillv = stats(0)
            late = []
        else:
            fillm = bq.take(1000)
            fillv = []
            bq.limit = 1000
            late = bq.take(1000)
        A(f"v_add_u32 v{vAr}, {p*65536}, v{vL16}")
        rd = lambda ks: [(f"ds_read_b128 {v(Af+((ks%2)*4+idx)*4,4)}, v{vAr} offset:{idx*16384 + ks*1024}", f"f{ks}") for idx in range(4)]
        emit(A, rd(0))
        n = 0
        for ks in range(16):
            nxt = rd(ks + 1) if ks + 1 < 16 else []
            if p == 0 and ks == opt("poll4ks", 4):
                wg_check(A, WS_F2, sG3, 4, "p3b")
                k_ = opt("a1pos", 9)
                fillm = st_loads(1) + fillm[:k_] + a_dma(1) + fillm[k_:] + bq.take(opt("we0", 0))
            if p == 0 and ks == 10:
                emit(A, fillv)
                A.wait_vm("s1")
                A("s_barrier")
                fillv = stats(1)
            if p == 1 and ks == opt("sig5ks", 5):
                A.wait_vm("hh0")
                A("s_barrier")
                wg_signal(A, WS_F3, sG3, sJ3, 5)
            A.wait_lg(f"f{ks}")
            while any((not callable(x)) and x[1] == f"b3_{ks}" for x in fillm):
                emit(A, [fillm.pop(0)])
            A.wait_vm(f"b3_{ks}")
            for idx in range(4):
                for u in range(3):
                    d = v(acc + (idx * 3 + u) * 4, 4)
                    A(f"{MF} {d}, {r(B3reg(ks,u),0,4)}, {v(Af+((ks%2)*4+idx)*4,4)}, {'0' if ks==0 else d}")
                    n += 1
                    if nxt and u == 0:
                        emit(A, [nxt.pop(0)])
                    elif n > 6:
                        for _ in range(2):
                            if fillv:
                                emit(A, [fillv.pop(0)])
                    if n % opt("p3mper", 3) == 2:
                        if fillm:
                            emit(A, [fillm.pop(0)])
                        elif late and ks >= 7:
                            emit(A, [late.pop(0)])
        emit(A, fillv + fillm + late)
        stamp(A, f"p3 pass{p} mfma done")
        if p == 0:
            emit(A, epilogue(0))
    return lambda: emit(A, epilogue(1))


def p4(A, bq, epi1):
    K = KS(A, 4)
    wg_probe(A, WS_F3, sG, "pr5")
    epi1()
    stamp(A, "p3 stores issued")
    wg_check(A, WS_F3, sG, 5, "pr5")
    l0 = K.a_loads(0)
    n0 = opt("p4n0", 6)
    emit(A, l0[:n0])
    A.wait_vm("hh1")
    A("s_barrier")
    wg_signal(A, WS_F3, sG3, sJ3, 6)
    stamp(A, "p3 signalled")
    emit(A, l0[n0:])
    wg_probe(A, WS_F3, sG, "pr6")
    K.setup()
    wg_check(A, WS_F3, sG, 6, "pr6")
    stamp(A, "p4 flags6 ok")
    l1 = K.a_loads(1)
    emit(A, l1[:opt("p4n1", 8)])
    K.mfmas(0, l1[opt("p4n1", 8):])
    K.reduce(0)
    stamp(A, "p4 h0 stored")
    K.mfmas(1)
    K.reduce(1)


def main(path):
    A = Asm()
    label = NAME + "_kernel"
    A.raw("; @launch grid=(256,1,1) block=(256,1,1) lds=163840")
    A.raw('.amdgcn_target "amdgcn-amd-amdhsa--gfx950"\n.text')
    bq, sq = BQ(), SQ()
    p1(A, bq, sq, label)
    p2(A, bq, sq)
    epi1 = p3(A, bq, sq)
    p4(A, bq, epi1)
    if INSTR:
        A("s_waitcnt vmcnt(0) lgkmcnt(0)")
        stamp(A, "end")
        A(f"""
        s_memrealtime s[100:101]
        s_waitcnt lgkmcnt(0)
        v_writelane_b32 v{vSTAMP}, s100, 63
        s_lshl_b32 s{sA}, s2, 2
        s_add_u32 s{sA}, s{sA}, s{sW}
        s_lshl_b32 s{sA}, s{sA}, 8
        s_add_u32 s{sA}, s{sA}, {WS_PROF}
        buffer_store_dword v{vSTAMP}, v{vFo}, {WSS}, s{sA} offen
        s_waitcnt vmcnt(0)
        """)
        open(path + ".stamps", "w").write("\n".join(STAMPNAMES))
    if opt("dbgt", 0):
        A(f"""
        s_waitcnt vmcnt(0) lgkmcnt(0)
        s_memrealtime s[100:101]
        s_waitcnt lgkmcnt(0)
        v_mov_b32 v{vT0}, s100
        v_mov_b32 v{vT1}, s59
        v_not_b32 v{vT2}, v{vT1}
        v_mov_b32 v{vT3}, 0
        s_mov_b64 exec, 1
        buffer_atomic_umax v{vT0}, v{vT3}, s[{SDBG}:{SDBG+3}], 0 offen offset:16 sc1
        buffer_atomic_umax v{vT1}, v{vT3}, s[{SDBG}:{SDBG+3}], 0 offen offset:20 sc1
        buffer_atomic_umax v{vT2}, v{vT3}, s[{SDBG}:{SDBG+3}], 0 offen offset:24 sc1
        s_waitcnt vmcnt(0)
        """)
    A.raw("L_done:")
    A("s_endpgm")
    A.raw(f""".section .rodata,"a"
.p2align 6
.amdhsa_kernel {label}
  .amdhsa_next_free_vgpr 512
  .amdhsa_next_free_sgpr 102
  .amdhsa_accum_offset 256
  .amdhsa_group_segment_fixed_size 0
  .amdhsa_kernarg_size 80
  .amdhsa_user_sgpr_count 2
  .amdhsa_user_sgpr_kernarg_segment_ptr 1
  .amdhsa_system_sgpr_workgroup_id_x 1
.end_amdhsa_kernel""")
    open(path, "w").write(A.text())
    print("instructions", A.nins, "nops", A.nnop)


if __name__ == "__main__":
    main(sys.argv[1] if len(sys.argv) > 1 else f"k8.s")
```

```python
import sys, os, struct, re
from asmlib import *

NAME = "sequential_preLN__sliding_local_dilated__glu_gated_reglu__prompt"
INSTR = int(os.environ.get("INSTR", "0"))
OPT = dict(x.split("=") for x in os.environ.get("OPT", "").split(",") if x)
def opt(k, d):
    return int(OPT.get(k, d))

WS_ARR = 0x8000
WS_F1 = 0x00000
WS_F2 = 0x10000
WS_F3 = 0x20000
WS_O = 0x100000
WS_H = 0x300000
WS_HH = 0x500000
WS_ST = 0xC00000
WS_PROF = 0xE00000
WS_R3 = 0x1000000
WS_R2 = 0x1400000
WS_R4 = 0x1500000
WS_CS = 0x1700000
WS_S1 = 0x1780000
WS_SIZE = 0x2000000
HHK = 48
OOB = 0x7f000000

sXCC = 3
SX, SWQ, SWS, SOUT, SDBG, SB3, SWO, SWD = 4, 8, 12, 16, 20, 24, 28, 32
sW, sG, sJ, sHB, sCB, sRB, sIDX, sW1, sWH, sW12, sG3, sJ3 = range(36, 48)
sA, sB, sC, sBA, sCNT = 48, 49, 50, 51, 52
sFAST, sNON, sFLG, sFLA, sK4, sB3b = 53, 54, 55, 56, 57, 58
sKC0, sXo0, sXo1, sXo2 = 60, 61, 62, 63
KA = 64
sM1, sM2, sM3, sDiag = 64, 66, 68, 70
sB2l, sB2h, sB4l, sB4h, sB4zl, sB4zh = 72, 73, 74, 75, 76, 77
sSQ, sDUM = 78, 80
t1, t2, t3 = 81, 82, 83
sXl, sXl2, sWl, sWs = 84, 85, 86, 87
sEX0, sEX2, sW0, sHM = 88, 90, 92, 94

vL, vJ, vQ, vL16 = 1, 2, 3, 4
vAo, vF, vFo = 5, 6, 7
vT0, vT1, vT2, vT3 = 8, 9, 10, 11
vSTAMP = 15
vDs = 16
vSt = 17
HRES = 18
ones = 28
VA = 244

SLOT = 34816
STG = 104448
NONW = 162812
ST1 = 162816

LOG2E = 1.4426950408889634
MF = "v_mfma_f32_16x16x32_bf16"
MF16 = "v_mfma_f32_16x16x16_bf16"
WSS = f"s[{SWS}:{SWS+3}]"


def f32hex(x):
    return "0x%08x" % struct.unpack("<I", struct.pack("<f", x))[0]


STAMPN = [0]
STAMPNAMES = []
def stamp(A, name=""):
    if not INSTR:
        return
    if INSTR == 2 and not any(k in name for k in ("start", "end", "loop done", "mfma done", "bar0")):
        return
    i = STAMPN[0]
    STAMPN[0] += 1
    STAMPNAMES.append(name)
    assert i < 60
    A(f"s_memtime s[100:101]\ns_waitcnt lgkmcnt(0)\nv_writelane_b32 v{vSTAMP}, s100, {i}")


def emit(A, items):
    for it in items:
        if callable(it):
            it()
        else:
            A(it[0], tag=it[1])


def weave(main, fills):
    out = []
    pos = [0] * len(fills)
    for i, m in enumerate(main):
        out.append(m)
        for k, (items, start, per) in enumerate(fills):
            if i >= start:
                n = per(i) if callable(per) else per
                out.extend(items[pos[k]:pos[k] + n])
                pos[k] += n
    for k, (items, start, per) in enumerate(fills):
        out.extend(items[pos[k]:])
    return out


def unpack_pk(t):
    mn, rest = t.split(None, 1)
    toks = rest.split()
    ops = [x.strip(",") for x in toks if x.startswith("v[")]
    mods = {x.split(":")[0]: eval(x.split(":", 1)[1]) for x in toks if x.startswith(("op_sel", "neg_"))}
    n = len(ops) - 1
    base = [int(re.match(r"v\[(\d+):", o).group(1)) for o in ops]
    sel_lo = mods.get("op_sel", [0] * n)
    sel_hi = mods.get("op_sel_hi", [1] * n)
    neg_lo = mods.get("neg_lo", [0] * n)
    neg_hi = mods.get("neg_hi", [0] * n)
    op = {"v_pk_add_f32": "v_add_f32", "v_pk_mul_f32": "v_mul_f32", "v_pk_fma_f32": "v_fma_f32"}[mn]
    out = []
    for half, sel, neg in ((0, sel_lo, neg_lo), (1, sel_hi, neg_hi)):
        srcs = [("-" if neg[i] else "") + f"v{base[i+1] + sel[i]}" for i in range(n)]
        out.append(f"{op} v{base[0]+half}, " + ", ".join(srcs))
    return out


def B2reg(st, ct):
    return ("a", 192 + (st * 4 + ct) * 4)
def B4reg(st, ct):
    if st < 4:
        return ("a", 192 + (st * 4 + ct) * 4)
    if st < 7:
        return ("v", 208 + ((st - 4) * 4 + ct) * 4)
    return ("a", ((st - 7) * 4 + ct) * 4)
def B3reg(ks, u):
    return ("a", (ks * 3 + u) * 4)


VD3 = [5, 17, 7]
VTR3 = [204, 205, 206]
sS3, sS2, sS4, sL2 = 72, 73, 74, 75


def w3_dma(ks, base):
    return [(f"""
    s_mul_i32 s{sBA}, s{sW}, 3072
    s_add_u32 m0, s{sBA}, {base}
    s_add_u32 s{sBA}, s{sS3}, {ks*32*2752}
    buffer_load_dwordx4 v{VD3[0]}, s[{SB3}:{SB3+3}], s{sBA} offen lds
    buffer_load_dwordx4 v{VD3[1]}, s[{SB3}:{SB3+3}], s{sBA} offen offset:1024 lds
    buffer_load_dwordx4 v{VD3[2]}, s[{SB3}:{SB3+3}], s{sBA} offen offset:2048 lds""", f"w3_{ks}")]


def w3_tr(A, kss, bases):
    cur = 0
    for ks, base in zip(kss, bases):
        if base - cur + 6144 > 65535:
            for u in range(3):
                A(f"v_add_u32 v{VTR3[u]}, {base - cur}, v{VTR3[u]}")
            cur = base
        for u in range(3):
            for hf in range(2):
                A(f"ds_read_b64_tr_b16 {r(B3reg(ks,u), hf*2, 2)}, v{VTR3[u]} offset:{base - cur + hf*6144}", tag="w3t")
    if cur:
        for u in range(3):
            A(f"v_subrev_u32 v{VTR3[u]}, {cur}, v{VTR3[u]}")


def k_dma(srd_, ssrc, st, sg, c0, tag, zero_w3=False):
    it = []
    for p in range(4):
        z = f"""
        s_cmp_eq_u32 s{sW}, 3
        s_cselect_b32 s{sBA}, {OOB}, s{sBA}""" if zero_w3 else ""
        it.append((f"""
        s_add_u32 m0, s{sg}, {c0 + p*1024}
        s_add_u32 s{sBA}, s{ssrc}, {st*32768 + p*8192}{z}
        buffer_load_dwordx4 v{vDs}, s[{srd_}:{srd_+3}], s{sBA} offen lds""", tag))
    return it


LS = [n * 12288 for n in range(5)]
US = [65536, 77824, 90112, 129024]
W3SLOT = {0: LS[0], 1: LS[1], 2: LS[2], 3: LS[3], 4: LS[4], 5: US[2], 6: US[0], 7: US[1], 8: US[3],
          9: LS[0], 10: LS[1], 11: LS[2], 12: US[2], 13: US[0], 14: US[1], 15: US[3]}
STB = 141312
def w3i(kss):
    return [x for ks in kss for x in w3_dma(ks, W3SLOT[ks])]
def w3w(A, kss):
    A.wait_vm([f"w3_{ks}" for ks in kss])
def w3r(A, kss):
    kss = sorted(kss, key=lambda k: W3SLOT[k])
    w3_tr(A, kss, [W3SLOT[k] for k in kss])

LBL = [0]
def newlbl():
    LBL[0] += 1
    return LBL[0]


def spin(A, tag, test, reprobe, limit=0x40000, only_w0=False, after=None, sleep=0, mid=None):
    n = newlbl()
    A.wait_vm(tag)
    if mid:
        mid()
    saved = list(A.vm)
    A.fence()
    if only_w0:
        A(f"s_cmp_eq_u32 s{sW}, 0\ns_cbranch_scc0 L_skip{n}")
    A(f"s_mov_b32 s{sCNT}, 0")
    A.raw(f"L_wait{n}:")
    test(f"L_go{n}")
    if sleep:
        A(f"s_sleep {sleep}")
    reprobe()
    A(f"""
    s_waitcnt vmcnt(0)
    s_add_u32 s{sCNT}, s{sCNT}, 1
    s_cmp_lt_u32 s{sCNT}, {limit}
    s_cbranch_scc1 L_wait{n}
    """)
    A.raw(f"L_go{n}:")
    A.fence()
    if after:
        after()
    if only_w0:
        A.raw(f"L_skip{n}:")
    A.vm = saved
    A.fence()


def flag_test(A, step, mask):
    def t(lbl):
        A(f"""
        s_add_u32 s{sBA}, s{sNON}, {step}
        v_subrev_u32 v{vF}, s{sBA}, v{vF}
        v_cmp_lt_u32 vcc, 15, v{vF}
        s_and_b64 vcc, vcc, {mask}
        s_cbranch_scc0 {lbl}
        """)
    return t


PS = [60, 84, 88, 8]
def wg_signal(A, base, sg, sj, step):
    A(f"""
    s_add_u32 s{sBA}, s{sNON}, {step}
    v_mov_b32 v{vT0}, s{sBA}
    v_mov_b32 v{vT1}, 0
    s_lshl_b32 s{sBA}, s{sg}, 9
    s_lshr_b32 s{sCNT}, s{sj}, 2
    s_lshl_b32 s{sCNT}, s{sCNT}, 7
    s_add_u32 s{sBA}, s{sBA}, s{sCNT}
    s_and_b32 s{sCNT}, s{sj}, 3
    s_lshl_b32 s{sCNT}, s{sCNT}, 2
    s_add_u32 s{sBA}, s{sBA}, s{sCNT}
    s_add_u32 s{sBA}, s{sBA}, {base}
    s_mov_b64 exec, s[{sW0}:{sW0+1}]
    """)
    A(f"buffer_store_dword v{vT0}, v{vT1}, {WSS}, s{sBA} offen sc1", tag="~wgf")
    A("s_mov_b64 exec, -1")


def wg_poll(A, base, sg, step, half=False):
    n = newlbl()
    nl = 2 if half else 4
    A("s_waitcnt lgkmcnt(0)")
    A.fence()
    A(f"""
    s_cmp_eq_u32 s{sW}, 0
    s_cbranch_scc0 L_skip{n}
    s_lshl_b32 s{sBA}, s{sg}, 9
    """ + (f"""s_lshl_b32 s{sCNT}, s{sHB}, 8
    s_add_u32 s{sBA}, s{sBA}, s{sCNT}
    """ if half else "") + f"""
    s_add_u32 s{sBA}, s{sBA}, {base}
    s_add_u32 s96, s{SWS}, s{sBA}
    s_addc_u32 s97, s{SWS+1}, 0
    s_add_u32 s98, s{sNON}, {step}
    s_mov_b32 s{sCNT}, 0
    """)
    A.raw(f"L_wait{n}:")
    for i in range(nl):
        A(f"s_load_dwordx4 s[{PS[i]}:{PS[i]+3}], s[96:97], {i*128} glc")
    A("s_waitcnt lgkmcnt(0)")
    first = True
    for i in range(nl):
        for k in range(4):
            if first:
                A(f"s_sub_u32 s{sBA}, s{PS[i]+k}, s98")
                first = False
            else:
                A(f"s_sub_u32 s99, s{PS[i]+k}, s98\ns_or_b32 s{sBA}, s{sBA}, s99")
    A(f"""
    s_cmp_lt_u32 s{sBA}, 16
    s_cbranch_scc1 L_skip{n}
    s_add_u32 s{sCNT}, s{sCNT}, 1
    s_cmp_lt_u32 s{sCNT}, 0x40000
    s_cbranch_scc1 L_wait{n}
    """)
    A.raw(f"L_skip{n}:")
    A("s_barrier")


def vprobe(A, base, sg, tag):
    A(f"""
    s_lshl_b32 s{sBA}, s{sg}, 9
    s_add_u32 s{sBA}, s{sBA}, {base}
    v_lshrrev_b32 v{vT3}, 2, v{vJ}
    v_lshlrev_b32 v{vT3}, 7, v{vT3}
    v_and_b32 v{vT2}, 3, v{vJ}
    v_lshl_add_u32 v{vT3}, v{vT2}, 2, v{vT3}
    """)
    A(f"buffer_load_dword v{vF}, v{vT3}, {WSS}, s{sBA} offen sc1", tag=tag)

def vcheck(A, base, sg, step, tag):
    spin(A, tag, flag_test(A, step, "-1"), lambda: vprobe(A, base, sg, None))


def srd(A, d, p, n):
    A(f"""
    s_mov_b32 s{d}, s{p}
    s_and_b32 s{d+1}, s{p+1}, 0xffff
    s_mov_b32 s{d+2}, {n}
    s_mov_b32 s{d+3}, 0x20000
    """)


KS_ = [None]
LATE_ = [None]
class KS:
    def __init__(self, A, which):
        self.A, self.P2 = A, which == 2
        self.nst = 4 if self.P2 else 11
        self.RW = [12, 13, 14] if self.P2 else [204, 205, 206]
        self.vRr, self.vXo = (26, 27) if self.P2 else (207, 27)
        self.acc = [32, 64]
        self.T = 96
        self.U = 120
        if self.P2:
            self.Afr = lambda h, t, st: v(128 + ((h * 2 + t) * 4 + st) * 4, 4)
            self.Bf = B2reg
        else:
            def Afr(h, t, st):
                idx = (h * 2 + t) * 11 + st
                return a_(64 + idx * 4, 4) if idx < 32 else v(128 + (idx - 32) * 4, 4)
            self.Afr = Afr
            self.Bf = B4reg
        self.RED = [0, 0] if self.P2 else [0, 24576]
        self.REDB = 104448 if self.P2 else 0

    def setup(self):
        A = self.A
        for k in range(1, 4):
            A(f"""
            s_xor_b32 s{t1}, s{sW}, {k}
            s_mul_i32 s{t1}, s{t1}, 6144
            s_add_u32 s{t1}, s{t1}, {(k-1)*2048 + self.REDB}
            v_add_u32 v{self.RW[k-1]}, s{t1}, v{vL16}
            """)
        A(f"""
        s_mul_i32 s{t1}, s{sW}, 6144
        s_add_u32 s{t1}, s{t1}, {self.REDB}
        v_add_u32 v{self.vRr}, s{t1}, v{vL16}
        v_lshlrev_b32 v{self.vXo}, 10, v{vJ}
        v_lshl_add_u32 v{self.vXo}, v{vQ}, 3, v{self.vXo}
        """)

    def rowcol(self, h, dst):
        return f"""
        s_lshl_b32 s{dst}, s{sRB}, 16
        s_lshl_b32 s{sB}, s{sWH}, 14
        s_add_u32 s{dst}, s{dst}, s{sB}
        s_lshl_b32 s{sB}, s{sCB}, 7
        s_add_u32 s{dst}, s{dst}, s{sB}
        s_lshl_b32 s{sB}, s{sW1}, 6
        s_add_u32 s{dst}, s{dst}, s{sB}
        s_add_u32 s{dst}, s{dst}, {h*32768}
        """

    def res_loads(self):
        A = self.A
        for h in range(2):
            A(self.rowcol(h, sC))
            for i in range(2):
                A(f"buffer_load_dwordx2 v[{HRES+4*h+2*i}:{HRES+4*h+2*i+1}], v{self.vXo}, s[{SX}:{SX+3}], s{sC} offen offset:{i*32}", tag="res")

    def a_loads(self, h, skip=0):
        base = WS_O if self.P2 else WS_HH
        pitch = 16 if self.P2 else HHK
        k0 = f"s_lshl_b32 s{sB}, s{sW}, 2" if self.P2 else f"s_mov_b32 s{sB}, s{sK4}"
        it = []
        for t in range(2):
            pre = f"""
            s_xor_b32 s{sA}, s{sWH}, {t}
            s_lshl_b32 s{sB}, s{sRB}, 2
            s_add_u32 s{sA}, s{sA}, s{sB}
            s_add_u32 s{sA}, s{sA}, {2*h}
            s_mul_i32 s{sA}, s{sA}, {pitch}
            {k0}
            s_add_u32 s{sA}, s{sA}, s{sB}
            s_lshl_b32 s{sA}, s{sA}, 10
            s_add_u32 s{sA}, s{sA}, {base}
            """
            for st in range(self.nst):
                if st % 4 == 0 and st > 0:
                    pre += f"s_add_u32 s{sA}, s{sA}, 4096\n"
                if t * self.nst + st < skip:
                    continue
                it.append((pre + f"buffer_load_dwordx4 {self.Afr(h,t,st)}, v{vL16}, {WSS}, s{sA} offen offset:{(st%4)*1024}", f"a{h}_{t}_{st}"))
                pre = ""
        return it

    def mfmas(self, h, fill=()):
        A = self.A
        fill = list(fill)
        acc = self.acc[h]
        for t in range(2):
            for st in range(self.nst):
                A.wait_vm(f"a{h}_{t}_{st}")
                for ct in range(4):
                    d = v(acc + (t * 4 + ct) * 4, 4)
                    A(f"{MF} {d}, {r(self.Bf(st,ct),0,4)}, {self.Afr(h,t,st)}, {'0' if st==0 else d}")
                    if ct == 1 and fill:
                        emit(A, [fill.pop(0)])
                if t == 1 and st == 1:
                    for i in range(2):
                        A(f"ds_write_b128 v{self.RW[0]}, {v(acc+(2+i)*4,4)} offset:{self.RED[h]+i*1024}")
        emit(A, fill)
        for k in (2, 3):
            for i in range(2):
                A(f"ds_write_b128 v{self.RW[k-1]}, {v(acc+(k*2+i)*4,4)} offset:{self.RED[h]+i*1024}")

    def reduce(self, h, pre_barrier=None, post_barrier=None):
        A = self.A
        acc, T, U = self.acc[h], self.T, self.U
        if pre_barrier:
            pre_barrier()
        A("s_waitcnt lgkmcnt(0)\ns_barrier")
        for k in range(3):
            for i in range(2):
                A(f"ds_read_b128 {v(T+(k*2+i)*4,4)}, v{self.vRr} offset:{self.RED[h]+k*2048+i*1024}", tag=f"rd{k}")
        if post_barrier:
            post_barrier()
        A.wait_vm("res")
        for i in range(4):
            A(f"v_lshlrev_b32 v{U+2*i}, 16, v{HRES+4*h+i}")
            A(f"v_and_b32 v{U+2*i+1}, 0xffff0000, v{HRES+4*h+i}")
        for i in range(4):
            A(f"v_pk_add_f32 v[{acc+2*i}:{acc+2*i+1}], v[{acc+2*i}:{acc+2*i+1}], v[{U+2*i}:{U+2*i+1}]")
        for k in range(3):
            A.wait_lg(f"rd{k}")
            for i in range(4):
                b = T + k * 8 + 2 * i
                A(f"v_pk_add_f32 v[{acc+2*i}:{acc+2*i+1}], v[{acc+2*i}:{acc+2*i+1}], v[{b}:{b+1}]")
        PK = HRES + 4 * h
        for i in range(4):
            A(f"v_cvt_pk_bf16_f32 v{PK+i}, v{acc+2*i}, v{acc+2*i+1}")
        if self.P2:
            G, S_ = acc + 8, acc + 12
            A(f"""
            s_lshl_b32 s{sC}, s{sRB}, 16
            s_lshl_b32 s{sB}, s{sWH}, 14
            s_add_u32 s{sC}, s{sC}, s{sB}
            s_lshl_b32 s{sB}, s{sCB}, 11
            s_add_u32 s{sC}, s{sC}, s{sB}
            s_lshl_b32 s{sB}, s{sW1}, 10
            s_add_u32 s{sC}, s{sC}, s{sB}
            s_add_u32 s{sC}, s{sC}, {WS_H + h*32768}
            {MF} {v(G,4)}, {v(PK,4)}, {v(PK,4)}, 0
            {MF} {v(S_,4)}, {v(ones,4)}, {v(PK,4)}, 0
            """)
            A(f"buffer_store_dwordx4 v[{PK}:{PK+3}], v{vL16}, {WSS}, s{sC} offen sc1", tag=f"hst{h}")
            A(f"""
            v_lshlrev_b32 v{vT2}, 3, v{vJ}
            s_lshl_b32 s{sC}, s{sRB}, 13
            s_lshl_b32 s{sB}, s{sWH}, 11
            s_add_u32 s{sC}, s{sC}, s{sB}
            s_lshl_b32 s{sB}, s{sCB}, 8
            s_add_u32 s{sC}, s{sC}, s{sB}
            s_lshl_b32 s{sB}, s{sW1}, 7
            s_add_u32 s{sC}, s{sC}, s{sB}
            s_add_u32 s{sC}, s{sC}, {WS_ST + h*4096}
            v_cndmask_b32 v{S_+1}, v{G}, v{G+1}, s[{sM1}:{sM1+1}]
            v_cndmask_b32 v{S_+1}, v{S_+1}, v{G+2}, s[{sM2}:{sM2+1}]
            v_cndmask_b32 v{S_+1}, v{S_+1}, v{G+3}, s[{sM3}:{sM3+1}]
            s_mov_b64 exec, s[{sDiag}:{sDiag+1}]
            """)
            A(f"buffer_store_dwordx2 v[{S_}:{S_+1}], v{vT2}, {WSS}, s{sC} offen sc1", tag=f"hst{h}")
            A("s_mov_b64 exec, -1")
        else:
            A(self.rowcol(h, sC))
            for i in range(2):
                A(f"buffer_store_dwordx2 v[{PK+2*i}:{PK+2*i+1}], v{self.vXo}, s[{SOUT}:{SOUT+3}], s{sC} offen offset:{i*32}")


def p1(A, label):
    ST = ST1
    vWe, vWo_, vA0, vA1, vWt = 32, 33, 34, 35, 36
    vA0b, vA1b, vWtb = 37, 38, 39
    vSa, vSc, vSl, vOst = 40, 41, 42, 43
    vP0 = 44
    accQ, accK, accV = 48, 68, 88
    Af = [108, 128]
    Wf = [148, 160]
    biasP, biasC, biasF, selLo, selHi = 196, 200, 204, 208, 209
    WO = 10240
    XR = 180
    S1, S2 = 188, 189
    vXr = 192

    A.raw(".p2align 8\n.globl %s\n.type %s,@function\n%s:" % (label, label, label))
    if INSTR:
        A("s_memrealtime s[100:101]\ns_waitcnt lgkmcnt(0)\nv_writelane_b32 v15, s100, 62")
        stamp(A, "start")
    xrot = f"s_and_b32 s{sB}, s2, 7" if opt("xrot", 1) else f"s_mov_b32 s{sB}, 0"
    crot = {0: f"s_mov_b32 s{sA}, 0", 1: f"s_lshl_b32 s{sA}, s{sA}, 2", 2: f"s_mov_b32 s{sA}, s{sCB}",
            3: f"s_lshr_b32 s{sA}, s{sIDX}, 3\ns_and_b32 s{sA}, s{sA}, 1\ns_lshl_b32 s{sA}, s{sA}, 2\ns_add_u32 s{sA}, s{sA}, s{sCB}"}[opt("crot", 2)]
    A(f"""
    s_cmp_ge_u32 s2, 256
    s_cbranch_scc1 L_done
    s_load_dwordx16 s[{KA}:{KA+15}], s[0:1], 0
    s_load_dwordx4 s[{KA+16}:{KA+19}], s[0:1], 64
    s_memrealtime s[98:99]
    v_and_b32 v{vL}, 63, v0
    v_lshrrev_b32 v{vT0}, 6, v0
    s_lshr_b32 s{sIDX}, s2, 3
    s_and_b32 s{sG}, s2, 7
    s_lshl_b32 s{sG}, s{sG}, 1
    v_readfirstlane_b32 s{sW}, v{vT0}
    s_lshr_b32 s{sA}, s{sIDX}, 4
    s_add_u32 s{sG}, s{sG}, s{sA}
    s_and_b32 s{sJ}, s{sIDX}, 15
    s_lshr_b32 s{sHB}, s{sJ}, 3
    s_and_b32 s{sCB}, s{sJ}, 7
    s_lshl_b32 s{sRB}, s{sG}, 1
    s_add_u32 s{sRB}, s{sRB}, s{sHB}
    s_lshr_b32 s{sWH}, s{sW}, 1
    s_and_b32 s{sW1}, s{sW}, 1
    v_lshrrev_b32 v{vT0}, 3, v{vL}
    v_and_b32 v{vT1}, 7, v{vL}
    v_and_b32 v{vT2}, 6, v{vT0}
    v_xor_b32 v{vT2}, v{vT1}, v{vT2}
    v_lshlrev_b32 v{vT2}, 4, v{vT2}
    v_lshl_add_u32 v{vDs}, v{vT0}, 10, v{vT2}
    v_and_b32 v{vT2}, 2, v{vT0}
    v_xor_b32 v{vT2}, v{vT1}, v{vT2}
    v_lshlrev_b32 v{vT2}, 4, v{vT2}
    v_mul_u32_u24 v{vWe}, 3072, v{vT0}
    v_add_u32 v{vWe}, v{vWe}, v{vT2}
    v_xor_b32 v{vWo_}, 64, v{vWe}
    v_add_u32 v{vWo_}, 24576, v{vWo_}
    s_lshr_b32 s{sA}, s{sIDX}, 3
    s_add_u32 s{sA}, s{sA}, s{sCB}
    s_and_b32 s{sA}, s{sA}, 1
    {crot}
    {xrot}
    s_add_u32 s{sKC0}, s{sA}, s{sB}
    s_lshl_b32 s{sA}, s{sRB}, 16
    s_sub_u32 s{sA}, s{sA}, 16384
    s_lshl_b32 s{sB}, s{sW}, 14
    s_add_u32 s{sXo0}, s{sA}, s{sB}
    s_add_u32 s{sXo1}, s{sXo0}, 8192
    s_max_i32 s{sXo0}, s{sXo0}, 0
    s_max_i32 s{sXo1}, s{sXo1}, 0
    s_lshl_b32 s{sC}, s{sWH}, 13
    s_add_u32 s{sXo2}, s{sA}, s{sC}
    s_add_u32 s{sXo2}, s{sXo2}, 65536
    s_lshl_b32 s{sXl}, s{sW}, 11
    s_lshl_b32 s{sXl2}, s{sWH}, 10
    s_add_u32 s{sXl2}, s{sXl2}, 8192
    s_mul_i32 s{sWl}, s{sW}, 6144
    s_add_u32 s{sWl}, s{sWl}, {WO}
    s_mul_i32 s{sWs}, s{sW}, 49152
    s_lshl_b32 s{sB}, s{sCB}, 7
    s_add_u32 s{sWs}, s{sWs}, s{sB}
    s_cmp_eq_u32 s{sW}, 0
    s_cselect_b32 s{sEX0}, 0xffffff00, -1
    s_mov_b32 s{sEX0+1}, -1
    s_cselect_b32 s{sW0}, 1, 0
    s_mov_b32 s{sW0+1}, 0
    s_cmp_eq_u32 s{sW1}, 0
    s_cselect_b32 s{sEX2}, -1, 0
    s_cselect_b32 s{sEX2+1}, 0, -1
    s_lshl_b32 s{sFLG}, s{sG}, 8
    v_and_b32 v{vJ}, 15, v{vL}
    v_lshrrev_b32 v{vQ}, 4, v{vL}
    v_lshlrev_b32 v{vL16}, 4, v{vL}
    v_lshlrev_b32 v{vXr}, 5, v{vL}
    s_waitcnt lgkmcnt(0)
    """)
    srd(A, SWQ, KA + 2, 512 * 1536 * 2)
    srd(A, SX, KA + 0, 2048 * 512 * 2)
    stamp(A, "kernarg ok")

    def dma(i):
        slot = i % 3
        it = []
        tag = f"c{i}"
        it.append((f"""
        s_add_u32 s{sA}, s{sKC0}, {i}
        s_and_b32 s{sA}, s{sA}, 7
        s_mul_i32 s{sC}, s{sA}, {64*3072}
        s_add_u32 s{sC}, s{sC}, s{sWs}
        s_lshl_b32 s{sA}, s{sA}, 7
        s_add_u32 m0, s{sWl}, {slot*SLOT}
        buffer_load_dwordx4 v{vWe}, s[{SWQ}:{SWQ+3}], s{sC} offen lds""", tag))
        for sec in (1, 2):
            it.append((f"buffer_load_dwordx4 v{vWe}, s[{SWQ}:{SWQ+3}], s{sC} offen offset:{sec*1024} lds", tag))
        for sec in range(3):
            pre = f"s_add_u32 m0, s{sWl}, {slot*SLOT+3072}\n" if sec == 0 else ""
            it.append((pre + f"buffer_load_dwordx4 v{vWo_}, s[{SWQ}:{SWQ+3}], s{sC} offen offset:{sec*1024} lds", tag))
        it.append((f"""
        s_mov_b64 exec, s[{sEX0}:{sEX0+1}]
        s_add_u32 m0, s{sXl}, {slot*SLOT}
        s_add_u32 s{sB}, s{sXo0}, s{sA}
        buffer_load_dwordx4 v{vDs}, s[{SX}:{SX+3}], s{sB} offen lds
        s_mov_b64 exec, -1""", tag))
        it.append((f"""
        s_add_u32 m0, s{sXl}, {slot*SLOT+1024}
        s_add_u32 s{sB}, s{sXo1}, s{sA}
        buffer_load_dwordx4 v{vDs}, s[{SX}:{SX+3}], s{sB} offen lds""", tag))
        it.append((f"""
        s_mov_b64 exec, s[{sEX2}:{sEX2+1}]
        s_add_u32 m0, s{sXl2}, {slot*SLOT}
        s_add_u32 s{sB}, s{sXo2}, s{sA}
        buffer_load_dwordx4 v{vDs}, s[{SX}:{SX+3}], s{sB} offen lds
        s_mov_b64 exec, -1""", tag))
        return it


    if opt("s3pf", 1):
        A(f"""
        s_lshl_b32 s{sA}, s{sIDX}, 2
        s_add_u32 s{sA}, s{sA}, s{sW}
        s_mul_i32 s{sA}, s{sA}, 12288
        v_lshlrev_b32 v{vT3}, 10, v{vL}
        s_mov_b64 exec, 0xfff
        buffer_load_dword v{vF}, v{vT3}, s[{SWQ}:{SWQ+3}], s{sA} offen offset:384
        s_mov_b64 exec, -1
        """)
    emit(A, dma(0))
    srd(A, SDBG, KA + 16, 256)
    A(f"""
    s_lshl_b32 s98, s98, 5
    s_or_b32 s98, s98, 16
    v_mov_b32 v{vT0}, s98
    v_mov_b32 v{vT1}, 0
    v_mov_b32 v{vT2}, 0
    s_lshl_b32 s99, s2, 2
    s_add_u32 s99, s99, s{sW}
    s_and_b32 s99, s99, 0xffffffe3
    s_cmp_eq_u32 s99, 0
    s_cselect_b64 exec, 1, 0
    """)
    A(f"buffer_atomic_cmpswap v[{vT0}:{vT1}], v{vT2}, s[{SDBG}:{SDBG+3}], 0 offen sc1", tag="~cas")
    A(f"""
    s_mov_b64 exec, -1
    s_lshl_b32 s{sA}, s{sRB}, 16
    s_lshl_b32 s{sB}, s{sCB}, 13
    s_add_u32 s{sA}, s{sA}, s{sB}
    s_lshl_b32 s{sB}, s{sW}, 11
    s_add_u32 s{sA}, s{sA}, s{sB}
    """)
    A(f"buffer_load_dwordx4 v[{XR}:{XR+3}], v{vXr}, s[{SX}:{SX+3}], s{sA} offen", tag="e")
    A(f"buffer_load_dwordx4 v[{XR+4}:{XR+7}], v{vXr}, s[{SX}:{SX+3}], s{sA} offen offset:16", tag="e")
    if opt("cpf", 1):
        A("s_getpc_b64 s[96:97]")
        A.raw("L_pc:")
        A(f"""
        s_lshl_b32 s{sA}, s{sIDX}, 10
        v_lshrrev_b32 v{vT3}, 5, v0
        v_lshlrev_b32 v{vT3}, 7, v{vT3}
        v_add_u32 v{vT3}, s{sA}, v{vT3}
        v_min_u32 v{vT3}, L_done-L_pc, v{vT3}
        global_load_dword v{vF}, v{vT3}, s[96:97]
        """)
    stamp(A, "c0+early issued")
    srd(A, SWO, KA + 4, 512 * 512 * 2)
    srd(A, SWS, KA + 18, WS_SIZE)
    srd(A, SOUT, KA + 14, 2048 * 512 * 2)
    srd(A, SWD, KA + 12, 1376 * 512 * 2)
    A(f"""
    s_cmp_eq_u32 s{sW1}, 0
    s_cselect_b32 s{SB3}, s{KA+8}, s{KA+10}
    s_cselect_b32 s{SB3+1}, s{KA+9}, s{KA+11}
    s_and_b32 s{SB3+1}, s{SB3+1}, 0xffff
    s_mov_b32 s{SB3+2}, {512*1376*2}
    s_mov_b32 s{SB3+3}, 0x20000
    v_mov_b32 v{ones}, 0x3f803f80
    v_mov_b32 v{ones+1}, 0x3f803f80
    v_mov_b32 v{ones+2}, 0x3f803f80
    v_mov_b32 v{ones+3}, 0x3f803f80
    v_lshrrev_b32 v{vT0}, 3, v{vJ}
    v_and_b32 v{vT1}, 7, v{vJ}
    v_lshlrev_b32 v{vT1}, 7, v{vT1}
    v_lshl_add_u32 v{vT0}, v{vT0}, 10, v{vT1}
    v_and_b32 v{vT1}, 6, v{vJ}
    v_xor_b32 v{vT1}, v{vQ}, v{vT1}
    v_lshl_add_u32 v{vA0}, v{vT1}, 4, v{vT0}
    v_xor_b32 v{vA1}, 64, v{vA0}
    v_bfe_u32 v{vT0}, v{vL}, 2, 2
    v_bfe_u32 v{vT1}, v{vL}, 1, 1
    s_lshl_b32 s{sA}, s{sW}, 1
    v_add_u32 v{vT1}, s{sA}, v{vT1}
    v_and_b32 v{vT2}, 1, v{vQ}
    v_lshlrev_b32 v{vT2}, 2, v{vT2}
    v_xor_b32 v{vT1}, v{vT1}, v{vT2}
    v_and_b32 v{vT2}, 2, v{vT0}
    v_xor_b32 v{vT1}, v{vT1}, v{vT2}
    v_lshlrev_b32 v{vT1}, 4, v{vT1}
    v_lshl_add_u32 v{vT1}, v{vT0}, 7, v{vT1}
    v_and_b32 v{vT2}, 1, v{vL}
    v_lshl_add_u32 v{vT1}, v{vT2}, 3, v{vT1}
    v_mul_u32_u24 v{vT2}, 3072, v{vQ}
    v_add_u32 v{vT1}, v{vT1}, v{vT2}
    v_add_u32 v{vWt}, {WO}, v{vT1}
    v_add_u32 v{vA0b}, {2*SLOT}, v{vA0}
    v_add_u32 v{vA1b}, {2*SLOT}, v{vA1}
    v_add_u32 v{vWtb}, {2*SLOT}, v{vWt}
    v_lshrrev_b32 v{vT0}, 3, v{vL}
    v_mul_u32_u24 v{vT0}, {SLOT}, v{vT0}
    v_and_b32 v{vT1}, 7, v{vL}
    v_lshl_add_u32 v{vT0}, v{vT1}, 4, v{vT0}
    s_mov_b64 exec, 0xffffff
    ds_write_b128 v{vT0}, v[{ones}:{ones+3}]
    s_mov_b64 exec, -1
    v_mov_b32 v{vT3}, 0
    s_cmp_eq_u32 s{sW}, 0
    s_cselect_b64 exec, -1, 0
    """)
    A(f"buffer_load_dword v{vF}, v{vT3}, s[{SDBG}:{SDBG+3}], 0 offen sc1", tag="~non")
    A("s_mov_b64 exec, -1")
    d1 = dma(1)
    emit(A, d1[:opt("d1a", 3)])
    A(f"s_mov_b32 s96, s{sA}\ns_mov_b32 s97, s{sC}")
    role = f"""
    s_and_b32 s{t1}, s2, 7
    s_lshr_b32 s{t2}, s{t1}, 1
    s_lshl_b32 s{sG3}, s{t2}, 2
    s_lshr_b32 s{t2}, s{sIDX}, 3
    s_add_u32 s{sG3}, s{sG3}, s{t2}
    s_and_b32 s{t1}, s{t1}, 1
    s_lshl_b32 s{sJ3}, s{t1}, 3
    s_and_b32 s{t2}, s{sIDX}, 7
    s_add_u32 s{sJ3}, s{sJ3}, s{t2}
    """ if opt("p3x", 1) else f"""
    s_mov_b32 s{sG3}, s{sG}
    s_mov_b32 s{sJ3}, s{sJ}
    """
    A(role + f"s_lshl_b32 s{sA}, s{sW1}, 5")
    for n in range(3):
        A(f"""
        v_add_u32 v{vT0}, {64*n}, v{vL}
        v_mul_u32_u24 v{vT1}, 43691, v{vT0}
        v_lshrrev_b32 v{vT1}, 19, v{vT1}
        v_mul_u32_u24 v{vT2}, 12, v{vT1}
        v_sub_u32 v{vT0}, v{vT0}, v{vT2}
        v_bfe_u32 v{vT2}, v{vT1}, 2, 1
        v_xor_b32 v{vT0}, v{vT0}, v{vT2}
        v_mul_u32_u24 v{vT1}, 2752, v{vT1}
        v_lshl_add_u32 v{vT0}, v{vT0}, 4, v{vT1}
        v_xor_b32 v{vT0}, s{sA}, v{vT0}
        v_subrev_u32 v{VD3[n]}, {1024*n}, v{vT0}
        """)
    A(f"""
    s_lshl_b32 s{sW12}, s{sW}, 12
    s_mul_i32 s{sK4}, s{sW}, 11
    s_min_u32 s{sK4}, s{sK4}, 32
    s_mul_i32 s{sS3}, s{sWH}, {16*2752}
    s_mul_i32 s{t1}, s{sJ3}, 192
    s_add_u32 s{sS3}, s{sS3}, s{t1}
    s_cmp_eq_u32 s{sJ3}, 15
    s_cselect_b32 s{sS3}, {OOB}, s{sS3}
    s_lshl_b32 s{t1}, s{sCB}, 7
    s_lshl_b32 s{sS2}, s{sW}, 17
    s_add_u32 s{sS2}, s{sS2}, s{t1}
    s_lshl_b32 s{sS4}, s{sK4}, 15
    s_add_u32 s{sS4}, s{sS4}, s{t1}
    s_mul_i32 s{sL2}, s{sW}, 12288
    s_add_u32 s{sL2}, s{sL2}, {STG}
    """)
    NEG = f32hex(-1e30)
    A(f"""
    v_lshlrev_b32 v{vT0}, 2, v{vQ}
    v_sub_u32 v{vT0}, v{vT0}, v{vJ}
    v_mov_b32 v{vT3}, {NEG}
    s_cmp_eq_u32 s{sRB}, 0
    s_cselect_b64 s[98:99], -1, 0
    """)
    for r_ in range(4):
        A(f"""
        v_add_u32 v{vT1}, {r_}, v{vT0}
        v_and_b32 v{vT2}, 1, v{vT1}
        v_cmp_eq_u32 s[64:65], 0, v{vT2}
        v_cmp_le_i32 s[66:67], 2, v{vT1}
        v_cmp_ge_i32 s[68:69], 0, v{vT1}
        s_and_b64 s[66:67], s[66:67], s[64:65]
        s_and_b64 s[68:69], s[68:69], s[64:65]
        v_cndmask_b32 v{biasP+r_}, v{vT3}, 0, s[66:67]
        v_cndmask_b32 v{biasC+r_}, v{vT3}, 0, s[68:69]
        v_cndmask_b32 v{biasF+r_}, v{biasP+r_}, v{vT3}, s[98:99]
        """)
    A(f"""
    v_and_b32 v{vT0}, 3, v{vJ}
    v_cmp_eq_u32 s[{sM1}:{sM1+1}], 1, v{vT0}
    v_cmp_eq_u32 s[{sM2}:{sM2+1}], 2, v{vT0}
    v_cmp_eq_u32 s[{sM3}:{sM3+1}], 3, v{vT0}
    v_lshrrev_b32 v{vT0}, 2, v{vJ}
    v_cmp_eq_u32 s[{sDiag}:{sDiag+1}], v{vT0}, v{vQ}
    v_and_b32 v{vT1}, 1, v{vJ}
    v_cmp_eq_u32 vcc, 1, v{vT1}
    v_mov_b32 v{vT1}, 0x0c0c0100
    v_mov_b32 v{vT2}, 0x01000c0c
    v_cndmask_b32 v{selLo}, v{vT1}, v{vT2}, vcc
    v_mov_b32 v{vT1}, 0x0c0c0302
    v_mov_b32 v{vT2}, 0x03020c0c
    v_cndmask_b32 v{selHi}, v{vT1}, v{vT2}, vcc
    v_lshlrev_b32 v{vSa}, 2, v{vJ}
    v_add_u32 v{vSa}, {ST}, v{vSa}
    v_lshlrev_b32 v{vSc}, 4, v{vQ}
    v_add_u32 v{vSc}, {ST}, v{vSc}
    s_lshl_b32 s{t1}, s{sRB}, 6
    s_lshl_b32 s{t2}, s{sW1}, 6
    s_add_u32 s{t1}, s{t1}, s{t2}
    s_sub_u32 s{t1}, s{t1}, 16
    v_add_u32 v{vSl}, s{t1}, v{vL}
    v_max_i32 v{vSl}, 0, v{vSl}
    v_min_i32 v{vSl}, 2047, v{vSl}
    v_and_b32 v{vT0}, 1, v{vSl}
    v_lshrrev_b32 v{vSl}, 1, v{vSl}
    v_lshlrev_b32 v{vSl}, 7, v{vSl}
    v_lshl_add_u32 v{vSl}, v{vT0}, 3, v{vSl}
    v_and_b32 v{vT0}, 1, v{vQ}
    v_lshlrev_b32 v{vT0}, 14, v{vT0}
    v_lshrrev_b32 v{vT1}, 1, v{vQ}
    v_lshl_add_u32 v{vT0}, v{vT1}, 8, v{vT0}
    v_lshl_add_u32 v{vOst}, v{vJ}, 4, v{vT0}
    v_min_u32 v{vT0}, 11, v{vJ}
    v_lshrrev_b32 v{vT1}, 2, v{vT0}
    v_and_b32 v{vT0}, 3, v{vT0}
    v_lshlrev_b32 v{vT0}, 2, v{vT0}
    v_lshl_add_u32 v{vT0}, v{vT1}, 7, v{vT0}
    s_lshl_b32 s{t1}, s{sRB}, 8
    s_sub_u32 s{t1}, s{t1}, 128
    v_add_u32 v{vP0}, s{t1}, v{vT0}
    v_max_i32 v{vP0}, 0, v{vP0}
    """)
    stamp(A, "setup done")
    A(f"s_mov_b32 s{sA}, s96\ns_mov_b32 s{sC}, s97")
    emit(A, d1[opt("d1a", 3):])

    def early_compute():
        A(f"v_mov_b32 v{S1}, 0\nv_mov_b32 v{S2}, 0")
        for i in range(8):
            A(f"v_dot2_f32_bf16 v{S1}, v{XR+i}, v{ones}, v{S1}")
            A(f"v_dot2_f32_bf16 v{S2}, v{XR+i}, v{XR+i}, v{S2}")
        for mode in ("quad_perm:[1,0,3,2]", "quad_perm:[2,3,0,1]", "row_half_mirror", "row_mirror"):
            A(f"v_add_f32_dpp v{S1}, v{S1}, v{S1} {mode} row_mask:0xf bank_mask:0xf")
            A(f"v_add_f32_dpp v{S2}, v{S2}, v{S2} {mode} row_mask:0xf bank_mask:0xf")
        A(f"""
        v_mov_b32 v190, v{S1}
        v_mov_b32 v191, v{S2}
        v_lshrrev_b32 v{vT0}, 5, v{vL}
        v_lshlrev_b32 v{vT0}, 3, v{vT0}
        v_permlane16_swap_b32 v{S1}, v190
        v_permlane16_swap_b32 v{S2}, v191
        v_add_f32 v{S1}, v{S1}, v190
        v_add_f32 v{S2}, v{S2}, v191
        v_mul_f32 v{S1}, 0x3b000000, v{S1}
        v_mul_f32 v{S2}, 0x3b000000, v{S2}
        v_fma_f32 v{S2}, -v{S1}, v{S1}, v{S2}
        v_max_f32 v{S2}, 0, v{S2}
        v_add_f32 v{S2}, {f32hex(1e-5)}, v{S2}
        v_rsq_f32 v{S2}, v{S2}
        s_lshl_b32 s{sA}, s{sRB}, 12
        s_lshl_b32 s{sB}, s{sCB}, 9
        s_add_u32 s{sA}, s{sA}, s{sB}
        s_lshl_b32 s{sB}, s{sW}, 7
        s_add_u32 s{sA}, s{sA}, s{sB}
        s_add_u32 s{sA}, s{sA}, {WS_S1}
        s_mov_b32 exec_lo, 1
        s_mov_b32 exec_hi, 1
        """)
        A(f"buffer_store_dwordx2 v[{S1}:{S2}], v{vT0}, {WSS}, s{sA} offen sc1", tag="est")
        A("s_mov_b64 exec, -1")

    def reads(i, sidx):
        slot = i % 3
        it = []
        if slot < 2:
            va, wt, so = (vA0, vA1)[sidx], vWt, slot * SLOT
        else:
            va, wt, so = (vA0b, vA1b)[sidx], vWtb, 0
        tag = f"r{i}_{sidx}"
        for sec in range(3):
            for hf in range(2):
                it.append((f"ds_read_b64_tr_b16 v[{Wf[sidx]+sec*4+hf*2}:{Wf[sidx]+sec*4+hf*2+1}], v{wt} offset:{so + sidx*12288 + sec*1024 + hf*512}", tag))
        for t in range(5):
            it.append((f"ds_read_b128 v[{Af[sidx]+4*t}:{Af[sidx]+4*t+3}], v{va} offset:{so + t*2048}", tag))
        return it

    def mfmas(i, sidx):
        first = (i == 0 and sidx == 0)
        it = []
        W = lambda sec: v(Wf[sidx] + 4 * sec, 4)
        X = lambda t: v(Af[sidx] + 4 * t, 4)
        def m(acc, a, b):
            c = "0" if first else v(acc, 4)
            it.append((f"{MF} {v(acc,4)}, {a}, {b}, {c}", None))
        for t in range(5):
            m(accQ + 4 * t, W(0), X(t))
            m(accK + 4 * t, W(1), X(t))
            m(accV + 4 * t, X(t), W(2))
        return it


    def nonce_test(lbl):
        A(f"""
        v_readfirstlane_b32 s{sBA}, v{vF}
        s_cmp_lg_u32 s{sBA}, 0
        s_cbranch_scc1 {lbl}
        """)
    def nonce_reprobe():
        A(f"v_mov_b32 v{vT3}, 0")
        A(f"buffer_load_dword v{vF}, v{vT3}, s[{SDBG}:{SDBG+3}], 0 offen sc1")
    def nonce_pub():
        A(f"v_mov_b32 v{vT1}, {NONW}\nds_write_b32 v{vT1}, v{vF}")
    def p0(tag):
        A(f"buffer_load_dword v{vF}, v{vP0}, {WSS}, 0 offen offset:{WS_F1} sc1", tag=tag)

    A.wait_vm("e")
    early_compute()
    SIG = opt("sig0", 2)
    POLL = opt("poll", 5)
    b2 = []
    for st in range(3):
        b2 += k_dma(SWO, sS2, st, sL2, st * 4096, f"b2_{st}")
    for i in range(8):
        A.wait_vm(f"c{i}")
        if i == 0:
            spin(A, "~non", nonce_test, nonce_reprobe, 0x20000, True, nonce_pub, 2)
        if i == SIG:
            A.wait_vm("est")
        if i == POLL + 1:
            spin(A, "p0", flag_test(A, 1, "-1"), lambda: p0(None))
        A("s_waitcnt lgkmcnt(0)\ns_barrier")
        stamp(A, f"p1 bar{i}")
        dm = dma(i + 2) if i + 2 <= 7 else []
        extra = []
        if i == SIG:
            wg_signal(A, WS_F1, sG, sJ, 1)
        if i == POLL:
            p0("p0")
        if i == POLL + 1:
            extra += [(f"""
            s_lshl_b32 s{sBA}, s{sWH}, 2
            s_add_u32 s{sBA}, s{sBA}, {WS_S1}
            s_lshl_b32 m0, s{sW}, 8
            s_add_u32 m0, m0, {ST}
            buffer_load_dword v{vSl}, {WSS}, s{sBA} offen lds""", "st1")]
        if i == opt("touch_i", 1) and opt("touch", 1):
            extra += [(f"""
            s_cmp_eq_u32 s{sW}, 0
            s_cselect_b32 s76, s{SWO}, s{SWD}
            s_cselect_b32 s77, s{SWO+1}, s{SWD+1}
            s_cselect_b32 s78, s{SWO+2}, s{SWD+2}
            s_mov_b32 s79, 0x20000
            s_cmp_lt_u32 s{sW}, 2
            s_cselect_b32 s76, s76, s{SB3}
            s_cselect_b32 s77, s77, s{SB3+1}
            s_cselect_b32 s78, s78, s{SB3+2}
            s_mul_i32 s{sBA}, s2, {43*128}
            v_lshlrev_b32 v{vT3}, 7, v{vL}
            s_mov_b32 exec_hi, 0x7ff
            buffer_load_dword v{vT2}, v{vT3}, s[76:79], s{sBA} offen
            s_mov_b64 exec, -1""", None)]
        if i == opt("t3_i", 3) and opt("s3pf", 1):
            extra += [(f"""
            s_lshl_b32 s{sBA}, s{sIDX}, 2
            s_add_u32 s{sBA}, s{sBA}, s{sW}
            s_mul_i32 s{sCNT}, s{sBA}, {11*1024}
            s_lshl_b32 s{sBA}, s{sBA}, 12
            v_lshlrev_b32 v{vT3}, 10, v{vL}
            s_mov_b64 exec, 0xf
            buffer_load_dword v{vT2}, v{vT3}, s[{SWO}:{SWO+3}], s{sBA} offen offset:384
            s_mov_b64 exec, 0x7ff
            buffer_load_dword v{vT2}, v{vT3}, s[{SWD}:{SWD+3}], s{sCNT} offen offset:384
            s_mov_b64 exec, -1""", None)]
        if i >= 6:
            extra += b2[:6] if i == 6 else b2[6:]
        if i == 0:
            A(f"v_mov_b32 v{vT1}, {NONW}")
            A(f"ds_read_b32 v{vT2}, v{vT1}", tag="nonrd")
            emit(A, reads(i, 0))
            A.wait_lg("nonrd")
            A(f"v_readfirstlane_b32 s{sNON}, v{vT2}")
        else:
            emit(A, weave(mfmas(i - 1, 1), [(reads(i, 0), 0, 2), (dm[:5], 6, lambda k: k % 2)]))
            dm = dm[5:]
        A.wait_lg(f"r{i}_0")
        rest = dm + extra
        emit(A, weave(mfmas(i, 0), [(reads(i, 1), 0, 2), (rest, 5 if i else 1, 1)]))
    A.wait_lg("r7_1")
    emit(A, mfmas(7, 1))
    stamp(A, "p1 loop done")
    A.wait_vm("st1")
    A("s_barrier")
    KS_[0] = KS(A, 2)
    KS_[0].setup()
    KS_[0].res_loads()
    emit(A, k_dma(SWO, sS2, 3, sW12, 65536, "b2_3"))
    q1 = w3i(range(6))
    L1 = 108
    L2M = 120
    L2R = 140
    csQ, csK, csV = 160, 164, 168
    for t in range(5):
        A(f"ds_read2_b32 v[{L1+2*t}:{L1+2*t+1}], v{vSa} offset0:{16*t} offset1:{128+16*t}", tag="st")
    A(f"v_lshlrev_b32 v{vT2}, 2, v{vJ}")
    A(f"ds_bpermute_b32 v{csV}, v{vT2}, v{accV}", tag="st")
    for t in range(5):
        A(f"ds_read_b128 v[{L2M+4*t}:{L2M+4*t+3}], v{vSc} offset:{64*t}", tag="st2")
        A(f"ds_read_b128 v[{L2R+4*t}:{L2R+4*t+3}], v{vSc} offset:{512+64*t}", tag="st2")
    for r_ in range(4):
        A(f"v_mov_b32_dpp v{csQ+r_}, v{accQ+r_} row_newbcast:0 row_mask:0xf bank_mask:0xf")
        A(f"v_mov_b32_dpp v{csK+r_}, v{accK+r_} row_newbcast:0 row_mask:0xf bank_mask:0xf")
    A(f"""
    s_lshl_b32 s{sC}, s{sRB}, 16
    s_lshl_b32 s{sB}, s{sCB}, 11
    s_add_u32 s{sC}, s{sC}, s{sB}
    s_lshl_b32 s{sB}, s{sW}, 9
    s_add_u32 s{sC}, s{sC}, s{sB}
    s_add_u32 s{sC}, s{sC}, {WS_O}
    """)
    A.wait_lg("st")
    Kp, Qp, Vp = 210, 220, 230

    def fold_kq(acc, cs, P, scale, t):
        a = acc + 4 * t
        for h in range(2):
            A(f"v_pk_fma_f32 v[{a+2*h}:{a+2*h+1}], v[{cs+2*h}:{cs+2*h+1}], v[{L1+2*t}:{L1+2*t+1}], v[{a+2*h}:{a+2*h+1}] op_sel:[0,0,0] op_sel_hi:[1,0,1] neg_lo:[0,1,0] neg_hi:[0,1,0]")
        if scale:
            for h in range(2):
                A(f"v_pk_mul_f32 v[{a+2*h}:{a+2*h+1}], v[{a+2*h}:{a+2*h+1}], v[{L1+2*t}:{L1+2*t+1}] op_sel:[0,1] op_sel_hi:[1,1]")
        for h in range(2):
            A(f"v_cvt_pk_bf16_f32 v{P+2*t+h}, v{a+2*h}, v{a+2*h+1}")

    def fold_v(t):
        a = accV + 4 * t
        for h in range(2):
            A(f"v_pk_fma_f32 v[{a+2*h}:{a+2*h+1}], v[{L2M+4*t+2*h}:{L2M+4*t+2*h+1}], v[{csV}:{csV+1}], v[{a+2*h}:{a+2*h+1}] op_sel:[0,0,0] op_sel_hi:[1,0,1] neg_lo:[1,0,0] neg_hi:[1,0,0]")
        for h in range(2):
            A(f"v_pk_mul_f32 v[{a+2*h}:{a+2*h+1}], v[{a+2*h}:{a+2*h+1}], v[{L2R+4*t+2*h}:{L2R+4*t+2*h+1}]")
        for h in range(2):
            A(f"v_cvt_pk_bf16_f32 v{Vp+2*t+h}, v{a+2*h}, v{a+2*h+1}")

    def attn(step):
        ts = (1, 2) if step == 0 else (3, 4)
        k = lambda t: t - ts[0]
        Sp = lambda t: 172 + 8 * k(t)
        Sc = lambda t: 176 + 8 * k(t)
        X = lambda t, i: 240 + 4 * k(t) + i
        MX = lambda t: 188 + k(t)
        MY = lambda t: 190 + k(t)
        CQ = lambda t: 192 + k(t)
        Pf = lambda t: 172 + 4 * k(t)
        Oa = lambda t: 180 + 4 * k(t)
        Su = lambda t: 240 + 4 * k(t)
        OP = 248 + 4 * step
        for t in (((0,) if step == 0 else ()) + ts):
            fold_kq(accK, csK, Kp, True, t)
        for t in ts:
            fold_kq(accQ, csQ, Qp, False, t)
        for t in ts:
            A(f"{MF16} {v(Sp(t),4)}, {v(Kp+2*(t-1),2)}, {v(Qp+2*t,2)}, {v(biasF if t==1 else biasP,4)}")
            A(f"{MF16} {v(Sc(t),4)}, {v(Kp+2*t,2)}, {v(Qp+2*t,2)}, {v(biasC,4)}")
        if step == 0:
            A.wait_lg("st2")
        for t in (((0,) if step == 0 else ()) + ts):
            fold_v(t)
        for t in ts:
            A(f"v_mul_f32 v{CQ(t)}, {f32hex(0.25*LOG2E)}, v{L1+2*t+1}")
        for t in ts:
            A(f"""
            v_max_f32 v{X(t,0)}, v{Sp(t)}, v{Sp(t)+1}
            v_max_f32 v{X(t,1)}, v{Sp(t)+2}, v{Sp(t)+3}
            v_max_f32 v{X(t,2)}, v{Sc(t)}, v{Sc(t)+1}
            v_max_f32 v{X(t,3)}, v{Sc(t)+2}, v{Sc(t)+3}
            v_max3_f32 v{MX(t)}, v{X(t,0)}, v{X(t,1)}, v{X(t,2)}
            v_max_f32 v{MX(t)}, v{MX(t)}, v{X(t,3)}
            v_mov_b32 v{MY(t)}, v{MX(t)}
            """)
        for sw in ("v_permlane16_swap_b32", "v_permlane32_swap_b32"):
            for t in ts:
                A(f"{sw} v{MX(t)}, v{MY(t)}")
            for t in ts:
                A(f"v_max_f32 v{MX(t)}, v{MX(t)}, v{MY(t)}")
            if sw.startswith("v_permlane16"):
                for t in ts:
                    A(f"v_mov_b32 v{MY(t)}, v{MX(t)}")
        for t in ts:
            A(f"v_mul_f32 v{MX(t)}, v{MX(t)}, v{CQ(t)}")
        for t in ts:
            for i in range(4):
                A(f"v_fma_f32 v{X(t,i)}, v{X(t,i)}, v{CQ(t)}, -v{MX(t)}")
        for t in ts:
            for i in range(4):
                A(f"v_exp_f32 v{X(t,i)}, v{X(t,i)}")
        if step == 1:
            ev, A.every = A.every, None
            A.wait_vm("ost0")
            A("s_barrier")
            wg_signal(A, WS_F1, sG, sJ, 2)
            A.every = ev
        for t in ts:
            A(f"""
            v_cvt_pk_bf16_f32 v{MX(t)}, v{X(t,0)}, v{X(t,1)}
            v_cvt_pk_bf16_f32 v{MY(t)}, v{X(t,2)}, v{X(t,3)}
            """)
        for t in ts:
            A(f"""
            v_perm_b32 v{Pf(t)}, v{MX(t)}, v{MX(t)}, v{selLo}
            v_perm_b32 v{Pf(t)+1}, v{MX(t)}, v{MX(t)}, v{selHi}
            v_perm_b32 v{Pf(t)+2}, v{MY(t)}, v{MY(t)}, v{selLo}
            v_perm_b32 v{Pf(t)+3}, v{MY(t)}, v{MY(t)}, v{selHi}
            """)
        for t in ts:
            A(f"{MF} {v(Su(t),4)}, {v(ones,4)}, {v(Pf(t),4)}, 0")
            A(f"{MF} {v(Oa(t),4)}, {v(Vp+2*(t-1),4)}, {v(Pf(t),4)}, 0")
        for t in ts:
            A(f"v_rcp_f32 v{Su(t)}, v{Su(t)}")
        for t in ts:
            o = Oa(t)
            A(f"""
            v_pk_mul_f32 v[{o}:{o+1}], v[{o}:{o+1}], v[{Su(t)}:{Su(t)+1}] op_sel:[0,0] op_sel_hi:[1,0]
            v_pk_mul_f32 v[{o+2}:{o+3}], v[{o+2}:{o+3}], v[{Su(t)}:{Su(t)+1}] op_sel:[0,0] op_sel_hi:[1,0]
            v_cvt_pk_bf16_f32 v{OP+2*k(t)}, v{o}, v{o+1}
            v_cvt_pk_bf16_f32 v{OP+2*k(t)+1}, v{o+2}, v{o+3}
            """)
        A(f"""
        v_permlane16_swap_b32 v{OP}, v{OP+2}
        v_permlane16_swap_b32 v{OP+1}, v{OP+3}
        s_add_u32 s{sB}, s{sC}, {step*32768}
        """)
        A(f"buffer_store_dwordx4 v[{OP}:{OP+3}], v{vOst}, {WSS}, s{sB} offen sc1", tag=f"ost{step}")


    A.every = (opt("r1per", 40), lambda: emit(A, [q1.pop(0)] if q1 else []))
    attn(0)
    stamp(A, "p1 step A stored")
    attn(1)
    A.every = None
    emit(A, q1)
    stamp(A, "p1 step B stored")


def p2(A):
    K = KS_[0]
    TA = 196
    A(f"""
    v_bfe_u32 v{vT2}, v{vL}, 1, 1
    v_lshlrev_b32 v{vT2}, 4, v{vT2}
    v_and_b32 v{vT3}, 1, v{vL}
    v_lshl_add_u32 v{vT2}, v{vT3}, 3, v{vT2}
    s_lshl_b32 s{t1}, s{sW1}, 6
    v_xor_b32 v{vT2}, s{t1}, v{vT2}
    v_bfe_u32 v{vT0}, v{vL}, 2, 2
    v_and_b32 v{vT1}, 2, v{vT0}
    v_lshlrev_b32 v{vT1}, 4, v{vT1}
    v_xor_b32 v{vT1}, v{vT1}, v{vT2}
    v_lshl_add_u32 v{vT1}, v{vT0}, 7, v{vT1}
    v_lshl_add_u32 v{vT1}, v{vQ}, 10, v{vT1}
    v_add_u32 v{TA}, s{sL2}, v{vT1}
    v_xor_b32 v{TA+1}, 32, v{TA}
    v_xor_b32 v{TA+2}, 64, v{TA}
    v_xor_b32 v{TA+3}, 96, v{TA}
    v_lshrrev_b32 v{vT0}, 2, v{vL}
    v_mul_u32_u24 v{vT0}, 192, v{vT0}
    v_bfe_u32 v{vT1}, v{vL}, 1, 1
    v_mul_u32_u24 v{vT2}, 3072, v{vT1}
    v_add_u32 v{vT0}, v{vT0}, v{vT2}
    v_and_b32 v{vT2}, 1, v{vQ}
    v_lshl_add_u32 v{vT1}, v{vT1}, 1, v{vT2}
    v_and_b32 v{vT2}, 1, v{vL}
    s_lshl_b32 s{t3}, s{sWH}, 2
    s_add_u32 s{t3}, s{t3}, s{sW1}
    v_xor_b32 v{vT3}, s{t3}, v{vT1}
    v_lshl_add_u32 v{vT3}, v{vT3}, 4, v{vT0}
    v_lshl_add_u32 v{VTR3[0]}, v{vT2}, 3, v{vT3}
    s_add_u32 s{t3}, s{t3}, 2
    v_xor_b32 v{vT3}, s{t3}, v{vT1}
    v_lshl_add_u32 v{vT3}, v{vT3}, 4, v{vT0}
    v_lshl_add_u32 v{VTR3[1]}, v{vT2}, 3, v{vT3}
    s_add_u32 s{t3}, s{sWH}, 8
    v_lshl_add_u32 v{vT3}, v{vT2}, 1, s{t3}
    v_xor_b32 v{vT3}, v{vT3}, v{vT1}
    v_lshl_add_u32 v{vT3}, v{vT3}, 4, v{vT0}
    s_lshl_b32 s{t2}, s{sW1}, 3
    v_add_u32 v{VTR3[2]}, s{t2}, v{vT3}
    """)
    A.wait_vm("b2_3")
    for st in range(4):
        if st == 3:
            A(f"s_sub_u32 s{t1}, s{sL2}, s{sW12}\ns_sub_u32 s{t1}, s{t1}, 65536")
            for ct in range(4):
                A(f"v_subrev_u32 v{TA+ct}, s{t1}, v{TA+ct}")
        off = st * 4096 if st < 3 else 0
        for ct in range(4):
            A(f"ds_read_b64_tr_b16 {r(B2reg(st,ct),0,2)}, v{TA+ct} offset:{off}")
            A(f"ds_read_b64_tr_b16 {r(B2reg(st,ct),2,2)}, v{TA+(ct^2)} offset:{off+512}")
    w3w(A, [0, 1, 2])
    wg_poll(A, WS_F1, sG, 2, True)
    stamp(A, "p2 flagsA ok")
    emit(A, K.a_loads(0))
    w3r(A, [0, 1, 2])
    emit(A, w3i([6, 7]))
    A.wait_vm("ost1")
    w3w(A, [3, 4, 5])
    A("s_waitcnt lgkmcnt(0)\ns_barrier")
    wg_signal(A, WS_F1, sG, sJ, 3)
    w3r(A, [3, 4, 5])
    K.mfmas(0, [x for it in w3i([8, 9]) for x in (it, lambda: None, lambda: None)])
    K.reduce(0)
    stamp(A, "p2 h0 stored")
    emit(A, w3i([10, 11]))
    w3w(A, [6, 7, 8])
    wg_poll(A, WS_F1, sG, 3, True)
    stamp(A, "p2 flagsB ok")
    emit(A, K.a_loads(1))
    w3r(A, [6, 7, 8])
    A.wait_vm("hst0")
    w3w(A, [9, 10, 11])
    A("s_waitcnt lgkmcnt(0)\ns_barrier")
    wg_signal(A, WS_F2, sG, sJ, 1)
    emit(A, w3i([12, 13]))
    w3r(A, [9, 10, 11])
    stamp(A, "p2 sig H0")


def p3(A):
    vH4, vH2, vAr, vS2 = 12, 13, 14, 26
    cs = 192
    accs = [32, 80]
    Af = 128
    stts = 160
    wg_poll(A, WS_F2, sG3, 1)
    stamp(A, "p3 flags ok")

    def a_dma(p):
        it = []
        for idx in range(4):
            c, ti = 2 * p + (idx >> 1), idx & 1
            pre = f"""
            s_lshl_b32 s{sC}, s{sG3}, 17
            s_add_u32 s{sC}, s{sC}, s{sW12}
            s_add_u32 s{sC}, s{sC}, {WS_H + (c+4*ti)*16384}
            s_add_u32 m0, s{sW12}, {p*65536 + idx*16384}
            """
            for n in range(4):
                it.append(((pre if n == 0 else "") + f"""
                buffer_load_dwordx4 v{vL16}, {WSS}, s{sC} offen offset:{n*1024} lds""", f"a{p}"))
        return it

    RAW = [stts, accs[0]]
    RES = lambda p, idx: stts + 8 * idx + 4 * p

    def st_loads(p):
        return [(f"""
        s_lshl_b32 s{sA}, s{sG3}, 14
        s_lshl_b32 s{sB}, s{sWH}, 11
        s_add_u32 s{sA}, s{sA}, s{sB}
        s_lshl_b32 s{sB}, s{sW1}, 13
        s_add_u32 s{sA}, s{sA}, s{sB}
        s_add_u32 s{sA}, s{sA}, {WS_ST + 2*p*2048}
        s_lshl_b32 s{sB}, s{sW}, 11
        s_add_u32 m0, s{sB}, {STB + p*8192}
        buffer_load_dwordx4 v{vL16}, {WSS}, s{sA} offen lds
        buffer_load_dwordx4 v{vL16}, {WSS}, s{sA} offen offset:1024 lds""", f"s{p}")]

    def mk(unpk):
        it = []
        def add(t):
            if unpk and t.startswith("v_pk_"):
                for x in unpack_pk(t):
                    it.append((x, None))
            else:
                it.append((t, None))
        return it, add

    def stats(p):
        it, add = mk(1)
        B = [RAW[p] + 8 * idx for idx in range(4)]
        for idx, b in enumerate(B):
            if idx:
                add(f"v_add_u32 v{vS2}, 2048, v{vS2}")
            it.append((f"ds_read2_b64 v[{b}:{b+3}], v{vS2} offset0:0 offset1:16", f"sr{p}"))
            it.append((f"ds_read2_b64 v[{b+4}:{b+7}], v{vS2} offset0:32 offset1:48", f"sr{p}"))
        add(f"v_add_u32 v{vS2}, 2048, v{vS2}")
        it += [lambda: None] * 6
        it.append(lambda: A.wait_lg(f"sr{p}"))
        for b in B:
            add(f"v_pk_add_f32 v[{b}:{b+1}], v[{b}:{b+1}], v[{b+2}:{b+3}]")
            add(f"v_pk_add_f32 v[{b+4}:{b+5}], v[{b+4}:{b+5}], v[{b+6}:{b+7}]")
        for b in B:
            add(f"v_pk_add_f32 v[{b}:{b+1}], v[{b}:{b+1}], v[{b+4}:{b+5}]")
        for sw in ("v_permlane16_swap_b32", "v_permlane32_swap_b32"):
            for b in B:
                add(f"v_mov_b32 v{b+2}, v{b}")
                add(f"v_mov_b32 v{b+3}, v{b+1}")
            for b in B:
                add(f"{sw} v{b}, v{b+2}")
                add(f"{sw} v{b+1}, v{b+3}")
            for b in B:
                add(f"v_pk_add_f32 v[{b}:{b+1}], v[{b}:{b+1}], v[{b+2}:{b+3}]")
        for op in ("v_mul_f32 v{m}, 0x3b000000, v{b}", "v_mul_f32 v{b1}, 0x3b000000, v{b1}", "v_fma_f32 v{b1}, -v{m}, v{m}, v{b1}",
                   "v_max_f32 v{b1}, 0, v{b1}", "v_add_f32 v{b1}, " + f32hex(1e-5) + ", v{b1}", "v_rcp_f32 v{m1}, v{b1}"):
            for idx, b in enumerate(B):
                add(op.format(b=b, b1=b + 1, m=RES(p, idx), m1=RES(p, idx) + 1))
        it.append((f"""
        v_cmp_gt_u32 vcc, 32, v{vL}
        v_cndmask_b32 v{RES(p,0)+2}, v{RES(p,1)+1}, v{RES(p,0)+1}, vcc
        v_cndmask_b32 v{RES(p,2)+2}, v{RES(p,3)+1}, v{RES(p,2)+1}, vcc""", None))
        return it

    def epilogue(p):
        it, add = mk(0)
        Q = accs[p] + 16
        base = f"""
        s_mul_i32 s{sA}, s{sG3}, {8*HHK*1024}
        s_mul_i32 s{sB}, s{sJ3}, 3072
        s_add_u32 s{sA}, s{sA}, s{sB}
        """
        for cc in range(2):
            acc = accs[p] + 24 * cc
            rs = RES(p, 2 * cc) + 2
            for u in range(3):
                for ti in range(2):
                    a = acc + (ti * 3 + u) * 4
                    b = RES(p, 2 * cc + ti)
                    for h in range(2):
                        add(f"v_pk_fma_f32 v[{a+2*h}:{a+2*h+1}], v[{cs+4*u+2*h}:{cs+4*u+2*h+1}], v[{b}:{b+1}], v[{a+2*h}:{a+2*h+1}] op_sel:[0,0,0] op_sel_hi:[1,0,1] neg_lo:[0,1,0] neg_hi:[0,1,0]")
            for u in range(3):
                for r_ in range(4):
                    add(f"v_permlane32_swap_b32 v{acc+u*4+r_}, v{acc+(3+u)*4+r_}")
            PK = acc + 12
            for u in range(3):
                g, up = acc + u * 4, acc + (3 + u) * 4
                for r_ in range(4):
                    add(f"v_max_f32 v{g+r_}, 0, v{g+r_}")
                for h in range(2):
                    add(f"v_pk_mul_f32 v[{g+2*h}:{g+2*h+1}], v[{g+2*h}:{g+2*h+1}], v[{up+2*h}:{up+2*h+1}]")
                for h in range(2):
                    add(f"v_pk_mul_f32 v[{g+2*h}:{g+2*h+1}], v[{g+2*h}:{g+2*h+1}], v[{rs}:{rs+1}] op_sel:[0,0] op_sel_hi:[1,0]")
                for h in range(2):
                    add(f"v_cvt_pk_bf16_f32 v{(PK+2*u if u < 2 else Q+2*cc)+h}, v{g+2*h}, v{g+2*h+1}")
                if u == 1:
                    it.append((base + f"""
                    s_add_u32 s{sA}, s{sA}, {WS_HH + (2*p+cc)*HHK*1024}
                    buffer_store_dwordx4 v[{PK}:{PK+3}], v{vH4}, {WSS}, s{sA} offen sc1""", f"hh{p}"))
        add(f"v_permlane16_swap_b32 v{Q}, v{Q+2}")
        add(f"v_permlane16_swap_b32 v{Q+1}, v{Q+3}")
        it.append((base + f"""
        s_add_u32 s{sA}, s{sA}, {WS_HH + (2*p)*HHK*1024}
        buffer_store_dwordx4 v[{Q}:{Q+3}], v{vH2}, {WSS}, s{sA} offen sc1""", f"hh{p}"))
        return it


    emit(A, a_dma(0) + st_loads(0))
    K = KS_[0]
    K.mfmas(1, [x for it in w3i([14, 15]) for x in (it, lambda: None, lambda: None)])
    K.reduce(1)
    stamp(A, "p2 h1 stored")
    for ks in range(12):
        for u in range(3):
            d = v(cs + 4 * u, 4)
            A(f"{MF} {d}, {r(B3reg(ks,u),0,4)}, {v(ones,4)}, {'0' if ks==0 else d}")
    A(f"""
    v_lshrrev_b32 v{vT0}, 1, v{vQ}
    v_mul_u32_u24 v{vT0}, {4*HHK*1024}, v{vT0}
    v_lshl_add_u32 v{vT0}, v{vJ}, 4, v{vT0}
    v_and_b32 v{vT1}, 1, v{vQ}
    s_lshl_b32 s{sA}, s{sWH}, 10
    s_lshl_b32 s{sB}, s{sW1}, 9
    s_add_u32 s{sA}, s{sA}, s{sB}
    v_lshl_add_u32 v{vH4}, v{vT1}, 8, v{vT0}
    v_add_u32 v{vH4}, s{sA}, v{vH4}
    s_lshl_b32 s{sA}, s{sW}, 8
    s_add_u32 s{sA}, s{sA}, 2048
    v_mul_u32_u24 v{vT1}, {HHK*1024}, v{vT1}
    v_add_u32 v{vH2}, v{vT1}, v{vT0}
    v_add_u32 v{vH2}, s{sA}, v{vH2}
    v_lshlrev_b32 v{vS2}, 3, v{vJ}
    v_lshl_add_u32 v{vS2}, v{vQ}, 9, v{vS2}
    v_add_u32 v{vS2}, {STB}, v{vS2}
    """)

    TB = 204
    def b4addr():
      A(f"""
    v_bfe_u32 v{vT2}, v{vL}, 1, 1
    v_lshlrev_b32 v{vT2}, 4, v{vT2}
    v_and_b32 v{vT3}, 1, v{vL}
    v_lshl_add_u32 v{vT2}, v{vT3}, 3, v{vT2}
    s_lshl_b32 s{t1}, s{sW1}, 6
    v_xor_b32 v{vT2}, s{t1}, v{vT2}
    v_bfe_u32 v{vT0}, v{vL}, 2, 3
    v_and_b32 v{vT1}, 6, v{vT0}
    v_lshlrev_b32 v{vT1}, 4, v{vT1}
    v_xor_b32 v{vT1}, v{vT1}, v{vT2}
    v_lshl_add_u32 v{vT1}, v{vT0}, 7, v{vT1}
    v_lshrrev_b32 v{vT0}, 5, v{vL}
    v_lshl_add_u32 v{vT1}, v{vT0}, 10, v{vT1}
    s_add_u32 s{t1}, s{sW12}, 65536
    v_add_u32 v{TB}, s{t1}, v{vT1}
    v_xor_b32 v{TB+1}, 32, v{TB}
    v_xor_b32 v{TB+2}, 64, v{TB}
    v_xor_b32 v{TB+3}, 96, v{TB}
    """)

    def b4_dma(sts, region):
        it = []
        for n, st in enumerate(sts):
            it += k_dma(SWD, sS4, st, sW12, region + n * 16384, f"b4_{st}", st == 0)
        return it

    def b4_tr(sts):
        it = []
        for n, st in enumerate(sts):
            it.append(lambda st=st: A.wait_vm(f"b4_{st}"))
            for ct in range(4):
                for hf in range(2):
                    it.append((f"ds_read_b64_tr_b16 {r(B4reg(st,ct),hf*2,2)}, v{TB+ct} offset:{n*16384 + hf*2048}", "b4t"))
        return it

    for p in range(2):
        acc = accs[p]
        A.wait_vm([f"a{p}", f"s{p}"])
        A("s_waitcnt lgkmcnt(0)\ns_barrier")
        stamp(A, f"p3 pass{p} start")
        fillv = stats(p)
        if p == 0:
            fillm = []
        else:
            for ct in range(4):
                A(f"v_subrev_u32 v{TB+ct}, 65536, v{TB+ct}")
            fillm = b4_dma([4, 5, 6, 7], 0)
            KS_[0] = KS(A, 4)
            l0 = KS_[0].a_loads(0)
        A(f"v_add_u32 v{vAr}, {p*65536}, v{vL16}")
        rd = lambda ks: [(f"ds_read_b128 {v(Af+((ks%2)*4+idx)*4,4)}, v{vAr} offset:{idx*16384 + ks*1024}", f"f{ks}") for idx in range(4)]
        emit(A, rd(0))
        n = 0
        for ks in range(16):
            nxt = rd(ks + 1) if ks + 1 < 16 else []
            if p == 0 and ks == opt("sig4ks", 1):
                A.wait_vm("hst1")
                w3w(A, [12, 13, 14, 15])
                A("s_barrier")
                wg_signal(A, WS_F2, sG, sJ, 2)
                w3r(A, [12, 13, 14, 15])
            if p == 0 and ks == opt("sig4ks", 1) + 2:
                A("s_waitcnt lgkmcnt(0)\ns_barrier")
                b4addr()
                fillm += b4_dma([0, 1, 2, 3], 65536)
            if p == 0 and ks == opt("pr4ks", 6):
                vprobe(A, WS_F2, sG3, "pr4")
            if p == 0 and ks == opt("tr0ks", 9):
                fillv += b4_tr([0, 1, 2, 3])
            if p == 0 and ks == opt("ck4ks", 12):
                emit(A, fillv)
                fillv = []
                A.wait_lg("b4t")
                vcheck(A, WS_F2, sG3, 2, "pr4")
                fillm += st_loads(1) + a_dma(1)
            if p == 1 and ks == opt("sig5ks", 1):
                A.wait_vm("hh0")
                A("s_barrier")
                wg_signal(A, WS_F3, sG3, sJ3, 1)
            if p == 1 and ks == opt("tr1ks", 7):
                fillv += b4_tr([4, 5, 6, 7])
            if p == 1 and ks == opt("pr5ks", 8):
                vprobe(A, WS_F3, sG, "pr5")
            if p == 1 and ks == opt("dm2ks", 10):
                emit(A, fillv)
                fillv = []
                A.wait_lg("b4t")
                fillm += b4_dma([8, 9, 10], 0)
            if p == 1 and ks == opt("ck5ks", 13):
                vcheck(A, WS_F3, sG, 1, "pr5")
                fillm += l0[:opt("p4n0", 10)]
            A.wait_lg(f"f{ks}")
            for idx in range(4):
                for u in range(3):
                    d = v(acc + (idx * 3 + u) * 4, 4)
                    A(f"{MF} {d}, {r(B3reg(ks,u),0,4)}, {v(Af+((ks%2)*4+idx)*4,4)}, {'0' if ks==0 else d}")
                    n += 1
                    if nxt and u == 0:
                        emit(A, [nxt.pop(0)])
                    elif n > 6:
                        for _ in range(2):
                            if fillv:
                                emit(A, [fillv.pop(0)])
                    if n % opt("p3mper", 3) == 2 and fillm and not (ks < 1):
                        emit(A, [fillm.pop(0)])
        emit(A, fillv + fillm)
        if p == 0:
            for ks in range(12, 16):
                for u in range(3):
                    d = v(cs + 4 * u, 4)
                    A(f"{MF} {d}, {r(B3reg(ks,u),0,4)}, {v(ones,4)}, {d}")
        stamp(A, f"p3 pass{p} mfma done")
        emit(A, epilogue(p))
    stamp(A, "p3 stores issued")
    K = KS_[0]
    emit(A, K.a_loads(0, opt("p4n0", 10)))
    emit(A, b4_tr([8, 9, 10]))
    A("s_waitcnt lgkmcnt(0)")


def p4(A):
    K = KS_[0]
    K.setup()
    A.wait_vm("hh1")
    A("s_barrier")
    wg_signal(A, WS_F3, sG3, sJ3, 2)
    stamp(A, "p3 signalled")
    l1 = K.a_loads(1)
    ck = opt("p4ck", 12)
    fill = [lambda: None] * ck
    fill += [lambda: (wg_poll(A, WS_F3, sG, 2), stamp(A, "p4 flags ok"), emit(A, l1[:10]))]
    rest = l1[10:]
    fill += [(lambda k=k: emit(A, rest[2*k:2*k+2])) for k in range(6)]
    K.mfmas(0, fill)
    K.reduce(0)
    stamp(A, "p4 h0 stored")
    K.mfmas(1)
    K.reduce(1)


def main(path):
    A = Asm()
    label = NAME + "_kernel"
    A.raw("; @launch grid=(256,1,1) block=(256,1,1) lds=163840")
    A.raw('.amdgcn_target "amdgcn-amd-amdhsa--gfx950"\n.text')
    p1(A, label)
    p2(A)
    p3(A)
    p4(A)
    if INSTR:
        A("s_waitcnt vmcnt(0) lgkmcnt(0)")
        stamp(A, "end")
        A(f"""
        s_memrealtime s[100:101]
        s_waitcnt lgkmcnt(0)
        v_writelane_b32 v{vSTAMP}, s100, 63
        s_lshl_b32 s{sA}, s2, 2
        s_add_u32 s{sA}, s{sA}, s{sW}
        s_lshl_b32 s{sA}, s{sA}, 8
        s_add_u32 s{sA}, s{sA}, {WS_PROF}
        v_lshlrev_b32 v{vT0}, 2, v{vL}
        buffer_store_dword v{vSTAMP}, v{vT0}, {WSS}, s{sA} offen
        s_waitcnt vmcnt(0)
        """)
        open(path + ".stamps", "w").write("\n".join(STAMPNAMES))
    if opt("dbgt", 0):
        A(f"""
        s_waitcnt vmcnt(0) lgkmcnt(0)
        s_memrealtime s[100:101]
        s_waitcnt lgkmcnt(0)
        v_mov_b32 v{vT0}, s100
        v_mov_b32 v{vT1}, s59
        v_not_b32 v{vT2}, v{vT1}
        v_mov_b32 v{vT3}, 0
        s_mov_b64 exec, 1
        buffer_atomic_umax v{vT0}, v{vT3}, s[{SDBG}:{SDBG+3}], 0 offen offset:16 sc1
        buffer_atomic_umax v{vT1}, v{vT3}, s[{SDBG}:{SDBG+3}], 0 offen offset:20 sc1
        buffer_atomic_umax v{vT2}, v{vT3}, s[{SDBG}:{SDBG+3}], 0 offen offset:24 sc1
        s_waitcnt vmcnt(0)
        """)
    A.raw("L_done:")
    A("s_endpgm")
    A.raw(f""".section .rodata,"a"
.p2align 6
.amdhsa_kernel {label}
  .amdhsa_next_free_vgpr 512
  .amdhsa_next_free_sgpr 102
  .amdhsa_accum_offset 256
  .amdhsa_group_segment_fixed_size 0
  .amdhsa_kernarg_size 80
  .amdhsa_user_sgpr_count 2
  .amdhsa_user_sgpr_kernarg_segment_ptr 1
  .amdhsa_system_sgpr_workgroup_id_x 1
.end_amdhsa_kernel""")
    open(path, "w").write(A.text())
    print("instructions", A.nins, "nops", A.nnop)


if __name__ == "__main__":
    main(sys.argv[1] if len(sys.argv) > 1 else f"k12.s")
```

```python
import sys, os, struct, re
from asmlib import *

NAME = "sequential_preLN__sliding_local_dilated__glu_gated_reglu__prompt"
INSTR = int(os.environ.get("INSTR", "0"))
OPT = dict(x.split("=") for x in os.environ.get("OPT", "").split(",") if x)
def opt(k, d):
    return int(OPT.get(k, d))

WS_ARR = 0x8000
WS_F1 = 0x00000
WS_F2 = 0x10000
WS_F3 = 0x20000
WS_O = 0x100000
WS_H = 0x300000
WS_HH = 0x500000
WS_ST = 0xC00000
WS_PROF = 0xE00000
WS_R3 = 0x1000000
WS_R2 = 0x1400000
WS_R4 = 0x1500000
WS_CS = 0x1700000
WS_S1 = 0x1780000
WS_SIZE = 0x2000000
HHK = 48
OOB = 0x7f000000

sXCC = 3
SX, SWQ, SWS, SOUT, SDBG, SB3, SWO, SWD = 4, 8, 12, 16, 20, 24, 28, 32
sW, sG, sJ, sHB, sCB, sRB, sIDX, sW1, sWH, sW12, sG3, sJ3 = range(36, 48)
sA, sB, sC, sBA, sCNT = 48, 49, 50, 51, 52
sFAST, sNON, sFLG, sFLA, sK4, sB3b = 53, 54, 55, 56, 57, 58
sKC0, sXo0, sXo1, sXo2 = 60, 61, 62, 63
KA = 64
sM1, sM2, sM3, sDiag = 64, 66, 68, 70
sB2l, sB2h, sB4l, sB4h, sB4zl, sB4zh = 72, 73, 74, 75, 76, 77
sSQ, sDUM = 78, 80
t1, t2, t3 = 81, 82, 83
sXl, sXl2, sWl, sWs = 84, 85, 86, 87
sEX0, sEX2, sW0, sHM = 88, 90, 92, 94

vL, vJ, vQ, vL16 = 1, 2, 3, 4
vAo, vF, vFo = 5, 6, 7
vT0, vT1, vT2, vT3 = 8, 9, 10, 11
vSTAMP = 15
vDs = 16
vSt = 17
HRES = 18
ones = 28
VA = 244

SLOT = 34816
STG = 104448
NONW = 162812
ST1 = 162816

LOG2E = 1.4426950408889634
MF = "v_mfma_f32_16x16x32_bf16"
MF16 = "v_mfma_f32_16x16x16_bf16"
WSS = f"s[{SWS}:{SWS+3}]"


def f32hex(x):
    return "0x%08x" % struct.unpack("<I", struct.pack("<f", x))[0]


STAMPN = [0]
STAMPNAMES = []
def stamp(A, name=""):
    if not INSTR:
        return
    if INSTR == 2 and not any(k in name for k in ("start", "end", "loop done", "mfma done", "bar0")):
        return
    i = STAMPN[0]
    STAMPN[0] += 1
    STAMPNAMES.append(name)
    assert i < 60
    A(f"s_memtime s[100:101]\ns_waitcnt lgkmcnt(0)\nv_writelane_b32 v{vSTAMP}, s100, {i}")


def emit(A, items):
    for it in items:
        if callable(it):
            it()
        else:
            A(it[0], tag=it[1])


def weave(main, fills):
    out = []
    pos = [0] * len(fills)
    for i, m in enumerate(main):
        out.append(m)
        for k, (items, start, per) in enumerate(fills):
            if i >= start:
                n = per(i) if callable(per) else per
                out.extend(items[pos[k]:pos[k] + n])
                pos[k] += n
    for k, (items, start, per) in enumerate(fills):
        out.extend(items[pos[k]:])
    return out


def unpack_pk(t):
    mn, rest = t.split(None, 1)
    toks = rest.split()
    ops = [x.strip(",") for x in toks if x.startswith("v[")]
    mods = {x.split(":")[0]: eval(x.split(":", 1)[1]) for x in toks if x.startswith(("op_sel", "neg_"))}
    n = len(ops) - 1
    base = [int(re.match(r"v\[(\d+):", o).group(1)) for o in ops]
    sel_lo = mods.get("op_sel", [0] * n)
    sel_hi = mods.get("op_sel_hi", [1] * n)
    neg_lo = mods.get("neg_lo", [0] * n)
    neg_hi = mods.get("neg_hi", [0] * n)
    op = {"v_pk_add_f32": "v_add_f32", "v_pk_mul_f32": "v_mul_f32", "v_pk_fma_f32": "v_fma_f32"}[mn]
    out = []
    for half, sel, neg in ((0, sel_lo, neg_lo), (1, sel_hi, neg_hi)):
        srcs = [("-" if neg[i] else "") + f"v{base[i+1] + sel[i]}" for i in range(n)]
        out.append(f"{op} v{base[0]+half}, " + ", ".join(srcs))
    return out


def B2reg(st, ct):
    return ("a", 192 + (st * 4 + ct) * 4)
def B4reg(st, ct):
    if st < 4:
        return ("a", 192 + (st * 4 + ct) * 4)
    if st < 7:
        return ("v", 208 + ((st - 4) * 4 + ct) * 4)
    return ("a", ((st - 7) * 4 + ct) * 4)
def B3reg(ks, u):
    return ("a", (ks * 3 + u) * 4)


VD3 = [5, 17, 7]
VTR3 = [204, 205, 206]
sS3, sS2, sS4, sL2 = 72, 73, 74, 75


def w3_dma(ks, base):
    return [(f"""
    s_mul_i32 s{sBA}, s{sW}, 3072
    s_add_u32 m0, s{sBA}, {base}
    s_add_u32 s{sBA}, s{sS3}, {ks*32*2752}
    buffer_load_dwordx4 v{VD3[0]}, s[{SB3}:{SB3+3}], s{sBA} offen lds
    buffer_load_dwordx4 v{VD3[1]}, s[{SB3}:{SB3+3}], s{sBA} offen offset:1024 lds
    buffer_load_dwordx4 v{VD3[2]}, s[{SB3}:{SB3+3}], s{sBA} offen offset:2048 lds""", f"w3_{ks}")]


def w3_tr(A, kss, bases):
    cur = 0
    for ks, base in zip(kss, bases):
        if base - cur + 6144 > 65535:
            for u in range(3):
                A(f"v_add_u32 v{VTR3[u]}, {base - cur}, v{VTR3[u]}")
            cur = base
        for u in range(3):
            for hf in range(2):
                A(f"ds_read_b64_tr_b16 {r(B3reg(ks,u), hf*2, 2)}, v{VTR3[u]} offset:{base - cur + hf*6144}", tag="w3t")
    if cur:
        for u in range(3):
            A(f"v_subrev_u32 v{VTR3[u]}, {cur}, v{VTR3[u]}")


def k_dma(srd_, ssrc, st, sg, c0, tag, zero_w3=False):
    it = []
    for p in range(4):
        z = f"""
        s_cmp_eq_u32 s{sW}, 3
        s_cselect_b32 s{sBA}, {OOB}, s{sBA}""" if zero_w3 else ""
        it.append((f"""
        s_add_u32 m0, s{sg}, {c0 + p*1024}
        s_add_u32 s{sBA}, s{ssrc}, {st*32768 + p*8192}{z}
        buffer_load_dwordx4 v{vDs}, s[{srd_}:{srd_+3}], s{sBA} offen lds""", tag))
    return it


LS = [n * 12288 for n in range(5)]
US = [65536, 77824, 90112, 129024]
W3SLOT = {0: LS[0], 1: LS[1], 2: LS[2], 3: LS[3], 4: LS[4], 5: US[2], 6: US[0], 7: US[1], 8: US[3],
          9: LS[0], 10: LS[1], 11: LS[2], 12: US[2], 13: US[0], 14: US[1], 15: US[3]}
STB = 141312
def w3i(kss):
    return [x for ks in kss for x in w3_dma(ks, W3SLOT[ks])]
def w3w(A, kss):
    A.wait_vm([f"w3_{ks}" for ks in kss])
def w3r(A, kss):
    kss = sorted(kss, key=lambda k: W3SLOT[k])
    w3_tr(A, kss, [W3SLOT[k] for k in kss])

LBL = [0]
def newlbl():
    LBL[0] += 1
    return LBL[0]


def spin(A, tag, test, reprobe, limit=0x40000, only_w0=False, after=None, sleep=0, mid=None):
    n = newlbl()
    A.wait_vm(tag)
    if mid:
        mid()
    saved = list(A.vm)
    A.fence()
    if only_w0:
        A(f"s_cmp_eq_u32 s{sW}, 0\ns_cbranch_scc0 L_skip{n}")
    A(f"s_mov_b32 s{sCNT}, 0")
    A.raw(f"L_wait{n}:")
    test(f"L_go{n}")
    if sleep:
        A(f"s_sleep {sleep}")
    reprobe()
    A(f"""
    s_waitcnt vmcnt(0)
    s_add_u32 s{sCNT}, s{sCNT}, 1
    s_cmp_lt_u32 s{sCNT}, {limit}
    s_cbranch_scc1 L_wait{n}
    """)
    A.raw(f"L_go{n}:")
    A.fence()
    if after:
        after()
    if only_w0:
        A.raw(f"L_skip{n}:")
    A.vm = saved
    A.fence()


def flag_test(A, step, mask):
    def t(lbl):
        A(f"""
        s_add_u32 s{sBA}, s{sNON}, {step}
        v_subrev_u32 v{vF}, s{sBA}, v{vF}
        v_cmp_lt_u32 vcc, 15, v{vF}
        s_and_b64 vcc, vcc, {mask}
        s_cbranch_scc0 {lbl}
        """)
    return t


PS = [60, 84, 88, 8]
def wg_signal(A, base, sg, sj, step):
    A(f"""
    s_add_u32 s{sBA}, s{sNON}, {step}
    v_mov_b32 v{vT0}, s{sBA}
    v_mov_b32 v{vT1}, 0
    s_lshl_b32 s{sBA}, s{sg}, 9
    s_lshr_b32 s{sCNT}, s{sj}, 2
    s_lshl_b32 s{sCNT}, s{sCNT}, 7
    s_add_u32 s{sBA}, s{sBA}, s{sCNT}
    s_and_b32 s{sCNT}, s{sj}, 3
    s_lshl_b32 s{sCNT}, s{sCNT}, 2
    s_add_u32 s{sBA}, s{sBA}, s{sCNT}
    s_add_u32 s{sBA}, s{sBA}, {base}
    s_mov_b64 exec, s[{sW0}:{sW0+1}]
    """)
    A(f"buffer_store_dword v{vT0}, v{vT1}, {WSS}, s{sBA} offen sc1", tag="~wgf")
    A("s_mov_b64 exec, -1")


def wg_poll(A, base, sg, step, half=False):
    n = newlbl()
    nl = 2 if half else 4
    A("s_waitcnt lgkmcnt(0)")
    A.fence()
    A(f"""
    s_cmp_eq_u32 s{sW}, 0
    s_cbranch_scc0 L_skip{n}
    s_lshl_b32 s{sBA}, s{sg}, 9
    """ + (f"""s_lshl_b32 s{sCNT}, s{sHB}, 8
    s_add_u32 s{sBA}, s{sBA}, s{sCNT}
    """ if half else "") + f"""
    s_add_u32 s{sBA}, s{sBA}, {base}
    s_add_u32 s96, s{SWS}, s{sBA}
    s_addc_u32 s97, s{SWS+1}, 0
    s_add_u32 s98, s{sNON}, {step}
    s_mov_b32 s{sCNT}, 0
    """)
    A.raw(f"L_wait{n}:")
    for i in range(nl):
        A(f"s_load_dwordx4 s[{PS[i]}:{PS[i]+3}], s[96:97], {i*128} glc")
    A("s_waitcnt lgkmcnt(0)")
    first = True
    for i in range(nl):
        for k in range(4):
            if first:
                A(f"s_sub_u32 s{sBA}, s{PS[i]+k}, s98")
                first = False
            else:
                A(f"s_sub_u32 s99, s{PS[i]+k}, s98\ns_or_b32 s{sBA}, s{sBA}, s99")
    A(f"""
    s_cmp_lt_u32 s{sBA}, 16
    s_cbranch_scc1 L_skip{n}
    s_add_u32 s{sCNT}, s{sCNT}, 1
    s_cmp_lt_u32 s{sCNT}, 0x40000
    s_cbranch_scc1 L_wait{n}
    """)
    A.raw(f"L_skip{n}:")
    A("s_barrier")


def vprobe(A, base, sg, tag):
    A(f"""
    s_lshl_b32 s{sBA}, s{sg}, 9
    s_add_u32 s{sBA}, s{sBA}, {base}
    v_lshrrev_b32 v{vT3}, 2, v{vJ}
    v_lshlrev_b32 v{vT3}, 7, v{vT3}
    v_and_b32 v{vT2}, 3, v{vJ}
    v_lshl_add_u32 v{vT3}, v{vT2}, 2, v{vT3}
    """)
    A(f"buffer_load_dword v{vF}, v{vT3}, {WSS}, s{sBA} offen sc1", tag=tag)

def vcheck(A, base, sg, step, tag):
    spin(A, tag, flag_test(A, step, "-1"), lambda: vprobe(A, base, sg, None))


def srd(A, d, p, n):
    A(f"""
    s_mov_b32 s{d}, s{p}
    s_and_b32 s{d+1}, s{p+1}, 0xffff
    s_mov_b32 s{d+2}, {n}
    s_mov_b32 s{d+3}, 0x20000
    """)


KS_ = [None]
LATE_ = [None]
class KS:
    def __init__(self, A, which):
        self.A, self.P2 = A, which == 2
        self.nst = 4 if self.P2 else 11
        self.RW = [12, 13, 14] if self.P2 else [204, 205, 206]
        self.vRr, self.vXo = (26, 27) if self.P2 else (207, 27)
        self.acc = [32, 64]
        self.T = 96
        self.U = 120
        if self.P2:
            self.Afr = lambda h, t, st: v(128 + ((h * 2 + t) * 4 + st) * 4, 4)
            self.Bf = B2reg
        else:
            def Afr(h, t, st):
                idx = (h * 2 + t) * 11 + st
                return a_(64 + idx * 4, 4) if idx < 32 else v(128 + (idx - 32) * 4, 4)
            self.Afr = Afr
            self.Bf = B4reg
        self.RED = [0, 0] if self.P2 else [0, 24576]
        self.REDB = 104448 if self.P2 else 0

    def setup(self):
        A = self.A
        for k in range(1, 4):
            A(f"""
            s_xor_b32 s{t1}, s{sW}, {k}
            s_mul_i32 s{t1}, s{t1}, 6144
            s_add_u32 s{t1}, s{t1}, {(k-1)*2048 + self.REDB}
            v_add_u32 v{self.RW[k-1]}, s{t1}, v{vL16}
            """)
        A(f"""
        s_mul_i32 s{t1}, s{sW}, 6144
        s_add_u32 s{t1}, s{t1}, {self.REDB}
        v_add_u32 v{self.vRr}, s{t1}, v{vL16}
        v_lshlrev_b32 v{self.vXo}, 10, v{vJ}
        v_lshl_add_u32 v{self.vXo}, v{vQ}, 3, v{self.vXo}
        """)

    def rowcol(self, h, dst):
        return f"""
        s_lshl_b32 s{dst}, s{sRB}, 16
        s_lshl_b32 s{sB}, s{sWH}, 14
        s_add_u32 s{dst}, s{dst}, s{sB}
        s_lshl_b32 s{sB}, s{sCB}, 7
        s_add_u32 s{dst}, s{dst}, s{sB}
        s_lshl_b32 s{sB}, s{sW1}, 6
        s_add_u32 s{dst}, s{dst}, s{sB}
        s_add_u32 s{dst}, s{dst}, {h*32768}
        """

    def res_loads(self):
        A = self.A
        for h in range(2):
            A(self.rowcol(h, sC))
            for i in range(2):
                A(f"buffer_load_dwordx2 v[{HRES+4*h+2*i}:{HRES+4*h+2*i+1}], v{self.vXo}, s[{SX}:{SX+3}], s{sC} offen offset:{i*32}", tag="res")

    def a_loads(self, h, skip=0):
        base = WS_O if self.P2 else WS_HH
        pitch = 16 if self.P2 else HHK
        k0 = f"s_lshl_b32 s{sB}, s{sW}, 2" if self.P2 else f"s_mov_b32 s{sB}, s{sK4}"
        it = []
        for t in range(2):
            pre = f"""
            s_xor_b32 s{sA}, s{sWH}, {t}
            s_lshl_b32 s{sB}, s{sRB}, 2
            s_add_u32 s{sA}, s{sA}, s{sB}
            s_add_u32 s{sA}, s{sA}, {2*h}
            s_mul_i32 s{sA}, s{sA}, {pitch}
            {k0}
            s_add_u32 s{sA}, s{sA}, s{sB}
            s_lshl_b32 s{sA}, s{sA}, 10
            s_add_u32 s{sA}, s{sA}, {base}
            """
            for st in range(self.nst):
                if st % 4 == 0 and st > 0:
                    pre += f"s_add_u32 s{sA}, s{sA}, 4096\n"
                if t * self.nst + st < skip:
                    continue
                it.append((pre + f"buffer_load_dwordx4 {self.Afr(h,t,st)}, v{vL16}, {WSS}, s{sA} offen offset:{(st%4)*1024}", f"a{h}_{t}_{st}"))
                pre = ""
        return it

    def mfmas(self, h, fill=()):
        A = self.A
        fill = list(fill)
        acc = self.acc[h]
        for t in range(2):
            for st in range(self.nst):
                A.wait_vm(f"a{h}_{t}_{st}")
                for ct in range(4):
                    d = v(acc + (t * 4 + ct) * 4, 4)
                    A(f"{MF} {d}, {r(self.Bf(st,ct),0,4)}, {self.Afr(h,t,st)}, {'0' if st==0 else d}")
                    if ct == 1 and fill:
                        emit(A, [fill.pop(0)])
                if t == 1 and st == 1:
                    for i in range(2):
                        A(f"ds_write_b128 v{self.RW[0]}, {v(acc+(2+i)*4,4)} offset:{self.RED[h]+i*1024}")
        emit(A, fill)
        for k in (2, 3):
            for i in range(2):
                A(f"ds_write_b128 v{self.RW[k-1]}, {v(acc+(k*2+i)*4,4)} offset:{self.RED[h]+i*1024}")

    def reduce(self, h, pre_barrier=None, post_barrier=None):
        A = self.A
        acc, T, U = self.acc[h], self.T, self.U
        if pre_barrier:
            pre_barrier()
        A("s_waitcnt lgkmcnt(0)\ns_barrier")
        for k in range(3):
            for i in range(2):
                A(f"ds_read_b128 {v(T+(k*2+i)*4,4)}, v{self.vRr} offset:{self.RED[h]+k*2048+i*1024}", tag=f"rd{k}")
        if post_barrier:
            post_barrier()
        A.wait_vm("res")
        for i in range(4):
            A(f"v_lshlrev_b32 v{U+2*i}, 16, v{HRES+4*h+i}")
            A(f"v_and_b32 v{U+2*i+1}, 0xffff0000, v{HRES+4*h+i}")
        for i in range(4):
            A(f"v_pk_add_f32 v[{acc+2*i}:{acc+2*i+1}], v[{acc+2*i}:{acc+2*i+1}], v[{U+2*i}:{U+2*i+1}]")
        for k in range(3):
            A.wait_lg(f"rd{k}")
            for i in range(4):
                b = T + k * 8 + 2 * i
                A(f"v_pk_add_f32 v[{acc+2*i}:{acc+2*i+1}], v[{acc+2*i}:{acc+2*i+1}], v[{b}:{b+1}]")
        PK = HRES + 4 * h
        for i in range(4):
            A(f"v_cvt_pk_bf16_f32 v{PK+i}, v{acc+2*i}, v{acc+2*i+1}")
        if self.P2:
            G, S_ = acc + 8, acc + 12
            A(f"""
            s_lshl_b32 s{sC}, s{sRB}, 16
            s_lshl_b32 s{sB}, s{sWH}, 14
            s_add_u32 s{sC}, s{sC}, s{sB}
            s_lshl_b32 s{sB}, s{sCB}, 11
            s_add_u32 s{sC}, s{sC}, s{sB}
            s_lshl_b32 s{sB}, s{sW1}, 10
            s_add_u32 s{sC}, s{sC}, s{sB}
            s_add_u32 s{sC}, s{sC}, {WS_H + h*32768}
            {MF} {v(G,4)}, {v(PK,4)}, {v(PK,4)}, 0
            {MF} {v(S_,4)}, {v(ones,4)}, {v(PK,4)}, 0
            """)
            A(f"buffer_store_dwordx4 v[{PK}:{PK+3}], v{vL16}, {WSS}, s{sC} offen sc1", tag=f"hst{h}")
            A(f"""
            v_lshlrev_b32 v{vT2}, 3, v{vJ}
            s_lshl_b32 s{sC}, s{sRB}, 13
            s_lshl_b32 s{sB}, s{sWH}, 11
            s_add_u32 s{sC}, s{sC}, s{sB}
            s_lshl_b32 s{sB}, s{sCB}, 8
            s_add_u32 s{sC}, s{sC}, s{sB}
            s_lshl_b32 s{sB}, s{sW1}, 7
            s_add_u32 s{sC}, s{sC}, s{sB}
            s_add_u32 s{sC}, s{sC}, {WS_ST + h*4096}
            v_cndmask_b32 v{S_+1}, v{G}, v{G+1}, s[{sM1}:{sM1+1}]
            v_cndmask_b32 v{S_+1}, v{S_+1}, v{G+2}, s[{sM2}:{sM2+1}]
            v_cndmask_b32 v{S_+1}, v{S_+1}, v{G+3}, s[{sM3}:{sM3+1}]
            s_mov_b64 exec, s[{sDiag}:{sDiag+1}]
            """)
            A(f"buffer_store_dwordx2 v[{S_}:{S_+1}], v{vT2}, {WSS}, s{sC} offen sc1", tag=f"hst{h}")
            A("s_mov_b64 exec, -1")
        else:
            A(self.rowcol(h, sC))
            for i in range(2):
                A(f"buffer_store_dwordx2 v[{PK+2*i}:{PK+2*i+1}], v{self.vXo}, s[{SOUT}:{SOUT+3}], s{sC} offen offset:{i*32}")


def p1(A, label):
    ST = ST1
    vWe, vWo_, vA0, vA1, vWt = 32, 33, 34, 35, 36
    vA0b, vA1b, vWtb = 37, 38, 39
    vSa, vSc, vSl, vOst = 40, 41, 42, 43
    vP0 = 44
    accQ, accK, accV = 48, 68, 88
    Af = [108, 128]
    Wf = [148, 160]
    biasP, biasC, biasF, selLo, selHi = 196, 200, 204, 208, 209
    WO = 10240
    XR = 180
    S1, S2 = 188, 189
    vXr = 192

    A.raw(".p2align 8\n.globl %s\n.type %s,@function\n%s:" % (label, label, label))
    if INSTR:
        A("s_memrealtime s[100:101]\ns_waitcnt lgkmcnt(0)\nv_writelane_b32 v15, s100, 62")
        stamp(A, "start")
    xrot = f"s_and_b32 s{sB}, s2, 7" if opt("xrot", 1) else f"s_mov_b32 s{sB}, 0"
    crot = {0: f"s_mov_b32 s{sA}, 0", 1: f"s_lshl_b32 s{sA}, s{sA}, 2", 2: f"s_mov_b32 s{sA}, s{sCB}",
            3: f"s_lshr_b32 s{sA}, s{sIDX}, 3\ns_and_b32 s{sA}, s{sA}, 1\ns_lshl_b32 s{sA}, s{sA}, 2\ns_add_u32 s{sA}, s{sA}, s{sCB}"}[opt("crot", 2)]
    A(f"""
    s_cmp_ge_u32 s2, 256
    s_cbranch_scc1 L_done
    s_load_dwordx16 s[{KA}:{KA+15}], s[0:1], 0
    s_load_dwordx4 s[{KA+16}:{KA+19}], s[0:1], 64
    s_memrealtime s[98:99]
    v_and_b32 v{vL}, 63, v0
    v_lshrrev_b32 v{vT0}, 6, v0
    s_lshr_b32 s{sIDX}, s2, 3
    s_and_b32 s{sG}, s2, 7
    s_lshl_b32 s{sG}, s{sG}, 1
    v_readfirstlane_b32 s{sW}, v{vT0}
    s_lshr_b32 s{sA}, s{sIDX}, 4
    s_add_u32 s{sG}, s{sG}, s{sA}
    s_and_b32 s{sJ}, s{sIDX}, 15
    s_lshr_b32 s{sHB}, s{sJ}, 3
    s_and_b32 s{sCB}, s{sJ}, 7
    s_lshl_b32 s{sRB}, s{sG}, 1
    s_add_u32 s{sRB}, s{sRB}, s{sHB}
    s_lshr_b32 s{sWH}, s{sW}, 1
    s_and_b32 s{sW1}, s{sW}, 1
    v_lshrrev_b32 v{vT0}, 3, v{vL}
    v_and_b32 v{vT1}, 7, v{vL}
    v_and_b32 v{vT2}, 6, v{vT0}
    v_xor_b32 v{vT2}, v{vT1}, v{vT2}
    v_lshlrev_b32 v{vT2}, 4, v{vT2}
    v_lshl_add_u32 v{vDs}, v{vT0}, 10, v{vT2}
    v_and_b32 v{vT2}, 2, v{vT0}
    v_xor_b32 v{vT2}, v{vT1}, v{vT2}
    v_lshlrev_b32 v{vT2}, 4, v{vT2}
    v_mul_u32_u24 v{vWe}, 3072, v{vT0}
    v_add_u32 v{vWe}, v{vWe}, v{vT2}
    v_xor_b32 v{vWo_}, 64, v{vWe}
    v_add_u32 v{vWo_}, 24576, v{vWo_}
    s_lshr_b32 s{sA}, s{sIDX}, 3
    s_add_u32 s{sA}, s{sA}, s{sCB}
    s_and_b32 s{sA}, s{sA}, 1
    {crot}
    {xrot}
    s_add_u32 s{sKC0}, s{sA}, s{sB}
    s_lshl_b32 s{sA}, s{sRB}, 16
    s_sub_u32 s{sA}, s{sA}, 16384
    s_lshl_b32 s{sB}, s{sW}, 14
    s_add_u32 s{sXo0}, s{sA}, s{sB}
    s_add_u32 s{sXo1}, s{sXo0}, 8192
    s_max_i32 s{sXo0}, s{sXo0}, 0
    s_max_i32 s{sXo1}, s{sXo1}, 0
    s_lshl_b32 s{sC}, s{sWH}, 13
    s_add_u32 s{sXo2}, s{sA}, s{sC}
    s_add_u32 s{sXo2}, s{sXo2}, 65536
    s_lshl_b32 s{sXl}, s{sW}, 11
    s_lshl_b32 s{sXl2}, s{sWH}, 10
    s_add_u32 s{sXl2}, s{sXl2}, 8192
    s_mul_i32 s{sWl}, s{sW}, 6144
    s_add_u32 s{sWl}, s{sWl}, {WO}
    s_mul_i32 s{sWs}, s{sW}, 49152
    s_lshl_b32 s{sB}, s{sCB}, 7
    s_add_u32 s{sWs}, s{sWs}, s{sB}
    s_cmp_eq_u32 s{sW}, 0
    s_cselect_b32 s{sEX0}, 0xffffff00, -1
    s_mov_b32 s{sEX0+1}, -1
    s_cselect_b32 s{sW0}, 1, 0
    s_mov_b32 s{sW0+1}, 0
    s_cmp_eq_u32 s{sW1}, 0
    s_cselect_b32 s{sEX2}, -1, 0
    s_cselect_b32 s{sEX2+1}, 0, -1
    s_lshl_b32 s{sFLG}, s{sG}, 8
    v_and_b32 v{vJ}, 15, v{vL}
    v_lshrrev_b32 v{vQ}, 4, v{vL}
    v_lshlrev_b32 v{vL16}, 4, v{vL}
    v_lshlrev_b32 v{vXr}, 5, v{vL}
    s_waitcnt lgkmcnt(0)
    """)
    srd(A, SWQ, KA + 2, 512 * 1536 * 2)
    srd(A, SX, KA + 0, 2048 * 512 * 2)
    stamp(A, "kernarg ok")

    def dma(i):
        slot = i % 3
        it = []
        tag = f"c{i}"
        it.append((f"""
        s_add_u32 s{sA}, s{sKC0}, {i}
        s_and_b32 s{sA}, s{sA}, 7
        s_mul_i32 s{sC}, s{sA}, {64*3072}
        s_add_u32 s{sC}, s{sC}, s{sWs}
        s_lshl_b32 s{sA}, s{sA}, 7
        s_add_u32 m0, s{sWl}, {slot*SLOT}
        buffer_load_dwordx4 v{vWe}, s[{SWQ}:{SWQ+3}], s{sC} offen lds""", tag))
        for sec in (1, 2):
            it.append((f"buffer_load_dwordx4 v{vWe}, s[{SWQ}:{SWQ+3}], s{sC} offen offset:{sec*1024} lds", tag))
        for sec in range(3):
            pre = f"s_add_u32 m0, s{sWl}, {slot*SLOT+3072}\n" if sec == 0 else ""
            it.append((pre + f"buffer_load_dwordx4 v{vWo_}, s[{SWQ}:{SWQ+3}], s{sC} offen offset:{sec*1024} lds", tag))
        it.append((f"""
        s_mov_b64 exec, s[{sEX0}:{sEX0+1}]
        s_add_u32 m0, s{sXl}, {slot*SLOT}
        s_add_u32 s{sB}, s{sXo0}, s{sA}
        buffer_load_dwordx4 v{vDs}, s[{SX}:{SX+3}], s{sB} offen lds
        s_mov_b64 exec, -1""", tag))
        it.append((f"""
        s_add_u32 m0, s{sXl}, {slot*SLOT+1024}
        s_add_u32 s{sB}, s{sXo1}, s{sA}
        buffer_load_dwordx4 v{vDs}, s[{SX}:{SX+3}], s{sB} offen lds""", tag))
        it.append((f"""
        s_mov_b64 exec, s[{sEX2}:{sEX2+1}]
        s_add_u32 m0, s{sXl2}, {slot*SLOT}
        s_add_u32 s{sB}, s{sXo2}, s{sA}
        buffer_load_dwordx4 v{vDs}, s[{SX}:{SX+3}], s{sB} offen lds
        s_mov_b64 exec, -1""", tag))
        return it


    if opt("s3pf", 1):
        A(f"""
        s_lshl_b32 s{sA}, s{sIDX}, 2
        s_add_u32 s{sA}, s{sA}, s{sW}
        s_mul_i32 s{sA}, s{sA}, 12288
        v_lshlrev_b32 v{vT3}, 10, v{vL}
        s_mov_b64 exec, 0xfff
        buffer_load_dword v{vF}, v{vT3}, s[{SWQ}:{SWQ+3}], s{sA} offen offset:384
        s_mov_b64 exec, -1
        """)
    emit(A, dma(0))
    srd(A, SDBG, KA + 16, 256)
    A(f"""
    s_lshl_b32 s98, s98, 5
    s_or_b32 s98, s98, 16
    v_mov_b32 v{vT0}, s98
    v_mov_b32 v{vT1}, 0
    v_mov_b32 v{vT2}, 0
    s_lshl_b32 s99, s2, 2
    s_add_u32 s99, s99, s{sW}
    s_and_b32 s99, s99, 0xffffffe3
    s_cmp_eq_u32 s99, 0
    s_cselect_b64 exec, 1, 0
    """)
    A(f"buffer_atomic_cmpswap v[{vT0}:{vT1}], v{vT2}, s[{SDBG}:{SDBG+3}], 0 offen sc1", tag="~cas")
    A(f"""
    s_mov_b64 exec, -1
    s_lshl_b32 s{sA}, s{sRB}, 16
    s_lshl_b32 s{sB}, s{sCB}, 13
    s_add_u32 s{sA}, s{sA}, s{sB}
    s_lshl_b32 s{sB}, s{sW}, 11
    s_add_u32 s{sA}, s{sA}, s{sB}
    """)
    A(f"buffer_load_dwordx4 v[{XR}:{XR+3}], v{vXr}, s[{SX}:{SX+3}], s{sA} offen", tag="e")
    A(f"buffer_load_dwordx4 v[{XR+4}:{XR+7}], v{vXr}, s[{SX}:{SX+3}], s{sA} offen offset:16", tag="e")
    if opt("cpf", 1):
        A("s_getpc_b64 s[96:97]")
        A.raw("L_pc:")
        A(f"""
        s_lshl_b32 s{sA}, s{sIDX}, 10
        v_lshrrev_b32 v{vT3}, 5, v0
        v_lshlrev_b32 v{vT3}, 7, v{vT3}
        v_add_u32 v{vT3}, s{sA}, v{vT3}
        v_min_u32 v{vT3}, L_done-L_pc, v{vT3}
        global_load_dword v{vF}, v{vT3}, s[96:97]
        """)
    stamp(A, "c0+early issued")
    srd(A, SWO, KA + 4, 512 * 512 * 2)
    srd(A, SWS, KA + 18, WS_SIZE)
    srd(A, SOUT, KA + 14, 2048 * 512 * 2)
    srd(A, SWD, KA + 12, 1376 * 512 * 2)
    A(f"""
    s_cmp_eq_u32 s{sW1}, 0
    s_cselect_b32 s{SB3}, s{KA+8}, s{KA+10}
    s_cselect_b32 s{SB3+1}, s{KA+9}, s{KA+11}
    s_and_b32 s{SB3+1}, s{SB3+1}, 0xffff
    s_mov_b32 s{SB3+2}, {512*1376*2}
    s_mov_b32 s{SB3+3}, 0x20000
    v_mov_b32 v{ones}, 0x3f803f80
    v_mov_b32 v{ones+1}, 0x3f803f80
    v_mov_b32 v{ones+2}, 0x3f803f80
    v_mov_b32 v{ones+3}, 0x3f803f80
    v_lshrrev_b32 v{vT0}, 3, v{vJ}
    v_and_b32 v{vT1}, 7, v{vJ}
    v_lshlrev_b32 v{vT1}, 7, v{vT1}
    v_lshl_add_u32 v{vT0}, v{vT0}, 10, v{vT1}
    v_and_b32 v{vT1}, 6, v{vJ}
    v_xor_b32 v{vT1}, v{vQ}, v{vT1}
    v_lshl_add_u32 v{vA0}, v{vT1}, 4, v{vT0}
    v_xor_b32 v{vA1}, 64, v{vA0}
    v_bfe_u32 v{vT0}, v{vL}, 2, 2
    v_bfe_u32 v{vT1}, v{vL}, 1, 1
    s_lshl_b32 s{sA}, s{sW}, 1
    v_add_u32 v{vT1}, s{sA}, v{vT1}
    v_and_b32 v{vT2}, 1, v{vQ}
    v_lshlrev_b32 v{vT2}, 2, v{vT2}
    v_xor_b32 v{vT1}, v{vT1}, v{vT2}
    v_and_b32 v{vT2}, 2, v{vT0}
    v_xor_b32 v{vT1}, v{vT1}, v{vT2}
    v_lshlrev_b32 v{vT1}, 4, v{vT1}
    v_lshl_add_u32 v{vT1}, v{vT0}, 7, v{vT1}
    v_and_b32 v{vT2}, 1, v{vL}
    v_lshl_add_u32 v{vT1}, v{vT2}, 3, v{vT1}
    v_mul_u32_u24 v{vT2}, 3072, v{vQ}
    v_add_u32 v{vT1}, v{vT1}, v{vT2}
    v_add_u32 v{vWt}, {WO}, v{vT1}
    v_add_u32 v{vA0b}, {2*SLOT}, v{vA0}
    v_add_u32 v{vA1b}, {2*SLOT}, v{vA1}
    v_add_u32 v{vWtb}, {2*SLOT}, v{vWt}
    v_lshrrev_b32 v{vT0}, 3, v{vL}
    v_mul_u32_u24 v{vT0}, {SLOT}, v{vT0}
    v_and_b32 v{vT1}, 7, v{vL}
    v_lshl_add_u32 v{vT0}, v{vT1}, 4, v{vT0}
    s_mov_b64 exec, 0xffffff
    ds_write_b128 v{vT0}, v[{ones}:{ones+3}]
    s_mov_b64 exec, -1
    v_mov_b32 v{vT3}, 0
    s_cmp_eq_u32 s{sW}, 0
    s_cselect_b64 exec, -1, 0
    """)
    A(f"buffer_load_dword v{vF}, v{vT3}, s[{SDBG}:{SDBG+3}], 0 offen sc1", tag="~non")
    A("s_mov_b64 exec, -1")
    d1 = dma(1)
    emit(A, d1[:opt("d1a", 3)])
    A(f"s_mov_b32 s96, s{sA}\ns_mov_b32 s97, s{sC}")
    role = f"""
    s_and_b32 s{t1}, s2, 7
    s_lshr_b32 s{t2}, s{t1}, 1
    s_lshl_b32 s{sG3}, s{t2}, 2
    s_lshr_b32 s{t2}, s{sIDX}, 3
    s_add_u32 s{sG3}, s{sG3}, s{t2}
    s_and_b32 s{t1}, s{t1}, 1
    s_lshl_b32 s{sJ3}, s{t1}, 3
    s_and_b32 s{t2}, s{sIDX}, 7
    s_add_u32 s{sJ3}, s{sJ3}, s{t2}
    """ if opt("p3x", 1) else f"""
    s_mov_b32 s{sG3}, s{sG}
    s_mov_b32 s{sJ3}, s{sJ}
    """
    A(role + f"s_lshl_b32 s{sA}, s{sW1}, 5")
    for n in range(3):
        A(f"""
        v_add_u32 v{vT0}, {64*n}, v{vL}
        v_mul_u32_u24 v{vT1}, 43691, v{vT0}
        v_lshrrev_b32 v{vT1}, 19, v{vT1}
        v_mul_u32_u24 v{vT2}, 12, v{vT1}
        v_sub_u32 v{vT0}, v{vT0}, v{vT2}
        v_bfe_u32 v{vT2}, v{vT1}, 2, 1
        v_xor_b32 v{vT0}, v{vT0}, v{vT2}
        v_mul_u32_u24 v{vT1}, 2752, v{vT1}
        v_lshl_add_u32 v{vT0}, v{vT0}, 4, v{vT1}
        v_xor_b32 v{vT0}, s{sA}, v{vT0}
        v_subrev_u32 v{VD3[n]}, {1024*n}, v{vT0}
        """)
    A(f"""
    s_lshl_b32 s{sW12}, s{sW}, 12
    s_mul_i32 s{sK4}, s{sW}, 11
    s_min_u32 s{sK4}, s{sK4}, 32
    s_mul_i32 s{sS3}, s{sWH}, {16*2752}
    s_mul_i32 s{t1}, s{sJ3}, 192
    s_add_u32 s{sS3}, s{sS3}, s{t1}
    s_cmp_eq_u32 s{sJ3}, 15
    s_cselect_b32 s{sS3}, {OOB}, s{sS3}
    s_lshl_b32 s{t1}, s{sCB}, 7
    s_lshl_b32 s{sS2}, s{sW}, 17
    s_add_u32 s{sS2}, s{sS2}, s{t1}
    s_lshl_b32 s{sS4}, s{sK4}, 15
    s_add_u32 s{sS4}, s{sS4}, s{t1}
    s_mul_i32 s{sL2}, s{sW}, 12288
    s_add_u32 s{sL2}, s{sL2}, {STG}
    """)
    NEG = f32hex(-1e30)
    A(f"""
    v_lshlrev_b32 v{vT0}, 2, v{vQ}
    v_sub_u32 v{vT0}, v{vT0}, v{vJ}
    v_mov_b32 v{vT3}, {NEG}
    s_cmp_eq_u32 s{sRB}, 0
    s_cselect_b64 s[98:99], -1, 0
    """)
    for r_ in range(4):
        A(f"""
        v_add_u32 v{vT1}, {r_}, v{vT0}
        v_and_b32 v{vT2}, 1, v{vT1}
        v_cmp_eq_u32 s[64:65], 0, v{vT2}
        v_cmp_le_i32 s[66:67], 2, v{vT1}
        v_cmp_ge_i32 s[68:69], 0, v{vT1}
        s_and_b64 s[66:67], s[66:67], s[64:65]
        s_and_b64 s[68:69], s[68:69], s[64:65]
        v_cndmask_b32 v{biasP+r_}, v{vT3}, 0, s[66:67]
        v_cndmask_b32 v{biasC+r_}, v{vT3}, 0, s[68:69]
        v_cndmask_b32 v{biasF+r_}, v{biasP+r_}, v{vT3}, s[98:99]
        """)
    A(f"""
    v_and_b32 v{vT0}, 3, v{vJ}
    v_cmp_eq_u32 s[{sM1}:{sM1+1}], 1, v{vT0}
    v_cmp_eq_u32 s[{sM2}:{sM2+1}], 2, v{vT0}
    v_cmp_eq_u32 s[{sM3}:{sM3+1}], 3, v{vT0}
    v_lshrrev_b32 v{vT0}, 2, v{vJ}
    v_cmp_eq_u32 s[{sDiag}:{sDiag+1}], v{vT0}, v{vQ}
    v_and_b32 v{vT1}, 1, v{vJ}
    v_cmp_eq_u32 vcc, 1, v{vT1}
    v_mov_b32 v{vT1}, 0x0c0c0100
    v_mov_b32 v{vT2}, 0x01000c0c
    v_cndmask_b32 v{selLo}, v{vT1}, v{vT2}, vcc
    v_mov_b32 v{vT1}, 0x0c0c0302
    v_mov_b32 v{vT2}, 0x03020c0c
    v_cndmask_b32 v{selHi}, v{vT1}, v{vT2}, vcc
    v_lshlrev_b32 v{vSa}, 2, v{vJ}
    v_add_u32 v{vSa}, {ST}, v{vSa}
    v_lshlrev_b32 v{vSc}, 4, v{vQ}
    v_add_u32 v{vSc}, {ST}, v{vSc}
    s_lshl_b32 s{t1}, s{sRB}, 6
    s_lshl_b32 s{t2}, s{sW1}, 6
    s_add_u32 s{t1}, s{t1}, s{t2}
    s_sub_u32 s{t1}, s{t1}, 16
    v_add_u32 v{vSl}, s{t1}, v{vL}
    v_max_i32 v{vSl}, 0, v{vSl}
    v_min_i32 v{vSl}, 2047, v{vSl}
    v_and_b32 v{vT0}, 1, v{vSl}
    v_lshrrev_b32 v{vSl}, 1, v{vSl}
    v_lshlrev_b32 v{vSl}, 7, v{vSl}
    v_lshl_add_u32 v{vSl}, v{vT0}, 3, v{vSl}
    v_and_b32 v{vT0}, 1, v{vQ}
    v_lshlrev_b32 v{vT0}, 14, v{vT0}
    v_lshrrev_b32 v{vT1}, 1, v{vQ}
    v_lshl_add_u32 v{vT0}, v{vT1}, 8, v{vT0}
    v_lshl_add_u32 v{vOst}, v{vJ}, 4, v{vT0}
    v_min_u32 v{vT0}, 11, v{vJ}
    v_lshrrev_b32 v{vT1}, 2, v{vT0}
    v_and_b32 v{vT0}, 3, v{vT0}
    v_lshlrev_b32 v{vT0}, 2, v{vT0}
    v_lshl_add_u32 v{vT0}, v{vT1}, 7, v{vT0}
    s_lshl_b32 s{t1}, s{sRB}, 8
    s_sub_u32 s{t1}, s{t1}, 128
    v_add_u32 v{vP0}, s{t1}, v{vT0}
    v_max_i32 v{vP0}, 0, v{vP0}
    """)
    stamp(A, "setup done")
    A(f"s_mov_b32 s{sA}, s96\ns_mov_b32 s{sC}, s97")
    emit(A, d1[opt("d1a", 3):])

    def early_compute():
        A(f"v_mov_b32 v{S1}, 0\nv_mov_b32 v{S2}, 0")
        for i in range(8):
            A(f"v_dot2_f32_bf16 v{S1}, v{XR+i}, v{ones}, v{S1}")
            A(f"v_dot2_f32_bf16 v{S2}, v{XR+i}, v{XR+i}, v{S2}")
        for mode in ("quad_perm:[1,0,3,2]", "quad_perm:[2,3,0,1]", "row_half_mirror", "row_mirror"):
            A(f"v_add_f32_dpp v{S1}, v{S1}, v{S1} {mode} row_mask:0xf bank_mask:0xf")
            A(f"v_add_f32_dpp v{S2}, v{S2}, v{S2} {mode} row_mask:0xf bank_mask:0xf")
        A(f"""
        v_mov_b32 v190, v{S1}
        v_mov_b32 v191, v{S2}
        v_lshrrev_b32 v{vT0}, 5, v{vL}
        v_lshlrev_b32 v{vT0}, 3, v{vT0}
        v_permlane16_swap_b32 v{S1}, v190
        v_permlane16_swap_b32 v{S2}, v191
        v_add_f32 v{S1}, v{S1}, v190
        v_add_f32 v{S2}, v{S2}, v191
        v_mul_f32 v{S1}, 0x3b000000, v{S1}
        v_mul_f32 v{S2}, 0x3b000000, v{S2}
        v_fma_f32 v{S2}, -v{S1}, v{S1}, v{S2}
        v_max_f32 v{S2}, 0, v{S2}
        v_add_f32 v{S2}, {f32hex(1e-5)}, v{S2}
        v_rsq_f32 v{S2}, v{S2}
        s_lshl_b32 s{sA}, s{sRB}, 12
        s_lshl_b32 s{sB}, s{sCB}, 9
        s_add_u32 s{sA}, s{sA}, s{sB}
        s_lshl_b32 s{sB}, s{sW}, 7
        s_add_u32 s{sA}, s{sA}, s{sB}
        s_add_u32 s{sA}, s{sA}, {WS_S1}
        s_mov_b32 exec_lo, 1
        s_mov_b32 exec_hi, 1
        """)
        A(f"buffer_store_dwordx2 v[{S1}:{S2}], v{vT0}, {WSS}, s{sA} offen sc1", tag="est")
        A("s_mov_b64 exec, -1")

    def reads(i, sidx):
        slot = i % 3
        it = []
        if slot < 2:
            va, wt, so = (vA0, vA1)[sidx], vWt, slot * SLOT
        else:
            va, wt, so = (vA0b, vA1b)[sidx], vWtb, 0
        tag = f"r{i}_{sidx}"
        for sec in range(3):
            for hf in range(2):
                it.append((f"ds_read_b64_tr_b16 v[{Wf[sidx]+sec*4+hf*2}:{Wf[sidx]+sec*4+hf*2+1}], v{wt} offset:{so + sidx*12288 + sec*1024 + hf*512}", tag))
        for t in range(5):
            it.append((f"ds_read_b128 v[{Af[sidx]+4*t}:{Af[sidx]+4*t+3}], v{va} offset:{so + t*2048}", tag))
        return it

    def mfmas(i, sidx):
        first = (i == 0 and sidx == 0)
        it = []
        W = lambda sec: v(Wf[sidx] + 4 * sec, 4)
        X = lambda t: v(Af[sidx] + 4 * t, 4)
        def m(acc, a, b):
            c = "0" if first else v(acc, 4)
            it.append((f"{MF} {v(acc,4)}, {a}, {b}, {c}", None))
        for t in range(5):
            m(accQ + 4 * t, W(0), X(t))
            m(accK + 4 * t, W(1), X(t))
            m(accV + 4 * t, X(t), W(2))
        return it


    def nonce_test(lbl):
        A(f"""
        v_readfirstlane_b32 s{sBA}, v{vF}
        s_cmp_lg_u32 s{sBA}, 0
        s_cbranch_scc1 {lbl}
        """)
    def nonce_reprobe():
        A(f"v_mov_b32 v{vT3}, 0")
        A(f"buffer_load_dword v{vF}, v{vT3}, s[{SDBG}:{SDBG+3}], 0 offen sc1")
    def nonce_pub():
        A(f"v_mov_b32 v{vT1}, {NONW}\nds_write_b32 v{vT1}, v{vF}")
    def p0(tag):
        A(f"buffer_load_dword v{vF}, v{vP0}, {WSS}, 0 offen offset:{WS_F1} sc1", tag=tag)

    A.wait_vm("e")
    early_compute()
    SIG = opt("sig0", 2)
    POLL = opt("poll", 5)
    b2 = []
    for st in range(3):
        b2 += k_dma(SWO, sS2, st, sL2, st * 4096, f"b2_{st}")
    for i in range(8):
        A.wait_vm(f"c{i}")
        if i == 0:
            spin(A, "~non", nonce_test, nonce_reprobe, 0x20000, True, nonce_pub, 2)
        if i == SIG:
            A.wait_vm("est")
        if i == POLL + 1:
            spin(A, "p0", flag_test(A, 1, "-1"), lambda: p0(None))
        A("s_waitcnt lgkmcnt(0)\ns_barrier")
        stamp(A, f"p1 bar{i}")
        dm = dma(i + 2) if i + 2 <= 7 else []
        extra = []
        if i == SIG:
            wg_signal(A, WS_F1, sG, sJ, 1)
        if i == POLL:
            p0("p0")
        if i == POLL + 1:
            extra += [(f"""
            s_lshl_b32 s{sBA}, s{sWH}, 2
            s_add_u32 s{sBA}, s{sBA}, {WS_S1}
            s_lshl_b32 m0, s{sW}, 8
            s_add_u32 m0, m0, {ST}
            buffer_load_dword v{vSl}, {WSS}, s{sBA} offen lds""", "st1")]
        if i == opt("touch_i", 1) and opt("touch", 1):
            extra += [(f"""
            s_cmp_eq_u32 s{sW}, 0
            s_cselect_b32 s76, s{SWO}, s{SWD}
            s_cselect_b32 s77, s{SWO+1}, s{SWD+1}
            s_cselect_b32 s78, s{SWO+2}, s{SWD+2}
            s_mov_b32 s79, 0x20000
            s_cmp_lt_u32 s{sW}, 2
            s_cselect_b32 s76, s76, s{SB3}
            s_cselect_b32 s77, s77, s{SB3+1}
            s_cselect_b32 s78, s78, s{SB3+2}
            s_mul_i32 s{sBA}, s2, {43*128}
            v_lshlrev_b32 v{vT3}, 7, v{vL}
            s_mov_b32 exec_hi, 0x7ff
            buffer_load_dword v{vT2}, v{vT3}, s[76:79], s{sBA} offen
            s_mov_b64 exec, -1""", None)]
        if i == opt("t3_i", 3) and opt("s3pf", 1):
            extra += [(f"""
            s_lshl_b32 s{sBA}, s{sIDX}, 2
            s_add_u32 s{sBA}, s{sBA}, s{sW}
            s_mul_i32 s{sCNT}, s{sBA}, {11*1024}
            s_lshl_b32 s{sBA}, s{sBA}, 12
            v_lshlrev_b32 v{vT3}, 10, v{vL}
            s_mov_b64 exec, 0xf
            buffer_load_dword v{vT2}, v{vT3}, s[{SWO}:{SWO+3}], s{sBA} offen offset:384
            s_mov_b64 exec, 0x7ff
            buffer_load_dword v{vT2}, v{vT3}, s[{SWD}:{SWD+3}], s{sCNT} offen offset:384
            s_mov_b64 exec, -1""", None)]
        if i >= 6:
            extra += b2[:6] if i == 6 else b2[6:]
        if i == 0:
            A(f"v_mov_b32 v{vT1}, {NONW}")
            A(f"ds_read_b32 v{vT2}, v{vT1}", tag="nonrd")
            emit(A, reads(i, 0))
            A.wait_lg("nonrd")
            A(f"v_readfirstlane_b32 s{sNON}, v{vT2}")
        else:
            emit(A, weave(mfmas(i - 1, 1), [(reads(i, 0), 0, 2), (dm[:5], 6, lambda k: k % 2)]))
            dm = dm[5:]
        A.wait_lg(f"r{i}_0")
        rest = dm + extra
        emit(A, weave(mfmas(i, 0), [(reads(i, 1), 0, 2), (rest, 5 if i else 1, 1)]))
    A.wait_lg("r7_1")
    emit(A, mfmas(7, 1))
    stamp(A, "p1 loop done")
    A.wait_vm("st1")
    A("s_barrier")
    KS_[0] = KS(A, 2)
    KS_[0].setup()
    KS_[0].res_loads()
    emit(A, k_dma(SWO, sS2, 3, sW12, 65536, "b2_3"))
    q1 = w3i(range(6))
    L1 = 108
    L2M = 120
    L2R = 140
    csQ, csK, csV = 160, 164, 168
    for t in range(5):
        A(f"ds_read2_b32 v[{L1+2*t}:{L1+2*t+1}], v{vSa} offset0:{16*t} offset1:{128+16*t}", tag="st")
    A(f"v_lshlrev_b32 v{vT2}, 2, v{vJ}")
    A(f"ds_bpermute_b32 v{csV}, v{vT2}, v{accV}", tag="st")
    for t in range(5):
        A(f"ds_read_b128 v[{L2M+4*t}:{L2M+4*t+3}], v{vSc} offset:{64*t}", tag="st2")
        A(f"ds_read_b128 v[{L2R+4*t}:{L2R+4*t+3}], v{vSc} offset:{512+64*t}", tag="st2")
    for r_ in range(4):
        A(f"v_mov_b32_dpp v{csQ+r_}, v{accQ+r_} row_newbcast:0 row_mask:0xf bank_mask:0xf")
        A(f"v_mov_b32_dpp v{csK+r_}, v{accK+r_} row_newbcast:0 row_mask:0xf bank_mask:0xf")
    A(f"""
    s_lshl_b32 s{sC}, s{sRB}, 16
    s_lshl_b32 s{sB}, s{sCB}, 11
    s_add_u32 s{sC}, s{sC}, s{sB}
    s_lshl_b32 s{sB}, s{sW}, 9
    s_add_u32 s{sC}, s{sC}, s{sB}
    s_add_u32 s{sC}, s{sC}, {WS_O}
    """)
    A.wait_lg("st")
    Kp, Qp, Vp = 210, 220, 230

    def fold_kq(acc, cs, P, scale, t):
        a = acc + 4 * t
        for h in range(2):
            A(f"v_pk_fma_f32 v[{a+2*h}:{a+2*h+1}], v[{cs+2*h}:{cs+2*h+1}], v[{L1+2*t}:{L1+2*t+1}], v[{a+2*h}:{a+2*h+1}] op_sel:[0,0,0] op_sel_hi:[1,0,1] neg_lo:[0,1,0] neg_hi:[0,1,0]")
        if scale:
            for h in range(2):
                A(f"v_pk_mul_f32 v[{a+2*h}:{a+2*h+1}], v[{a+2*h}:{a+2*h+1}], v[{L1+2*t}:{L1+2*t+1}] op_sel:[0,1] op_sel_hi:[1,1]")
        for h in range(2):
            A(f"v_cvt_pk_bf16_f32 v{P+2*t+h}, v{a+2*h}, v{a+2*h+1}")

    def fold_v(t):
        a = accV + 4 * t
        for h in range(2):
            A(f"v_pk_fma_f32 v[{a+2*h}:{a+2*h+1}], v[{L2M+4*t+2*h}:{L2M+4*t+2*h+1}], v[{csV}:{csV+1}], v[{a+2*h}:{a+2*h+1}] op_sel:[0,0,0] op_sel_hi:[1,0,1] neg_lo:[1,0,0] neg_hi:[1,0,0]")
        for h in range(2):
            A(f"v_pk_mul_f32 v[{a+2*h}:{a+2*h+1}], v[{a+2*h}:{a+2*h+1}], v[{L2R+4*t+2*h}:{L2R+4*t+2*h+1}]")
        for h in range(2):
            A(f"v_cvt_pk_bf16_f32 v{Vp+2*t+h}, v{a+2*h}, v{a+2*h+1}")

    def attn(step):
        ts = (1, 2) if step == 0 else (3, 4)
        k = lambda t: t - ts[0]
        Sp = lambda t: 172 + 8 * k(t)
        Sc = lambda t: 176 + 8 * k(t)
        X = lambda t, i: 240 + 4 * k(t) + i
        MX = lambda t: 188 + k(t)
        MY = lambda t: 190 + k(t)
        CQ = lambda t: 192 + k(t)
        Pf = lambda t: 172 + 4 * k(t)
        Oa = lambda t: 180 + 4 * k(t)
        Su = lambda t: 240 + 4 * k(t)
        OP = 248 + 4 * step
        for t in (((0,) if step == 0 else ()) + ts):
            fold_kq(accK, csK, Kp, True, t)
        for t in ts:
            fold_kq(accQ, csQ, Qp, False, t)
        for t in ts:
            A(f"{MF16} {v(Sp(t),4)}, {v(Kp+2*(t-1),2)}, {v(Qp+2*t,2)}, {v(biasF if t==1 else biasP,4)}")
            A(f"{MF16} {v(Sc(t),4)}, {v(Kp+2*t,2)}, {v(Qp+2*t,2)}, {v(biasC,4)}")
        if step == 0:
            A.wait_lg("st2")
        for t in (((0,) if step == 0 else ()) + ts):
            fold_v(t)
        for t in ts:
            A(f"v_mul_f32 v{CQ(t)}, {f32hex(0.25*LOG2E)}, v{L1+2*t+1}")
        for t in ts:
            A(f"""
            v_max_f32 v{X(t,0)}, v{Sp(t)}, v{Sp(t)+1}
            v_max_f32 v{X(t,1)}, v{Sp(t)+2}, v{Sp(t)+3}
            v_max_f32 v{X(t,2)}, v{Sc(t)}, v{Sc(t)+1}
            v_max_f32 v{X(t,3)}, v{Sc(t)+2}, v{Sc(t)+3}
            v_max3_f32 v{MX(t)}, v{X(t,0)}, v{X(t,1)}, v{X(t,2)}
            v_max_f32 v{MX(t)}, v{MX(t)}, v{X(t,3)}
            v_mov_b32 v{MY(t)}, v{MX(t)}
            """)
        for sw in ("v_permlane16_swap_b32", "v_permlane32_swap_b32"):
            for t in ts:
                A(f"{sw} v{MX(t)}, v{MY(t)}")
            for t in ts:
                A(f"v_max_f32 v{MX(t)}, v{MX(t)}, v{MY(t)}")
            if sw.startswith("v_permlane16"):
                for t in ts:
                    A(f"v_mov_b32 v{MY(t)}, v{MX(t)}")
        for t in ts:
            A(f"v_mul_f32 v{MX(t)}, v{MX(t)}, v{CQ(t)}")
        for t in ts:
            for i in range(4):
                A(f"v_fma_f32 v{X(t,i)}, v{X(t,i)}, v{CQ(t)}, -v{MX(t)}")
        for t in ts:
            for i in range(4):
                A(f"v_exp_f32 v{X(t,i)}, v{X(t,i)}")
        if step == 1:
            ev, A.every = A.every, None
            A.wait_vm("ost0")
            A("s_barrier")
            wg_signal(A, WS_F1, sG, sJ, 2)
            A.every = ev
        for t in ts:
            A(f"""
            v_cvt_pk_bf16_f32 v{MX(t)}, v{X(t,0)}, v{X(t,1)}
            v_cvt_pk_bf16_f32 v{MY(t)}, v{X(t,2)}, v{X(t,3)}
            """)
        for t in ts:
            A(f"""
            v_perm_b32 v{Pf(t)}, v{MX(t)}, v{MX(t)}, v{selLo}
            v_perm_b32 v{Pf(t)+1}, v{MX(t)}, v{MX(t)}, v{selHi}
            v_perm_b32 v{Pf(t)+2}, v{MY(t)}, v{MY(t)}, v{selLo}
            v_perm_b32 v{Pf(t)+3}, v{MY(t)}, v{MY(t)}, v{selHi}
            """)
        for t in ts:
            A(f"{MF} {v(Su(t),4)}, {v(ones,4)}, {v(Pf(t),4)}, 0")
            A(f"{MF} {v(Oa(t),4)}, {v(Vp+2*(t-1),4)}, {v(Pf(t),4)}, 0")
        for t in ts:
            A(f"v_rcp_f32 v{Su(t)}, v{Su(t)}")
        for t in ts:
            o = Oa(t)
            A(f"""
            v_pk_mul_f32 v[{o}:{o+1}], v[{o}:{o+1}], v[{Su(t)}:{Su(t)+1}] op_sel:[0,0] op_sel_hi:[1,0]
            v_pk_mul_f32 v[{o+2}:{o+3}], v[{o+2}:{o+3}], v[{Su(t)}:{Su(t)+1}] op_sel:[0,0] op_sel_hi:[1,0]
            v_cvt_pk_bf16_f32 v{OP+2*k(t)}, v{o}, v{o+1}
            v_cvt_pk_bf16_f32 v{OP+2*k(t)+1}, v{o+2}, v{o+3}
            """)
        A(f"""
        v_permlane16_swap_b32 v{OP}, v{OP+2}
        v_permlane16_swap_b32 v{OP+1}, v{OP+3}
        s_add_u32 s{sB}, s{sC}, {step*32768}
        """)
        A(f"buffer_store_dwordx4 v[{OP}:{OP+3}], v{vOst}, {WSS}, s{sB} offen sc1", tag=f"ost{step}")


    A.every = (opt("r1per", 40), lambda: emit(A, [q1.pop(0)] if q1 else []))
    attn(0)
    stamp(A, "p1 step A stored")
    attn(1)
    A.every = None
    emit(A, q1)
    stamp(A, "p1 step B stored")


def p2(A):
    K = KS_[0]
    TA = 196
    A(f"""
    v_bfe_u32 v{vT2}, v{vL}, 1, 1
    v_lshlrev_b32 v{vT2}, 4, v{vT2}
    v_and_b32 v{vT3}, 1, v{vL}
    v_lshl_add_u32 v{vT2}, v{vT3}, 3, v{vT2}
    s_lshl_b32 s{t1}, s{sW1}, 6
    v_xor_b32 v{vT2}, s{t1}, v{vT2}
    v_bfe_u32 v{vT0}, v{vL}, 2, 2
    v_and_b32 v{vT1}, 2, v{vT0}
    v_lshlrev_b32 v{vT1}, 4, v{vT1}
    v_xor_b32 v{vT1}, v{vT1}, v{vT2}
    v_lshl_add_u32 v{vT1}, v{vT0}, 7, v{vT1}
    v_lshl_add_u32 v{vT1}, v{vQ}, 10, v{vT1}
    v_add_u32 v{TA}, s{sL2}, v{vT1}
    v_xor_b32 v{TA+1}, 32, v{TA}
    v_xor_b32 v{TA+2}, 64, v{TA}
    v_xor_b32 v{TA+3}, 96, v{TA}
    v_lshrrev_b32 v{vT0}, 2, v{vL}
    v_mul_u32_u24 v{vT0}, 192, v{vT0}
    v_bfe_u32 v{vT1}, v{vL}, 1, 1
    v_mul_u32_u24 v{vT2}, 3072, v{vT1}
    v_add_u32 v{vT0}, v{vT0}, v{vT2}
    v_and_b32 v{vT2}, 1, v{vQ}
    v_lshl_add_u32 v{vT1}, v{vT1}, 1, v{vT2}
    v_and_b32 v{vT2}, 1, v{vL}
    s_lshl_b32 s{t3}, s{sWH}, 2
    s_add_u32 s{t3}, s{t3}, s{sW1}
    v_xor_b32 v{vT3}, s{t3}, v{vT1}
    v_lshl_add_u32 v{vT3}, v{vT3}, 4, v{vT0}
    v_lshl_add_u32 v{VTR3[0]}, v{vT2}, 3, v{vT3}
    s_add_u32 s{t3}, s{t3}, 2
    v_xor_b32 v{vT3}, s{t3}, v{vT1}
    v_lshl_add_u32 v{vT3}, v{vT3}, 4, v{vT0}
    v_lshl_add_u32 v{VTR3[1]}, v{vT2}, 3, v{vT3}
    s_add_u32 s{t3}, s{sWH}, 8
    v_lshl_add_u32 v{vT3}, v{vT2}, 1, s{t3}
    v_xor_b32 v{vT3}, v{vT3}, v{vT1}
    v_lshl_add_u32 v{vT3}, v{vT3}, 4, v{vT0}
    s_lshl_b32 s{t2}, s{sW1}, 3
    v_add_u32 v{VTR3[2]}, s{t2}, v{vT3}
    """)
    A.wait_vm("b2_3")
    for st in range(4):
        if st == 3:
            A(f"s_sub_u32 s{t1}, s{sL2}, s{sW12}\ns_sub_u32 s{t1}, s{t1}, 65536")
            for ct in range(4):
                A(f"v_subrev_u32 v{TA+ct}, s{t1}, v{TA+ct}")
        off = st * 4096 if st < 3 else 0
        for ct in range(4):
            A(f"ds_read_b64_tr_b16 {r(B2reg(st,ct),0,2)}, v{TA+ct} offset:{off}")
            A(f"ds_read_b64_tr_b16 {r(B2reg(st,ct),2,2)}, v{TA+(ct^2)} offset:{off+512}")
    w3w(A, [0, 1, 2])
    wg_poll(A, WS_F1, sG, 2, True)
    stamp(A, "p2 flagsA ok")
    emit(A, K.a_loads(0))
    w3r(A, [0, 1, 2])
    emit(A, w3i([6, 7]))
    A.wait_vm("ost1")
    w3w(A, [3, 4, 5])
    A("s_waitcnt lgkmcnt(0)\ns_barrier")
    wg_signal(A, WS_F1, sG, sJ, 3)
    w3r(A, [3, 4, 5])
    K.mfmas(0, [x for it in w3i([8, 9]) for x in (it, lambda: None, lambda: None)])
    K.reduce(0)
    stamp(A, "p2 h0 stored")
    emit(A, w3i([10, 11]))
    w3w(A, [6, 7, 8])
    wg_poll(A, WS_F1, sG, 3, True)
    stamp(A, "p2 flagsB ok")
    emit(A, K.a_loads(1))
    w3r(A, [6, 7, 8])
    A.wait_vm("hst0")
    w3w(A, [9, 10, 11])
    A("s_waitcnt lgkmcnt(0)\ns_barrier")
    wg_signal(A, WS_F2, sG, sJ, 1)
    emit(A, w3i([12, 13]))
    w3r(A, [9, 10, 11])
    stamp(A, "p2 sig H0")


def p3(A):
    vH4, vH2, vAr, vS2 = 12, 13, 14, 26
    cs = 192
    accs = [32, 80]
    Af = 128
    stts = 160
    wg_poll(A, WS_F2, sG3, 1)
    stamp(A, "p3 flags ok")

    def a_dma(p):
        it = []
        for idx in range(4):
            c, ti = 2 * p + (idx >> 1), idx & 1
            pre = f"""
            s_lshl_b32 s{sC}, s{sG3}, 17
            s_add_u32 s{sC}, s{sC}, s{sW12}
            s_add_u32 s{sC}, s{sC}, {WS_H + (c+4*ti)*16384}
            s_add_u32 m0, s{sW12}, {p*65536 + idx*16384}
            """
            for n in range(4):
                it.append(((pre if n == 0 else "") + f"""
                buffer_load_dwordx4 v{vL16}, {WSS}, s{sC} offen offset:{n*1024} lds""", f"a{p}"))
        return it

    RAW = [stts, accs[0]]
    RES = lambda p, idx: stts + 8 * idx + 4 * p

    def st_loads(p):
        return [(f"""
        s_lshl_b32 s{sA}, s{sG3}, 14
        s_lshl_b32 s{sB}, s{sWH}, 11
        s_add_u32 s{sA}, s{sA}, s{sB}
        s_lshl_b32 s{sB}, s{sW1}, 13
        s_add_u32 s{sA}, s{sA}, s{sB}
        s_add_u32 s{sA}, s{sA}, {WS_ST + 2*p*2048}
        s_lshl_b32 s{sB}, s{sW}, 11
        s_add_u32 m0, s{sB}, {STB + p*8192}
        buffer_load_dwordx4 v{vL16}, {WSS}, s{sA} offen lds
        buffer_load_dwordx4 v{vL16}, {WSS}, s{sA} offen offset:1024 lds""", f"s{p}")]

    def mk(unpk):
        it = []
        def add(t):
            if unpk and t.startswith("v_pk_"):
                for x in unpack_pk(t):
                    it.append((x, None))
            else:
                it.append((t, None))
        return it, add

    def stats(p):
        it, add = mk(1)
        B = [RAW[p] + 8 * idx for idx in range(4)]
        for idx, b in enumerate(B):
            if idx:
                add(f"v_add_u32 v{vS2}, 2048, v{vS2}")
            it.append((f"ds_read2_b64 v[{b}:{b+3}], v{vS2} offset0:0 offset1:16", f"sr{p}"))
            it.append((f"ds_read2_b64 v[{b+4}:{b+7}], v{vS2} offset0:32 offset1:48", f"sr{p}"))
        add(f"v_add_u32 v{vS2}, 2048, v{vS2}")
        it += [lambda: None] * 6
        it.append(lambda: A.wait_lg(f"sr{p}"))
        for b in B:
            add(f"v_pk_add_f32 v[{b}:{b+1}], v[{b}:{b+1}], v[{b+2}:{b+3}]")
            add(f"v_pk_add_f32 v[{b+4}:{b+5}], v[{b+4}:{b+5}], v[{b+6}:{b+7}]")
        for b in B:
            add(f"v_pk_add_f32 v[{b}:{b+1}], v[{b}:{b+1}], v[{b+4}:{b+5}]")
        for sw in ("v_permlane16_swap_b32", "v_permlane32_swap_b32"):
            for b in B:
                add(f"v_mov_b32 v{b+2}, v{b}")
                add(f"v_mov_b32 v{b+3}, v{b+1}")
            for b in B:
                add(f"{sw} v{b}, v{b+2}")
                add(f"{sw} v{b+1}, v{b+3}")
            for b in B:
                add(f"v_pk_add_f32 v[{b}:{b+1}], v[{b}:{b+1}], v[{b+2}:{b+3}]")
        for op in ("v_mul_f32 v{m}, 0x3b000000, v{b}", "v_mul_f32 v{b1}, 0x3b000000, v{b1}", "v_fma_f32 v{b1}, -v{m}, v{m}, v{b1}",
                   "v_max_f32 v{b1}, 0, v{b1}", "v_add_f32 v{b1}, " + f32hex(1e-5) + ", v{b1}", "v_rcp_f32 v{m1}, v{b1}"):
            for idx, b in enumerate(B):
                add(op.format(b=b, b1=b + 1, m=RES(p, idx), m1=RES(p, idx) + 1))
        it.append((f"""
        v_cmp_gt_u32 vcc, 32, v{vL}
        v_cndmask_b32 v{RES(p,0)+2}, v{RES(p,1)+1}, v{RES(p,0)+1}, vcc
        v_cndmask_b32 v{RES(p,2)+2}, v{RES(p,3)+1}, v{RES(p,2)+1}, vcc""", None))
        return it

    def epilogue(p):
        it, add = mk(0)
        Q = accs[p] + 16
        base = f"""
        s_mul_i32 s{sA}, s{sG3}, {8*HHK*1024}
        s_mul_i32 s{sB}, s{sJ3}, 3072
        s_add_u32 s{sA}, s{sA}, s{sB}
        """
        for cc in range(2):
            acc = accs[p] + 24 * cc
            rs = RES(p, 2 * cc) + 2
            for u in range(3):
                for ti in range(2):
                    a = acc + (ti * 3 + u) * 4
                    b = RES(p, 2 * cc + ti)
                    for h in range(2):
                        add(f"v_pk_fma_f32 v[{a+2*h}:{a+2*h+1}], v[{cs+4*u+2*h}:{cs+4*u+2*h+1}], v[{b}:{b+1}], v[{a+2*h}:{a+2*h+1}] op_sel:[0,0,0] op_sel_hi:[1,0,1] neg_lo:[0,1,0] neg_hi:[0,1,0]")
            for u in range(3):
                for r_ in range(4):
                    add(f"v_permlane32_swap_b32 v{acc+u*4+r_}, v{acc+(3+u)*4+r_}")
            PK = acc + 12
            for u in range(3):
                g, up = acc + u * 4, acc + (3 + u) * 4
                for r_ in range(4):
                    add(f"v_max_f32 v{g+r_}, 0, v{g+r_}")
                for h in range(2):
                    add(f"v_pk_mul_f32 v[{g+2*h}:{g+2*h+1}], v[{g+2*h}:{g+2*h+1}], v[{up+2*h}:{up+2*h+1}]")
                for h in range(2):
                    add(f"v_pk_mul_f32 v[{g+2*h}:{g+2*h+1}], v[{g+2*h}:{g+2*h+1}], v[{rs}:{rs+1}] op_sel:[0,0] op_sel_hi:[1,0]")
                for h in range(2):
                    add(f"v_cvt_pk_bf16_f32 v{(PK+2*u if u < 2 else Q+2*cc)+h}, v{g+2*h}, v{g+2*h+1}")
                if u == 1:
                    it.append((base + f"""
                    s_add_u32 s{sA}, s{sA}, {WS_HH + (2*p+cc)*HHK*1024}
                    buffer_store_dwordx4 v[{PK}:{PK+3}], v{vH4}, {WSS}, s{sA} offen sc1""", f"hh{p}"))
        add(f"v_permlane16_swap_b32 v{Q}, v{Q+2}")
        add(f"v_permlane16_swap_b32 v{Q+1}, v{Q+3}")
        it.append((base + f"""
        s_add_u32 s{sA}, s{sA}, {WS_HH + (2*p)*HHK*1024}
        buffer_store_dwordx4 v[{Q}:{Q+3}], v{vH2}, {WSS}, s{sA} offen sc1""", f"hh{p}"))
        return it


    emit(A, a_dma(0) + st_loads(0))
    K = KS_[0]
    K.mfmas(1, [x for it in w3i([14, 15]) for x in (it, lambda: None, lambda: None)])
    K.reduce(1)
    stamp(A, "p2 h1 stored")
    for ks in range(12):
        for u in range(3):
            d = v(cs + 4 * u, 4)
            A(f"{MF} {d}, {r(B3reg(ks,u),0,4)}, {v(ones,4)}, {'0' if ks==0 else d}")
    A(f"""
    v_lshrrev_b32 v{vT0}, 1, v{vQ}
    v_mul_u32_u24 v{vT0}, {4*HHK*1024}, v{vT0}
    v_lshl_add_u32 v{vT0}, v{vJ}, 4, v{vT0}
    v_and_b32 v{vT1}, 1, v{vQ}
    s_lshl_b32 s{sA}, s{sWH}, 10
    s_lshl_b32 s{sB}, s{sW1}, 9
    s_add_u32 s{sA}, s{sA}, s{sB}
    v_lshl_add_u32 v{vH4}, v{vT1}, 8, v{vT0}
    v_add_u32 v{vH4}, s{sA}, v{vH4}
    s_lshl_b32 s{sA}, s{sW}, 8
    s_add_u32 s{sA}, s{sA}, 2048
    v_mul_u32_u24 v{vT1}, {HHK*1024}, v{vT1}
    v_add_u32 v{vH2}, v{vT1}, v{vT0}
    v_add_u32 v{vH2}, s{sA}, v{vH2}
    v_lshlrev_b32 v{vS2}, 3, v{vJ}
    v_lshl_add_u32 v{vS2}, v{vQ}, 9, v{vS2}
    v_add_u32 v{vS2}, {STB}, v{vS2}
    """)

    TB = 204
    def b4addr():
      A(f"""
    v_bfe_u32 v{vT2}, v{vL}, 1, 1
    v_lshlrev_b32 v{vT2}, 4, v{vT2}
    v_and_b32 v{vT3}, 1, v{vL}
    v_lshl_add_u32 v{vT2}, v{vT3}, 3, v{vT2}
    s_lshl_b32 s{t1}, s{sW1}, 6
    v_xor_b32 v{vT2}, s{t1}, v{vT2}
    v_bfe_u32 v{vT0}, v{vL}, 2, 3
    v_and_b32 v{vT1}, 6, v{vT0}
    v_lshlrev_b32 v{vT1}, 4, v{vT1}
    v_xor_b32 v{vT1}, v{vT1}, v{vT2}
    v_lshl_add_u32 v{vT1}, v{vT0}, 7, v{vT1}
    v_lshrrev_b32 v{vT0}, 5, v{vL}
    v_lshl_add_u32 v{vT1}, v{vT0}, 10, v{vT1}
    s_add_u32 s{t1}, s{sW12}, 65536
    v_add_u32 v{TB}, s{t1}, v{vT1}
    v_xor_b32 v{TB+1}, 32, v{TB}
    v_xor_b32 v{TB+2}, 64, v{TB}
    v_xor_b32 v{TB+3}, 96, v{TB}
    """)

    def b4_dma(sts, region):
        it = []
        for n, st in enumerate(sts):
            it += k_dma(SWD, sS4, st, sW12, region + n * 16384, f"b4_{st}", st == 0)
        return it

    def b4_tr(sts):
        it = []
        for n, st in enumerate(sts):
            it.append(lambda st=st: A.wait_vm(f"b4_{st}"))
            for ct in range(4):
                for hf in range(2):
                    it.append((f"ds_read_b64_tr_b16 {r(B4reg(st,ct),hf*2,2)}, v{TB+ct} offset:{n*16384 + hf*2048}", "b4t"))
        return it

    for p in range(2):
        acc = accs[p]
        A.wait_vm([f"a{p}", f"s{p}"])
        A("s_waitcnt lgkmcnt(0)\ns_barrier")
        stamp(A, f"p3 pass{p} start")
        fillv = stats(p)
        if p == 0:
            fillm = []
        else:
            for ct in range(4):
                A(f"v_subrev_u32 v{TB+ct}, 65536, v{TB+ct}")
            fillm = b4_dma([4, 5, 6, 7], 0)
            KS_[0] = KS(A, 4)
            l0 = KS_[0].a_loads(0)
        A(f"v_add_u32 v{vAr}, {p*65536}, v{vL16}")
        rd = lambda ks: [(f"ds_read_b128 {v(Af+((ks%2)*4+idx)*4,4)}, v{vAr} offset:{idx*16384 + ks*1024}", f"f{ks}") for idx in range(4)]
        emit(A, rd(0))
        n = 0
        for ks in range(16):
            nxt = rd(ks + 1) if ks + 1 < 16 else []
            if p == 0 and ks == opt("sig4ks", 1):
                A.wait_vm("hst1")
                w3w(A, [12, 13, 14, 15])
                A("s_barrier")
                wg_signal(A, WS_F2, sG, sJ, 2)
                w3r(A, [12, 13, 14, 15])
            if p == 0 and ks == opt("sig4ks", 1) + 2:
                A("s_waitcnt lgkmcnt(0)\ns_barrier")
                b4addr()
                fillm += b4_dma([0, 1, 2, 3], 65536)
            if p == 0 and ks == opt("pr4ks", 6):
                vprobe(A, WS_F2, sG3, "pr4")
            if p == 0 and ks == opt("tr0ks", 9):
                fillv += b4_tr([0, 1, 2, 3])
            if p == 0 and ks == opt("ck4ks", 12):
                emit(A, fillv)
                fillv = []
                A.wait_lg("b4t")
                vcheck(A, WS_F2, sG3, 2, "pr4")
                fillm += st_loads(1) + a_dma(1)
            if p == 1 and ks == opt("sig5ks", 1):
                A.wait_vm("hh0")
                A("s_barrier")
                wg_signal(A, WS_F3, sG3, sJ3, 1)
            if p == 1 and ks == opt("tr1ks", 7):
                fillv += b4_tr([4, 5, 6, 7])
            if p == 1 and ks == opt("pr5ks", 8):
                vprobe(A, WS_F3, sG, "pr5")
            if p == 1 and ks == opt("dm2ks", 10):
                emit(A, fillv)
                fillv = []
                A.wait_lg("b4t")
                fillm += b4_dma([8, 9, 10], 0)
            if p == 1 and ks == opt("ck5ks", 13):
                vcheck(A, WS_F3, sG, 1, "pr5")
                fillm += l0[:opt("p4n0", 10)]
            A.wait_lg(f"f{ks}")
            for idx in range(4):
                for u in range(3):
                    d = v(acc + (idx * 3 + u) * 4, 4)
                    A(f"{MF} {d}, {r(B3reg(ks,u),0,4)}, {v(Af+((ks%2)*4+idx)*4,4)}, {'0' if ks==0 else d}")
                    n += 1
                    if nxt and u == 0:
                        emit(A, [nxt.pop(0)])
                    elif n > 6:
                        for _ in range(2):
                            if fillv:
                                emit(A, [fillv.pop(0)])
                    if n % opt("p3mper", 3) == 2 and fillm and not (ks < 1):
                        emit(A, [fillm.pop(0)])
        emit(A, fillv + fillm)
        if p == 0:
            for ks in range(12, 16):
                for u in range(3):
                    d = v(cs + 4 * u, 4)
                    A(f"{MF} {d}, {r(B3reg(ks,u),0,4)}, {v(ones,4)}, {d}")
        stamp(A, f"p3 pass{p} mfma done")
        emit(A, epilogue(p))
    stamp(A, "p3 stores issued")
    K = KS_[0]
    emit(A, K.a_loads(0, opt("p4n0", 10)))
    emit(A, b4_tr([8, 9, 10]))
    A("s_waitcnt lgkmcnt(0)")


def p4(A):
    K = KS_[0]
    K.setup()
    A.wait_vm("hh1")
    A("s_barrier")
    wg_signal(A, WS_F3, sG3, sJ3, 2)
    stamp(A, "p3 signalled")
    l1 = K.a_loads(1)
    ck = opt("p4ck", 12)
    fill = [lambda: None] * ck
    fill += [lambda: (wg_poll(A, WS_F3, sG, 2), stamp(A, "p4 flags ok"), emit(A, l1[:10]))]
    rest = l1[10:]
    fill += [(lambda k=k: emit(A, rest[2*k:2*k+2])) for k in range(6)]
    K.mfmas(0, fill)
    K.reduce(0)
    stamp(A, "p4 h0 stored")
    K.mfmas(1)
    K.reduce(1)


def main(path):
    A = Asm()
    label = NAME + "_kernel"
    A.raw("; @launch grid=(256,1,1) block=(256,1,1) lds=163840")
    A.raw('.amdgcn_target "amdgcn-amd-amdhsa--gfx950"\n.text')
    p1(A, label)
    p2(A)
    p3(A)
    p4(A)
    if opt("pad", 0) == 1:
        A.raw("L_padstart:")
        for i in range(2048):
            A(f"v_add3_u32 v{40+(i%8)}, v1, v2, v{40+(i%8)}")
    if opt("pad", 0) == 2:
        A(f"s_mov_b32 s{sA}, 0")
        A.raw("L_padloop:")
        for i in range(64):
            A(f"v_add3_u32 v{40+(i%8)}, v1, v2, v{40+(i%8)}")
        A(f"s_add_u32 s{sA}, s{sA}, 1\ns_cmp_lt_u32 s{sA}, 32\ns_cbranch_scc1 L_padloop")
    if INSTR:
        A("s_waitcnt vmcnt(0) lgkmcnt(0)")
        stamp(A, "end")
        A(f"""
        s_memrealtime s[100:101]
        s_waitcnt lgkmcnt(0)
        v_writelane_b32 v{vSTAMP}, s100, 63
        s_lshl_b32 s{sA}, s2, 2
        s_add_u32 s{sA}, s{sA}, s{sW}
        s_lshl_b32 s{sA}, s{sA}, 8
        s_add_u32 s{sA}, s{sA}, {WS_PROF}
        v_lshlrev_b32 v{vT0}, 2, v{vL}
        buffer_store_dword v{vSTAMP}, v{vT0}, {WSS}, s{sA} offen
        s_waitcnt vmcnt(0)
        """)
        open(path + ".stamps", "w").write("\n".join(STAMPNAMES))
    if opt("dbgt", 0):
        A(f"""
        s_waitcnt vmcnt(0) lgkmcnt(0)
        s_memrealtime s[100:101]
        s_waitcnt lgkmcnt(0)
        v_mov_b32 v{vT0}, s100
        v_mov_b32 v{vT1}, s59
        v_not_b32 v{vT2}, v{vT1}
        v_mov_b32 v{vT3}, 0
        s_mov_b64 exec, 1
        buffer_atomic_umax v{vT0}, v{vT3}, s[{SDBG}:{SDBG+3}], 0 offen offset:16 sc1
        buffer_atomic_umax v{vT1}, v{vT3}, s[{SDBG}:{SDBG+3}], 0 offen offset:20 sc1
        buffer_atomic_umax v{vT2}, v{vT3}, s[{SDBG}:{SDBG+3}], 0 offen offset:24 sc1
        s_waitcnt vmcnt(0)
        """)
    A.raw("L_done:")
    A("s_endpgm")
    A.raw(f""".section .rodata,"a"
.p2align 6
.amdhsa_kernel {label}
  .amdhsa_next_free_vgpr 512
  .amdhsa_next_free_sgpr 102
  .amdhsa_accum_offset 256
  .amdhsa_group_segment_fixed_size 0
  .amdhsa_kernarg_size 80
  .amdhsa_user_sgpr_count 2
  .amdhsa_user_sgpr_kernarg_segment_ptr 1
  .amdhsa_system_sgpr_workgroup_id_x 1
.end_amdhsa_kernel""")
    open(path, "w").write(A.text())
    print("instructions", A.nins, "nops", A.nnop)


if __name__ == "__main__":
    main(sys.argv[1] if len(sys.argv) > 1 else f"k12.s")
```

```python
import sys, os, struct, re
from asmlib import *

NAME = "sequential_preLN__sliding_local_dilated__glu_gated_reglu__prompt"
INSTR = int(os.environ.get("INSTR", "0"))
OPT = dict(x.split("=") for x in os.environ.get("OPT", "").split(",") if x)
def opt(k, d):
    return int(OPT.get(k, d))

WS_ARR = 0x8000
WS_F1 = 0x00000
WS_F2 = 0x10000
WS_F3 = 0x20000
WS_O = 0x100000
WS_H = 0x300000
WS_HH = 0x500000
WS_ST = 0xC00000
WS_PROF = 0xE00000
WS_R3 = 0x1000000
WS_R2 = 0x1400000
WS_R4 = 0x1500000
WS_CS = 0x1700000
WS_S1 = 0x1780000
WS_SIZE = 0x2000000
HHK = 48
OOB = 0x7f000000

sXCC = 3
SX, SWQ, SWS, SOUT, SDBG, SB3, SWO, SWD = 4, 8, 12, 16, 20, 24, 28, 32
sW, sG, sJ, sHB, sCB, sRB, sIDX, sW1, sWH, sW12, sG3, sJ3 = range(36, 48)
sA, sB, sC, sBA, sCNT = 48, 49, 50, 51, 52
sFAST, sNON, sFLG, sFLA, sK4, sB3b = 53, 54, 55, 56, 57, 58
sKC0, sXo0, sXo1, sXo2 = 60, 61, 62, 63
KA = 64
sM1, sM2, sM3, sDiag = 64, 66, 68, 70
sB2l, sB2h, sB4l, sB4h, sB4zl, sB4zh = 72, 73, 74, 75, 76, 77
sSQ, sDUM = 78, 80
t1, t2, t3 = 81, 82, 83
sXl, sXl2, sWl, sWs = 84, 85, 86, 87
sEX0, sEX2, sW0, sHM = 88, 90, 92, 94

vL, vJ, vQ, vL16 = 1, 2, 3, 4
vAo, vF, vFo = 5, 6, 7
vT0, vT1, vT2, vT3 = 8, 9, 10, 11
vSTAMP = 15
vDs = 16
vSt = 17
HRES = 18
ones = 28
VA = 244

SLOT = 34816
STG = 104448
NONW = 162812
ST1 = 162816

LOG2E = 1.4426950408889634
MF = "v_mfma_f32_16x16x32_bf16"
MF16 = "v_mfma_f32_16x16x16_bf16"
WSS = f"s[{SWS}:{SWS+3}]"


def f32hex(x):
    return "0x%08x" % struct.unpack("<I", struct.pack("<f", x))[0]


STAMPN = [0]
STAMPNAMES = []
def stamp(A, name=""):
    if not INSTR:
        return
    if INSTR == 2 and not any(k in name for k in ("start", "end", "loop done", "mfma done", "bar0")):
        return
    i = STAMPN[0]
    STAMPN[0] += 1
    STAMPNAMES.append(name)
    assert i < 60
    A(f"s_memtime s[100:101]\ns_waitcnt lgkmcnt(0)\nv_writelane_b32 v{vSTAMP}, s100, {i}")


def emit(A, items):
    for it in items:
        if callable(it):
            it()
        else:
            A(it[0], tag=it[1])


def weave(main, fills):
    out = []
    pos = [0] * len(fills)
    for i, m in enumerate(main):
        out.append(m)
        for k, (items, start, per) in enumerate(fills):
            if i >= start:
                n = per(i) if callable(per) else per
                out.extend(items[pos[k]:pos[k] + n])
                pos[k] += n
    for k, (items, start, per) in enumerate(fills):
        out.extend(items[pos[k]:])
    return out


def unpack_pk(t):
    mn, rest = t.split(None, 1)
    toks = rest.split()
    ops = [x.strip(",") for x in toks if x.startswith("v[")]
    mods = {x.split(":")[0]: eval(x.split(":", 1)[1]) for x in toks if x.startswith(("op_sel", "neg_"))}
    n = len(ops) - 1
    base = [int(re.match(r"v\[(\d+):", o).group(1)) for o in ops]
    sel_lo = mods.get("op_sel", [0] * n)
    sel_hi = mods.get("op_sel_hi", [1] * n)
    neg_lo = mods.get("neg_lo", [0] * n)
    neg_hi = mods.get("neg_hi", [0] * n)
    op = {"v_pk_add_f32": "v_add_f32", "v_pk_mul_f32": "v_mul_f32", "v_pk_fma_f32": "v_fma_f32"}[mn]
    out = []
    for half, sel, neg in ((0, sel_lo, neg_lo), (1, sel_hi, neg_hi)):
        srcs = [("-" if neg[i] else "") + f"v{base[i+1] + sel[i]}" for i in range(n)]
        out.append(f"{op} v{base[0]+half}, " + ", ".join(srcs))
    return out


def B2reg(st, ct):
    return ("a", 192 + (st * 4 + ct) * 4)
def B4reg(st, ct):
    if st < 4:
        return ("a", 192 + (st * 4 + ct) * 4)
    if st < 7:
        return ("v", 208 + ((st - 4) * 4 + ct) * 4)
    return ("a", ((st - 7) * 4 + ct) * 4)
def B3reg(ks, u):
    return ("a", (ks * 3 + u) * 4)


VD3 = [5, 17, 7]
VTR3 = [204, 205, 206]
sS3, sS2, sS4, sL2 = 72, 73, 74, 75


def w3_dma(ks, base):
    return [(f"""
    s_mul_i32 s{sBA}, s{sW}, 3072
    s_add_u32 m0, s{sBA}, {base}
    s_add_u32 s{sBA}, s{sS3}, {ks*32*2752}
    buffer_load_dwordx4 v{VD3[0]}, s[{SB3}:{SB3+3}], s{sBA} offen lds
    buffer_load_dwordx4 v{VD3[1]}, s[{SB3}:{SB3+3}], s{sBA} offen offset:1024 lds
    buffer_load_dwordx4 v{VD3[2]}, s[{SB3}:{SB3+3}], s{sBA} offen offset:2048 lds""", f"w3_{ks}")]


def w3_tr(A, kss, bases):
    cur = 0
    for ks, base in zip(kss, bases):
        if base - cur + 6144 > 65535:
            for u in range(3):
                A(f"v_add_u32 v{VTR3[u]}, {base - cur}, v{VTR3[u]}")
            cur = base
        for u in range(3):
            for hf in range(2):
                A(f"ds_read_b64_tr_b16 {r(B3reg(ks,u), hf*2, 2)}, v{VTR3[u]} offset:{base - cur + hf*6144}", tag="w3t")
    if cur:
        for u in range(3):
            A(f"v_subrev_u32 v{VTR3[u]}, {cur}, v{VTR3[u]}")


def k_dma(srd_, ssrc, st, sg, c0, tag, zero_w3=False):
    it = []
    for p in range(4):
        z = f"""
        s_cmp_eq_u32 s{sW}, 3
        s_cselect_b32 s{sBA}, {OOB}, s{sBA}""" if zero_w3 else ""
        it.append((f"""
        s_add_u32 m0, s{sg}, {c0 + p*1024}
        s_add_u32 s{sBA}, s{ssrc}, {st*32768 + p*8192}{z}
        buffer_load_dwordx4 v{vDs}, s[{srd_}:{srd_+3}], s{sBA} offen lds""", tag))
    return it


LS = [n * 12288 for n in range(5)]
US = [65536, 77824, 90112, 129024]
W3SLOT = {0: LS[0], 1: LS[1], 2: LS[2], 3: LS[3], 4: LS[4], 5: US[2], 6: US[0], 7: US[1], 8: US[3],
          9: LS[0], 10: LS[1], 11: LS[2], 12: US[2], 13: US[0], 14: US[1], 15: US[3]}
STB = 141312
def w3i(kss):
    return [x for ks in kss for x in w3_dma(ks, W3SLOT[ks])]
def w3w(A, kss):
    A.wait_vm([f"w3_{ks}" for ks in kss])
def w3r(A, kss):
    kss = sorted(kss, key=lambda k: W3SLOT[k])
    w3_tr(A, kss, [W3SLOT[k] for k in kss])

LBL = [0]
def newlbl():
    LBL[0] += 1
    return LBL[0]


def spin(A, tag, test, reprobe, limit=0x40000, only_w0=False, after=None, sleep=0, mid=None):
    n = newlbl()
    A.wait_vm(tag)
    if mid:
        mid()
    saved = list(A.vm)
    A.fence()
    if only_w0:
        A(f"s_cmp_eq_u32 s{sW}, 0\ns_cbranch_scc0 L_skip{n}")
    A(f"s_mov_b32 s{sCNT}, 0")
    A.raw(f"L_wait{n}:")
    test(f"L_go{n}")
    if sleep:
        A(f"s_sleep {sleep}")
    reprobe()
    A(f"""
    s_waitcnt vmcnt(0)
    s_add_u32 s{sCNT}, s{sCNT}, 1
    s_cmp_lt_u32 s{sCNT}, {limit}
    s_cbranch_scc1 L_wait{n}
    """)
    A.raw(f"L_go{n}:")
    A.fence()
    if after:
        after()
    if only_w0:
        A.raw(f"L_skip{n}:")
    A.vm = saved
    A.fence()


def flag_test(A, step, mask):
    def t(lbl):
        A(f"""
        s_add_u32 s{sBA}, s{sNON}, {step}
        v_subrev_u32 v{vF}, s{sBA}, v{vF}
        v_cmp_lt_u32 vcc, 15, v{vF}
        s_and_b64 vcc, vcc, {mask}
        s_cbranch_scc0 {lbl}
        """)
    return t


PS = [60, 84, 88, 8]
def wg_signal(A, base, sg, sj, step):
    A(f"""
    s_add_u32 s{sBA}, s{sNON}, {step}
    v_mov_b32 v{vT0}, s{sBA}
    v_mov_b32 v{vT1}, 0
    s_lshl_b32 s{sBA}, s{sg}, 9
    s_lshr_b32 s{sCNT}, s{sj}, 2
    s_lshl_b32 s{sCNT}, s{sCNT}, 7
    s_add_u32 s{sBA}, s{sBA}, s{sCNT}
    s_and_b32 s{sCNT}, s{sj}, 3
    s_lshl_b32 s{sCNT}, s{sCNT}, 2
    s_add_u32 s{sBA}, s{sBA}, s{sCNT}
    s_add_u32 s{sBA}, s{sBA}, {base}
    s_mov_b64 exec, s[{sW0}:{sW0+1}]
    """)
    A(f"buffer_store_dword v{vT0}, v{vT1}, {WSS}, s{sBA} offen sc1", tag="~wgf")
    A("s_mov_b64 exec, -1")


def wg_poll(A, base, sg, step, half=False):
    n = newlbl()
    nl = 2 if half else 4
    A("s_waitcnt lgkmcnt(0)")
    A.fence()
    A(f"""
    s_cmp_eq_u32 s{sW}, 0
    s_cbranch_scc0 L_skip{n}
    s_lshl_b32 s{sBA}, s{sg}, 9
    """ + (f"""s_lshl_b32 s{sCNT}, s{sHB}, 8
    s_add_u32 s{sBA}, s{sBA}, s{sCNT}
    """ if half else "") + f"""
    s_add_u32 s{sBA}, s{sBA}, {base}
    s_add_u32 s96, s{SWS}, s{sBA}
    s_addc_u32 s97, s{SWS+1}, 0
    s_add_u32 s98, s{sNON}, {step}
    s_mov_b32 s{sCNT}, 0
    """)
    A.raw(f"L_wait{n}:")
    for i in range(nl):
        A(f"s_load_dwordx4 s[{PS[i]}:{PS[i]+3}], s[96:97], {i*128} glc")
    A("s_waitcnt lgkmcnt(0)")
    first = True
    for i in range(nl):
        for k in range(4):
            if first:
                A(f"s_sub_u32 s{sBA}, s{PS[i]+k}, s98")
                first = False
            else:
                A(f"s_sub_u32 s99, s{PS[i]+k}, s98\ns_or_b32 s{sBA}, s{sBA}, s99")
    A(f"""
    s_cmp_lt_u32 s{sBA}, 16
    s_cbranch_scc1 L_skip{n}
    s_add_u32 s{sCNT}, s{sCNT}, 1
    s_cmp_lt_u32 s{sCNT}, 0x40000
    s_cbranch_scc1 L_wait{n}
    """)
    A.raw(f"L_skip{n}:")
    A("s_barrier")


def vprobe(A, base, sg, tag):
    A(f"""
    s_lshl_b32 s{sBA}, s{sg}, 9
    s_add_u32 s{sBA}, s{sBA}, {base}
    v_lshrrev_b32 v{vT3}, 2, v{vJ}
    v_lshlrev_b32 v{vT3}, 7, v{vT3}
    v_and_b32 v{vT2}, 3, v{vJ}
    v_lshl_add_u32 v{vT3}, v{vT2}, 2, v{vT3}
    """)
    A(f"buffer_load_dword v{vF}, v{vT3}, {WSS}, s{sBA} offen sc1", tag=tag)

def vcheck(A, base, sg, step, tag):
    spin(A, tag, flag_test(A, step, "-1"), lambda: vprobe(A, base, sg, None))


def srd(A, d, p, n):
    A(f"""
    s_mov_b32 s{d}, s{p}
    s_and_b32 s{d+1}, s{p+1}, 0xffff
    s_mov_b32 s{d+2}, {n}
    s_mov_b32 s{d+3}, 0x20000
    """)


KS_ = [None]
LATE_ = [None]
class KS:
    def __init__(self, A, which):
        self.A, self.P2 = A, which == 2
        self.nst = 4 if self.P2 else 11
        self.RW = [12, 13, 14] if self.P2 else [204, 205, 206]
        self.vRr, self.vXo = (26, 27) if self.P2 else (207, 27)
        self.acc = [32, 64]
        self.T = 96
        self.U = 120
        if self.P2:
            self.Afr = lambda h, t, st: v(128 + ((h * 2 + t) * 4 + st) * 4, 4)
            self.Bf = B2reg
        else:
            def Afr(h, t, st):
                idx = (h * 2 + t) * 11 + st
                return a_(64 + idx * 4, 4) if idx < 32 else v(128 + (idx - 32) * 4, 4)
            self.Afr = Afr
            self.Bf = B4reg
        self.RED = [0, 0] if self.P2 else [0, 24576]
        self.REDB = 104448 if self.P2 else 0

    def setup(self):
        A = self.A
        for k in range(1, 4):
            A(f"""
            s_xor_b32 s{t1}, s{sW}, {k}
            s_mul_i32 s{t1}, s{t1}, 6144
            s_add_u32 s{t1}, s{t1}, {(k-1)*2048 + self.REDB}
            v_add_u32 v{self.RW[k-1]}, s{t1}, v{vL16}
            """)
        A(f"""
        s_mul_i32 s{t1}, s{sW}, 6144
        s_add_u32 s{t1}, s{t1}, {self.REDB}
        v_add_u32 v{self.vRr}, s{t1}, v{vL16}
        v_lshlrev_b32 v{self.vXo}, 10, v{vJ}
        v_lshl_add_u32 v{self.vXo}, v{vQ}, 3, v{self.vXo}
        """)

    def rowcol(self, h, dst):
        return f"""
        s_lshl_b32 s{dst}, s{sRB}, 16
        s_lshl_b32 s{sB}, s{sWH}, 14
        s_add_u32 s{dst}, s{dst}, s{sB}
        s_lshl_b32 s{sB}, s{sCB}, 7
        s_add_u32 s{dst}, s{dst}, s{sB}
        s_lshl_b32 s{sB}, s{sW1}, 6
        s_add_u32 s{dst}, s{dst}, s{sB}
        s_add_u32 s{dst}, s{dst}, {h*32768}
        """

    def res_loads(self):
        A = self.A
        for h in range(2):
            A(self.rowcol(h, sC))
            for i in range(2):
                A(f"buffer_load_dwordx2 v[{HRES+4*h+2*i}:{HRES+4*h+2*i+1}], v{self.vXo}, s[{SX}:{SX+3}], s{sC} offen offset:{i*32}", tag="res")

    def a_loads(self, h, skip=0):
        base = WS_O if self.P2 else WS_HH
        pitch = 16 if self.P2 else HHK
        k0 = f"s_lshl_b32 s{sB}, s{sW}, 2" if self.P2 else f"s_mov_b32 s{sB}, s{sK4}"
        it = []
        for t in range(2):
            pre = f"""
            s_xor_b32 s{sA}, s{sWH}, {t}
            s_lshl_b32 s{sB}, s{sRB}, 2
            s_add_u32 s{sA}, s{sA}, s{sB}
            s_add_u32 s{sA}, s{sA}, {2*h}
            s_mul_i32 s{sA}, s{sA}, {pitch}
            {k0}
            s_add_u32 s{sA}, s{sA}, s{sB}
            s_lshl_b32 s{sA}, s{sA}, 10
            s_add_u32 s{sA}, s{sA}, {base}
            """
            for st in range(self.nst):
                if st % 4 == 0 and st > 0:
                    pre += f"s_add_u32 s{sA}, s{sA}, 4096\n"
                if t * self.nst + st < skip:
                    continue
                it.append((pre + f"buffer_load_dwordx4 {self.Afr(h,t,st)}, v{vL16}, {WSS}, s{sA} offen offset:{(st%4)*1024}", f"a{h}_{t}_{st}"))
                pre = ""
        return it

    def mfmas(self, h, fill=()):
        A = self.A
        fill = list(fill)
        acc = self.acc[h]
        for t in range(2):
            for st in range(self.nst):
                A.wait_vm(f"a{h}_{t}_{st}")
                for ct in range(4):
                    d = v(acc + (t * 4 + ct) * 4, 4)
                    A(f"{MF} {d}, {r(self.Bf(st,ct),0,4)}, {self.Afr(h,t,st)}, {'0' if st==0 else d}")
                    if ct == 1 and fill:
                        emit(A, [fill.pop(0)])
                if t == 1 and st == 1:
                    for i in range(2):
                        A(f"ds_write_b128 v{self.RW[0]}, {v(acc+(2+i)*4,4)} offset:{self.RED[h]+i*1024}")
        emit(A, fill)
        for k in (2, 3):
            for i in range(2):
                A(f"ds_write_b128 v{self.RW[k-1]}, {v(acc+(k*2+i)*4,4)} offset:{self.RED[h]+i*1024}")

    def reduce(self, h, pre_barrier=None, post_barrier=None):
        A = self.A
        acc, T, U = self.acc[h], self.T, self.U
        if pre_barrier:
            pre_barrier()
        A("s_waitcnt lgkmcnt(0)\ns_barrier")
        for k in range(3):
            for i in range(2):
                A(f"ds_read_b128 {v(T+(k*2+i)*4,4)}, v{self.vRr} offset:{self.RED[h]+k*2048+i*1024}", tag=f"rd{k}")
        if post_barrier:
            post_barrier()
        A.wait_vm("res")
        for i in range(4):
            A(f"v_lshlrev_b32 v{U+2*i}, 16, v{HRES+4*h+i}")
            A(f"v_and_b32 v{U+2*i+1}, 0xffff0000, v{HRES+4*h+i}")
        for i in range(4):
            A(f"v_pk_add_f32 v[{acc+2*i}:{acc+2*i+1}], v[{acc+2*i}:{acc+2*i+1}], v[{U+2*i}:{U+2*i+1}]")
        for k in range(3):
            A.wait_lg(f"rd{k}")
            for i in range(4):
                b = T + k * 8 + 2 * i
                A(f"v_pk_add_f32 v[{acc+2*i}:{acc+2*i+1}], v[{acc+2*i}:{acc+2*i+1}], v[{b}:{b+1}]")
        PK = HRES + 4 * h
        for i in range(4):
            A(f"v_cvt_pk_bf16_f32 v{PK+i}, v{acc+2*i}, v{acc+2*i+1}")
        if self.P2:
            G, S_ = acc + 8, acc + 12
            A(f"""
            s_lshl_b32 s{sC}, s{sRB}, 16
            s_lshl_b32 s{sB}, s{sWH}, 14
            s_add_u32 s{sC}, s{sC}, s{sB}
            s_lshl_b32 s{sB}, s{sCB}, 11
            s_add_u32 s{sC}, s{sC}, s{sB}
            s_lshl_b32 s{sB}, s{sW1}, 10
            s_add_u32 s{sC}, s{sC}, s{sB}
            s_add_u32 s{sC}, s{sC}, {WS_H + h*32768}
            {MF} {v(G,4)}, {v(PK,4)}, {v(PK,4)}, 0
            {MF} {v(S_,4)}, {v(ones,4)}, {v(PK,4)}, 0
            """)
            A(f"buffer_store_dwordx4 v[{PK}:{PK+3}], v{vL16}, {WSS}, s{sC} offen sc1", tag=f"hst{h}")
            A(f"""
            v_lshlrev_b32 v{vT2}, 3, v{vJ}
            s_lshl_b32 s{sC}, s{sRB}, 13
            s_lshl_b32 s{sB}, s{sWH}, 11
            s_add_u32 s{sC}, s{sC}, s{sB}
            s_lshl_b32 s{sB}, s{sCB}, 8
            s_add_u32 s{sC}, s{sC}, s{sB}
            s_lshl_b32 s{sB}, s{sW1}, 7
            s_add_u32 s{sC}, s{sC}, s{sB}
            s_add_u32 s{sC}, s{sC}, {WS_ST + h*4096}
            v_cndmask_b32 v{S_+1}, v{G}, v{G+1}, s[{sM1}:{sM1+1}]
            v_cndmask_b32 v{S_+1}, v{S_+1}, v{G+2}, s[{sM2}:{sM2+1}]
            v_cndmask_b32 v{S_+1}, v{S_+1}, v{G+3}, s[{sM3}:{sM3+1}]
            s_mov_b64 exec, s[{sDiag}:{sDiag+1}]
            """)
            A(f"buffer_store_dwordx2 v[{S_}:{S_+1}], v{vT2}, {WSS}, s{sC} offen sc1", tag=f"hst{h}")
            A("s_mov_b64 exec, -1")
        else:
            A(self.rowcol(h, sC))
            for i in range(2):
                A(f"buffer_store_dwordx2 v[{PK+2*i}:{PK+2*i+1}], v{self.vXo}, s[{SOUT}:{SOUT+3}], s{sC} offen offset:{i*32}")


def p1(A, label):
    ST = ST1
    vWe, vWo_, vA0, vA1, vWt = 32, 33, 34, 35, 36
    vA0b, vA1b, vWtb = 37, 38, 39
    vSa, vSc, vSl, vOst = 40, 41, 42, 43
    vP0 = 44
    accQ, accK, accV = 48, 68, 88
    Af = [108, 128]
    Wf = [148, 160]
    biasP, biasC, biasF, selLo, selHi = 196, 200, 204, 208, 209
    WO = 10240
    XR = 180
    S1, S2 = 188, 189
    vXr = 192

    A.raw(".p2align 8\n.globl %s\n.type %s,@function\n%s:" % (label, label, label))
    if INSTR:
        A("s_memrealtime s[100:101]\ns_waitcnt lgkmcnt(0)\nv_writelane_b32 v15, s100, 62")
        stamp(A, "start")
    xrot = f"s_and_b32 s{sB}, s2, 7" if opt("xrot", 1) else f"s_mov_b32 s{sB}, 0"
    crot = {0: f"s_mov_b32 s{sA}, 0", 1: f"s_lshl_b32 s{sA}, s{sA}, 2", 2: f"s_mov_b32 s{sA}, s{sCB}",
            3: f"s_lshr_b32 s{sA}, s{sIDX}, 3\ns_and_b32 s{sA}, s{sA}, 1\ns_lshl_b32 s{sA}, s{sA}, 2\ns_add_u32 s{sA}, s{sA}, s{sCB}"}[opt("crot", 2)]
    A(f"""
    s_cmp_ge_u32 s2, 256
    s_cbranch_scc1 L_done
    s_load_dwordx16 s[{KA}:{KA+15}], s[0:1], 0
    s_load_dwordx4 s[{KA+16}:{KA+19}], s[0:1], 64
    s_memrealtime s[98:99]
    v_and_b32 v{vL}, 63, v0
    v_lshrrev_b32 v{vT0}, 6, v0
    s_lshr_b32 s{sIDX}, s2, 3
    s_and_b32 s{sG}, s2, 7
    s_lshl_b32 s{sG}, s{sG}, 1
    v_readfirstlane_b32 s{sW}, v{vT0}
    s_lshr_b32 s{sA}, s{sIDX}, 4
    s_add_u32 s{sG}, s{sG}, s{sA}
    s_and_b32 s{sJ}, s{sIDX}, 15
    s_lshr_b32 s{sHB}, s{sJ}, 3
    s_and_b32 s{sCB}, s{sJ}, 7
    s_lshl_b32 s{sRB}, s{sG}, 1
    s_add_u32 s{sRB}, s{sRB}, s{sHB}
    s_lshr_b32 s{sWH}, s{sW}, 1
    s_and_b32 s{sW1}, s{sW}, 1
    v_lshrrev_b32 v{vT0}, 3, v{vL}
    v_and_b32 v{vT1}, 7, v{vL}
    v_and_b32 v{vT2}, 6, v{vT0}
    v_xor_b32 v{vT2}, v{vT1}, v{vT2}
    v_lshlrev_b32 v{vT2}, 4, v{vT2}
    v_lshl_add_u32 v{vDs}, v{vT0}, 10, v{vT2}
    v_and_b32 v{vT2}, 2, v{vT0}
    v_xor_b32 v{vT2}, v{vT1}, v{vT2}
    v_lshlrev_b32 v{vT2}, 4, v{vT2}
    v_mul_u32_u24 v{vWe}, 3072, v{vT0}
    v_add_u32 v{vWe}, v{vWe}, v{vT2}
    v_xor_b32 v{vWo_}, 64, v{vWe}
    v_add_u32 v{vWo_}, 24576, v{vWo_}
    s_lshr_b32 s{sA}, s{sIDX}, 3
    s_add_u32 s{sA}, s{sA}, s{sCB}
    s_and_b32 s{sA}, s{sA}, 1
    {crot}
    {xrot}
    s_add_u32 s{sKC0}, s{sA}, s{sB}
    s_lshl_b32 s{sA}, s{sRB}, 16
    s_sub_u32 s{sA}, s{sA}, 16384
    s_lshl_b32 s{sB}, s{sW}, 14
    s_add_u32 s{sXo0}, s{sA}, s{sB}
    s_add_u32 s{sXo1}, s{sXo0}, 8192
    s_max_i32 s{sXo0}, s{sXo0}, 0
    s_max_i32 s{sXo1}, s{sXo1}, 0
    s_lshl_b32 s{sC}, s{sWH}, 13
    s_add_u32 s{sXo2}, s{sA}, s{sC}
    s_add_u32 s{sXo2}, s{sXo2}, 65536
    s_lshl_b32 s{sXl}, s{sW}, 11
    s_lshl_b32 s{sXl2}, s{sWH}, 10
    s_add_u32 s{sXl2}, s{sXl2}, 8192
    s_mul_i32 s{sWl}, s{sW}, 6144
    s_add_u32 s{sWl}, s{sWl}, {WO}
    s_mul_i32 s{sWs}, s{sW}, 49152
    s_lshl_b32 s{sB}, s{sCB}, 7
    s_add_u32 s{sWs}, s{sWs}, s{sB}
    s_cmp_eq_u32 s{sW}, 0
    s_cselect_b32 s{sEX0}, 0xffffff00, -1
    s_mov_b32 s{sEX0+1}, -1
    s_cselect_b32 s{sW0}, 1, 0
    s_mov_b32 s{sW0+1}, 0
    s_cmp_eq_u32 s{sW1}, 0
    s_cselect_b32 s{sEX2}, -1, 0
    s_cselect_b32 s{sEX2+1}, 0, -1
    s_lshl_b32 s{sFLG}, s{sG}, 8
    v_and_b32 v{vJ}, 15, v{vL}
    v_lshrrev_b32 v{vQ}, 4, v{vL}
    v_lshlrev_b32 v{vL16}, 4, v{vL}
    v_lshlrev_b32 v{vXr}, 5, v{vL}
    s_waitcnt lgkmcnt(0)
    """)
    srd(A, SWQ, KA + 2, 512 * 1536 * 2)
    srd(A, SX, KA + 0, 2048 * 512 * 2)
    stamp(A, "kernarg ok")

    def dma(i):
        slot = i % 3
        it = []
        tag = f"c{i}"
        it.append((f"""
        s_add_u32 s{sA}, s{sKC0}, {i}
        s_and_b32 s{sA}, s{sA}, 7
        s_mul_i32 s{sC}, s{sA}, {64*3072}
        s_add_u32 s{sC}, s{sC}, s{sWs}
        s_lshl_b32 s{sA}, s{sA}, 7
        s_add_u32 m0, s{sWl}, {slot*SLOT}
        buffer_load_dwordx4 v{vWe}, s[{SWQ}:{SWQ+3}], s{sC} offen lds""", tag))
        for sec in (1, 2):
            it.append((f"buffer_load_dwordx4 v{vWe}, s[{SWQ}:{SWQ+3}], s{sC} offen offset:{sec*1024} lds", tag))
        for sec in range(3):
            pre = f"s_add_u32 m0, s{sWl}, {slot*SLOT+3072}\n" if sec == 0 else ""
            it.append((pre + f"buffer_load_dwordx4 v{vWo_}, s[{SWQ}:{SWQ+3}], s{sC} offen offset:{sec*1024} lds", tag))
        it.append((f"""
        s_mov_b64 exec, s[{sEX0}:{sEX0+1}]
        s_add_u32 m0, s{sXl}, {slot*SLOT}
        s_add_u32 s{sB}, s{sXo0}, s{sA}
        buffer_load_dwordx4 v{vDs}, s[{SX}:{SX+3}], s{sB} offen lds
        s_mov_b64 exec, -1""", tag))
        it.append((f"""
        s_add_u32 m0, s{sXl}, {slot*SLOT+1024}
        s_add_u32 s{sB}, s{sXo1}, s{sA}
        buffer_load_dwordx4 v{vDs}, s[{SX}:{SX+3}], s{sB} offen lds""", tag))
        it.append((f"""
        s_mov_b64 exec, s[{sEX2}:{sEX2+1}]
        s_add_u32 m0, s{sXl2}, {slot*SLOT}
        s_add_u32 s{sB}, s{sXo2}, s{sA}
        buffer_load_dwordx4 v{vDs}, s[{SX}:{SX+3}], s{sB} offen lds
        s_mov_b64 exec, -1""", tag))
        return it


    if opt("s3pf", 1):
        A(f"""
        s_lshl_b32 s{sA}, s{sIDX}, 2
        s_add_u32 s{sA}, s{sA}, s{sW}
        s_mul_i32 s{sA}, s{sA}, 12288
        v_lshlrev_b32 v{vT3}, 10, v{vL}
        s_mov_b64 exec, 0xfff
        buffer_load_dword v{vF}, v{vT3}, s[{SWQ}:{SWQ+3}], s{sA} offen offset:384
        s_mov_b64 exec, -1
        """)
    emit(A, dma(0))
    srd(A, SDBG, KA + 16, 256)
    A(f"""
    s_lshl_b32 s98, s98, 5
    s_or_b32 s98, s98, 16
    v_mov_b32 v{vT0}, s98
    v_mov_b32 v{vT1}, 0
    v_mov_b32 v{vT2}, 0
    s_lshl_b32 s99, s2, 2
    s_add_u32 s99, s99, s{sW}
    s_and_b32 s99, s99, 0xffffffe3
    s_cmp_eq_u32 s99, 0
    s_cselect_b64 exec, 1, 0
    """)
    A(f"buffer_atomic_cmpswap v[{vT0}:{vT1}], v{vT2}, s[{SDBG}:{SDBG+3}], 0 offen sc1", tag="~cas")
    A(f"""
    s_mov_b64 exec, -1
    s_lshl_b32 s{sA}, s{sRB}, 16
    s_lshl_b32 s{sB}, s{sCB}, 13
    s_add_u32 s{sA}, s{sA}, s{sB}
    s_lshl_b32 s{sB}, s{sW}, 11
    s_add_u32 s{sA}, s{sA}, s{sB}
    """)
    A(f"buffer_load_dwordx4 v[{XR}:{XR+3}], v{vXr}, s[{SX}:{SX+3}], s{sA} offen", tag="e")
    A(f"buffer_load_dwordx4 v[{XR+4}:{XR+7}], v{vXr}, s[{SX}:{SX+3}], s{sA} offen offset:16", tag="e")
    if opt("cpf", 1):
        A("s_getpc_b64 s[96:97]")
        A.raw("L_pc:")
        A(f"""
        s_lshl_b32 s{sA}, s{sIDX}, 10
        v_lshrrev_b32 v{vT3}, 5, v0
        v_lshlrev_b32 v{vT3}, 7, v{vT3}
        v_add_u32 v{vT3}, s{sA}, v{vT3}
        v_min_u32 v{vT3}, L_done-L_pc, v{vT3}
        global_load_dword v{vF}, v{vT3}, s[96:97]
        """)
    stamp(A, "c0+early issued")
    srd(A, SWO, KA + 4, 512 * 512 * 2)
    srd(A, SWS, KA + 18, WS_SIZE)
    srd(A, SOUT, KA + 14, 2048 * 512 * 2)
    srd(A, SWD, KA + 12, 1376 * 512 * 2)
    if opt("tlb", 0):
        A(f"""
        v_lshlrev_b32 v{vT3}, 21, v{vL}
        s_mov_b64 exec, 0xfff
        buffer_load_dword v{vF}, v{vT3}, {WSS}, 0 offen offset:2048
        s_mov_b64 exec, 1
        buffer_load_dword v{vF}, v{vT3}, s[{SOUT}:{SOUT+3}], 0 offen
        buffer_load_dword v{vF}, v{vT3}, s[{SWO}:{SWO+3}], 0 offen
        buffer_load_dword v{vF}, v{vT3}, s[{SWD}:{SWD+3}], 0 offen
        s_mov_b64 exec, -1
        """)
    A(f"""
    s_cmp_eq_u32 s{sW1}, 0
    s_cselect_b32 s{SB3}, s{KA+8}, s{KA+10}
    s_cselect_b32 s{SB3+1}, s{KA+9}, s{KA+11}
    s_and_b32 s{SB3+1}, s{SB3+1}, 0xffff
    s_mov_b32 s{SB3+2}, {512*1376*2}
    s_mov_b32 s{SB3+3}, 0x20000
    v_mov_b32 v{ones}, 0x3f803f80
    v_mov_b32 v{ones+1}, 0x3f803f80
    v_mov_b32 v{ones+2}, 0x3f803f80
    v_mov_b32 v{ones+3}, 0x3f803f80
    v_lshrrev_b32 v{vT0}, 3, v{vJ}
    v_and_b32 v{vT1}, 7, v{vJ}
    v_lshlrev_b32 v{vT1}, 7, v{vT1}
    v_lshl_add_u32 v{vT0}, v{vT0}, 10, v{vT1}
    v_and_b32 v{vT1}, 6, v{vJ}
    v_xor_b32 v{vT1}, v{vQ}, v{vT1}
    v_lshl_add_u32 v{vA0}, v{vT1}, 4, v{vT0}
    v_xor_b32 v{vA1}, 64, v{vA0}
    v_bfe_u32 v{vT0}, v{vL}, 2, 2
    v_bfe_u32 v{vT1}, v{vL}, 1, 1
    s_lshl_b32 s{sA}, s{sW}, 1
    v_add_u32 v{vT1}, s{sA}, v{vT1}
    v_and_b32 v{vT2}, 1, v{vQ}
    v_lshlrev_b32 v{vT2}, 2, v{vT2}
    v_xor_b32 v{vT1}, v{vT1}, v{vT2}
    v_and_b32 v{vT2}, 2, v{vT0}
    v_xor_b32 v{vT1}, v{vT1}, v{vT2}
    v_lshlrev_b32 v{vT1}, 4, v{vT1}
    v_lshl_add_u32 v{vT1}, v{vT0}, 7, v{vT1}
    v_and_b32 v{vT2}, 1, v{vL}
    v_lshl_add_u32 v{vT1}, v{vT2}, 3, v{vT1}
    v_mul_u32_u24 v{vT2}, 3072, v{vQ}
    v_add_u32 v{vT1}, v{vT1}, v{vT2}
    v_add_u32 v{vWt}, {WO}, v{vT1}
    v_add_u32 v{vA0b}, {2*SLOT}, v{vA0}
    v_add_u32 v{vA1b}, {2*SLOT}, v{vA1}
    v_add_u32 v{vWtb}, {2*SLOT}, v{vWt}
    v_lshrrev_b32 v{vT0}, 3, v{vL}
    v_mul_u32_u24 v{vT0}, {SLOT}, v{vT0}
    v_and_b32 v{vT1}, 7, v{vL}
    v_lshl_add_u32 v{vT0}, v{vT1}, 4, v{vT0}
    s_mov_b64 exec, 0xffffff
    ds_write_b128 v{vT0}, v[{ones}:{ones+3}]
    s_mov_b64 exec, -1
    v_mov_b32 v{vT3}, 0
    s_cmp_eq_u32 s{sW}, 0
    s_cselect_b64 exec, -1, 0
    """)
    A(f"buffer_load_dword v{vF}, v{vT3}, s[{SDBG}:{SDBG+3}], 0 offen sc1", tag="~non")
    A("s_mov_b64 exec, -1")
    d1 = dma(1)
    emit(A, d1[:opt("d1a", 3)])
    A(f"s_mov_b32 s96, s{sA}\ns_mov_b32 s97, s{sC}")
    role = f"""
    s_and_b32 s{t1}, s2, 7
    s_lshr_b32 s{t2}, s{t1}, 1
    s_lshl_b32 s{sG3}, s{t2}, 2
    s_lshr_b32 s{t2}, s{sIDX}, 3
    s_add_u32 s{sG3}, s{sG3}, s{t2}
    s_and_b32 s{t1}, s{t1}, 1
    s_lshl_b32 s{sJ3}, s{t1}, 3
    s_and_b32 s{t2}, s{sIDX}, 7
    s_add_u32 s{sJ3}, s{sJ3}, s{t2}
    """ if opt("p3x", 1) else f"""
    s_mov_b32 s{sG3}, s{sG}
    s_mov_b32 s{sJ3}, s{sJ}
    """
    A(role + f"s_lshl_b32 s{sA}, s{sW1}, 5")
    for n in range(3):
        A(f"""
        v_add_u32 v{vT0}, {64*n}, v{vL}
        v_mul_u32_u24 v{vT1}, 43691, v{vT0}
        v_lshrrev_b32 v{vT1}, 19, v{vT1}
        v_mul_u32_u24 v{vT2}, 12, v{vT1}
        v_sub_u32 v{vT0}, v{vT0}, v{vT2}
        v_bfe_u32 v{vT2}, v{vT1}, 2, 1
        v_xor_b32 v{vT0}, v{vT0}, v{vT2}
        v_mul_u32_u24 v{vT1}, 2752, v{vT1}
        v_lshl_add_u32 v{vT0}, v{vT0}, 4, v{vT1}
        v_xor_b32 v{vT0}, s{sA}, v{vT0}
        v_subrev_u32 v{VD3[n]}, {1024*n}, v{vT0}
        """)
    A(f"""
    s_lshl_b32 s{sW12}, s{sW}, 12
    s_mul_i32 s{sK4}, s{sW}, 11
    s_min_u32 s{sK4}, s{sK4}, 32
    s_mul_i32 s{sS3}, s{sWH}, {16*2752}
    s_mul_i32 s{t1}, s{sJ3}, 192
    s_add_u32 s{sS3}, s{sS3}, s{t1}
    s_cmp_eq_u32 s{sJ3}, 15
    s_cselect_b32 s{sS3}, {OOB}, s{sS3}
    s_lshl_b32 s{t1}, s{sCB}, 7
    s_lshl_b32 s{sS2}, s{sW}, 17
    s_add_u32 s{sS2}, s{sS2}, s{t1}
    s_lshl_b32 s{sS4}, s{sK4}, 15
    s_add_u32 s{sS4}, s{sS4}, s{t1}
    s_mul_i32 s{sL2}, s{sW}, 12288
    s_add_u32 s{sL2}, s{sL2}, {STG}
    """)
    NEG = f32hex(-1e30)
    A(f"""
    v_lshlrev_b32 v{vT0}, 2, v{vQ}
    v_sub_u32 v{vT0}, v{vT0}, v{vJ}
    v_mov_b32 v{vT3}, {NEG}
    s_cmp_eq_u32 s{sRB}, 0
    s_cselect_b64 s[98:99], -1, 0
    """)
    for r_ in range(4):
        A(f"""
        v_add_u32 v{vT1}, {r_}, v{vT0}
        v_and_b32 v{vT2}, 1, v{vT1}
        v_cmp_eq_u32 s[64:65], 0, v{vT2}
        v_cmp_le_i32 s[66:67], 2, v{vT1}
        v_cmp_ge_i32 s[68:69], 0, v{vT1}
        s_and_b64 s[66:67], s[66:67], s[64:65]
        s_and_b64 s[68:69], s[68:69], s[64:65]
        v_cndmask_b32 v{biasP+r_}, v{vT3}, 0, s[66:67]
        v_cndmask_b32 v{biasC+r_}, v{vT3}, 0, s[68:69]
        v_cndmask_b32 v{biasF+r_}, v{biasP+r_}, v{vT3}, s[98:99]
        """)
    A(f"""
    v_and_b32 v{vT0}, 3, v{vJ}
    v_cmp_eq_u32 s[{sM1}:{sM1+1}], 1, v{vT0}
    v_cmp_eq_u32 s[{sM2}:{sM2+1}], 2, v{vT0}
    v_cmp_eq_u32 s[{sM3}:{sM3+1}], 3, v{vT0}
    v_lshrrev_b32 v{vT0}, 2, v{vJ}
    v_cmp_eq_u32 s[{sDiag}:{sDiag+1}], v{vT0}, v{vQ}
    v_and_b32 v{vT1}, 1, v{vJ}
    v_cmp_eq_u32 vcc, 1, v{vT1}
    v_mov_b32 v{vT1}, 0x0c0c0100
    v_mov_b32 v{vT2}, 0x01000c0c
    v_cndmask_b32 v{selLo}, v{vT1}, v{vT2}, vcc
    v_mov_b32 v{vT1}, 0x0c0c0302
    v_mov_b32 v{vT2}, 0x03020c0c
    v_cndmask_b32 v{selHi}, v{vT1}, v{vT2}, vcc
    v_lshlrev_b32 v{vSa}, 2, v{vJ}
    v_add_u32 v{vSa}, {ST}, v{vSa}
    v_lshlrev_b32 v{vSc}, 4, v{vQ}
    v_add_u32 v{vSc}, {ST}, v{vSc}
    s_lshl_b32 s{t1}, s{sRB}, 6
    s_lshl_b32 s{t2}, s{sW1}, 6
    s_add_u32 s{t1}, s{t1}, s{t2}
    s_sub_u32 s{t1}, s{t1}, 16
    v_add_u32 v{vSl}, s{t1}, v{vL}
    v_max_i32 v{vSl}, 0, v{vSl}
    v_min_i32 v{vSl}, 2047, v{vSl}
    v_and_b32 v{vT0}, 1, v{vSl}
    v_lshrrev_b32 v{vSl}, 1, v{vSl}
    v_lshlrev_b32 v{vSl}, 7, v{vSl}
    v_lshl_add_u32 v{vSl}, v{vT0}, 3, v{vSl}
    v_and_b32 v{vT0}, 1, v{vQ}
    v_lshlrev_b32 v{vT0}, 14, v{vT0}
    v_lshrrev_b32 v{vT1}, 1, v{vQ}
    v_lshl_add_u32 v{vT0}, v{vT1}, 8, v{vT0}
    v_lshl_add_u32 v{vOst}, v{vJ}, 4, v{vT0}
    v_min_u32 v{vT0}, 11, v{vJ}
    v_lshrrev_b32 v{vT1}, 2, v{vT0}
    v_and_b32 v{vT0}, 3, v{vT0}
    v_lshlrev_b32 v{vT0}, 2, v{vT0}
    v_lshl_add_u32 v{vT0}, v{vT1}, 7, v{vT0}
    s_lshl_b32 s{t1}, s{sRB}, 8
    s_sub_u32 s{t1}, s{t1}, 128
    v_add_u32 v{vP0}, s{t1}, v{vT0}
    v_max_i32 v{vP0}, 0, v{vP0}
    """)
    stamp(A, "setup done")
    A(f"s_mov_b32 s{sA}, s96\ns_mov_b32 s{sC}, s97")
    emit(A, d1[opt("d1a", 3):])

    def early_compute():
        A(f"v_mov_b32 v{S1}, 0\nv_mov_b32 v{S2}, 0")
        for i in range(8):
            A(f"v_dot2_f32_bf16 v{S1}, v{XR+i}, v{ones}, v{S1}")
            A(f"v_dot2_f32_bf16 v{S2}, v{XR+i}, v{XR+i}, v{S2}")
        for mode in ("quad_perm:[1,0,3,2]", "quad_perm:[2,3,0,1]", "row_half_mirror", "row_mirror"):
            A(f"v_add_f32_dpp v{S1}, v{S1}, v{S1} {mode} row_mask:0xf bank_mask:0xf")
            A(f"v_add_f32_dpp v{S2}, v{S2}, v{S2} {mode} row_mask:0xf bank_mask:0xf")
        A(f"""
        v_mov_b32 v190, v{S1}
        v_mov_b32 v191, v{S2}
        v_lshrrev_b32 v{vT0}, 5, v{vL}
        v_lshlrev_b32 v{vT0}, 3, v{vT0}
        v_permlane16_swap_b32 v{S1}, v190
        v_permlane16_swap_b32 v{S2}, v191
        v_add_f32 v{S1}, v{S1}, v190
        v_add_f32 v{S2}, v{S2}, v191
        v_mul_f32 v{S1}, 0x3b000000, v{S1}
        v_mul_f32 v{S2}, 0x3b000000, v{S2}
        v_fma_f32 v{S2}, -v{S1}, v{S1}, v{S2}
        v_max_f32 v{S2}, 0, v{S2}
        v_add_f32 v{S2}, {f32hex(1e-5)}, v{S2}
        v_rsq_f32 v{S2}, v{S2}
        s_lshl_b32 s{sA}, s{sRB}, 12
        s_lshl_b32 s{sB}, s{sCB}, 9
        s_add_u32 s{sA}, s{sA}, s{sB}
        s_lshl_b32 s{sB}, s{sW}, 7
        s_add_u32 s{sA}, s{sA}, s{sB}
        s_add_u32 s{sA}, s{sA}, {WS_S1}
        s_mov_b32 exec_lo, 1
        s_mov_b32 exec_hi, 1
        """)
        A(f"buffer_store_dwordx2 v[{S1}:{S2}], v{vT0}, {WSS}, s{sA} offen sc1", tag="est")
        A("s_mov_b64 exec, -1")

    def reads(i, sidx):
        slot = i % 3
        it = []
        if slot < 2:
            va, wt, so = (vA0, vA1)[sidx], vWt, slot * SLOT
        else:
            va, wt, so = (vA0b, vA1b)[sidx], vWtb, 0
        tag = f"r{i}_{sidx}"
        for sec in range(3):
            for hf in range(2):
                it.append((f"ds_read_b64_tr_b16 v[{Wf[sidx]+sec*4+hf*2}:{Wf[sidx]+sec*4+hf*2+1}], v{wt} offset:{so + sidx*12288 + sec*1024 + hf*512}", tag))
        for t in range(5):
            it.append((f"ds_read_b128 v[{Af[sidx]+4*t}:{Af[sidx]+4*t+3}], v{va} offset:{so + t*2048}", tag))
        return it

    def mfmas(i, sidx):
        first = (i == 0 and sidx == 0)
        it = []
        W = lambda sec: v(Wf[sidx] + 4 * sec, 4)
        X = lambda t: v(Af[sidx] + 4 * t, 4)
        def m(acc, a, b):
            c = "0" if first else v(acc, 4)
            it.append((f"{MF} {v(acc,4)}, {a}, {b}, {c}", None))
        for t in range(5):
            m(accQ + 4 * t, W(0), X(t))
            m(accK + 4 * t, W(1), X(t))
            m(accV + 4 * t, X(t), W(2))
        return it


    def nonce_test(lbl):
        A(f"""
        v_readfirstlane_b32 s{sBA}, v{vF}
        s_cmp_lg_u32 s{sBA}, 0
        s_cbranch_scc1 {lbl}
        """)
    def nonce_reprobe():
        A(f"v_mov_b32 v{vT3}, 0")
        A(f"buffer_load_dword v{vF}, v{vT3}, s[{SDBG}:{SDBG+3}], 0 offen sc1")
    def nonce_pub():
        A(f"v_mov_b32 v{vT1}, {NONW}\nds_write_b32 v{vT1}, v{vF}")
    def p0(tag):
        A(f"buffer_load_dword v{vF}, v{vP0}, {WSS}, 0 offen offset:{WS_F1} sc1", tag=tag)

    A.wait_vm("e")
    early_compute()
    SIG = opt("sig0", 2)
    POLL = opt("poll", 5)
    b2 = []
    for st in range(3):
        b2 += k_dma(SWO, sS2, st, sL2, st * 4096, f"b2_{st}")
    for i in range(8):
        A.wait_vm(f"c{i}")
        if i == 0:
            spin(A, "~non", nonce_test, nonce_reprobe, 0x20000, True, nonce_pub, 2)
        if i == SIG:
            A.wait_vm("est")
        if i == POLL + 1:
            spin(A, "p0", flag_test(A, 1, "-1"), lambda: p0(None))
        A("s_waitcnt lgkmcnt(0)\ns_barrier")
        stamp(A, f"p1 bar{i}")
        dm = dma(i + 2) if i + 2 <= 7 else []
        extra = []
        if i == SIG:
            wg_signal(A, WS_F1, sG, sJ, 1)
        if i == POLL:
            p0("p0")
        if i == POLL + 1:
            extra += [(f"""
            s_lshl_b32 s{sBA}, s{sWH}, 2
            s_add_u32 s{sBA}, s{sBA}, {WS_S1}
            s_lshl_b32 m0, s{sW}, 8
            s_add_u32 m0, m0, {ST}
            buffer_load_dword v{vSl}, {WSS}, s{sBA} offen lds""", "st1")]
        if i == opt("touch_i", 1) and opt("touch", 1):
            extra += [(f"""
            s_cmp_eq_u32 s{sW}, 0
            s_cselect_b32 s76, s{SWO}, s{SWD}
            s_cselect_b32 s77, s{SWO+1}, s{SWD+1}
            s_cselect_b32 s78, s{SWO+2}, s{SWD+2}
            s_mov_b32 s79, 0x20000
            s_cmp_lt_u32 s{sW}, 2
            s_cselect_b32 s76, s76, s{SB3}
            s_cselect_b32 s77, s77, s{SB3+1}
            s_cselect_b32 s78, s78, s{SB3+2}
            s_mul_i32 s{sBA}, s2, {43*128}
            v_lshlrev_b32 v{vT3}, 7, v{vL}
            s_mov_b32 exec_hi, 0x7ff
            buffer_load_dword v{vT2}, v{vT3}, s[76:79], s{sBA} offen
            s_mov_b64 exec, -1""", None)]
        if i == opt("t3_i", 3) and opt("s3pf", 1):
            extra += [(f"""
            s_lshl_b32 s{sBA}, s{sIDX}, 2
            s_add_u32 s{sBA}, s{sBA}, s{sW}
            s_mul_i32 s{sCNT}, s{sBA}, {11*1024}
            s_lshl_b32 s{sBA}, s{sBA}, 12
            v_lshlrev_b32 v{vT3}, 10, v{vL}
            s_mov_b64 exec, 0xf
            buffer_load_dword v{vT2}, v{vT3}, s[{SWO}:{SWO+3}], s{sBA} offen offset:384
            s_mov_b64 exec, 0x7ff
            buffer_load_dword v{vT2}, v{vT3}, s[{SWD}:{SWD+3}], s{sCNT} offen offset:384
            s_mov_b64 exec, -1""", None)]
        if i >= 6:
            extra += b2[:6] if i == 6 else b2[6:]
        if i == 0:
            A(f"v_mov_b32 v{vT1}, {NONW}")
            A(f"ds_read_b32 v{vT2}, v{vT1}", tag="nonrd")
            emit(A, reads(i, 0))
            A.wait_lg("nonrd")
            A(f"v_readfirstlane_b32 s{sNON}, v{vT2}")
        else:
            emit(A, weave(mfmas(i - 1, 1), [(reads(i, 0), 0, 2), (dm[:5], 6, lambda k: k % 2)]))
            dm = dm[5:]
        A.wait_lg(f"r{i}_0")
        rest = dm + extra
        emit(A, weave(mfmas(i, 0), [(reads(i, 1), 0, 2), (rest, 5 if i else 1, 1)]))
    A.wait_lg("r7_1")
    emit(A, mfmas(7, 1))
    stamp(A, "p1 loop done")
    A.wait_vm("st1")
    A("s_barrier")
    KS_[0] = KS(A, 2)
    KS_[0].setup()
    KS_[0].res_loads()
    emit(A, k_dma(SWO, sS2, 3, sW12, 65536, "b2_3"))
    q1 = w3i(range(6))
    L1 = 108
    L2M = 120
    L2R = 140
    csQ, csK, csV = 160, 164, 168
    for t in range(5):
        A(f"ds_read2_b32 v[{L1+2*t}:{L1+2*t+1}], v{vSa} offset0:{16*t} offset1:{128+16*t}", tag="st")
    A(f"v_lshlrev_b32 v{vT2}, 2, v{vJ}")
    A(f"ds_bpermute_b32 v{csV}, v{vT2}, v{accV}", tag="st")
    for t in range(5):
        A(f"ds_read_b128 v[{L2M+4*t}:{L2M+4*t+3}], v{vSc} offset:{64*t}", tag="st2")
        A(f"ds_read_b128 v[{L2R+4*t}:{L2R+4*t+3}], v{vSc} offset:{512+64*t}", tag="st2")
    for r_ in range(4):
        A(f"v_mov_b32_dpp v{csQ+r_}, v{accQ+r_} row_newbcast:0 row_mask:0xf bank_mask:0xf")
        A(f"v_mov_b32_dpp v{csK+r_}, v{accK+r_} row_newbcast:0 row_mask:0xf bank_mask:0xf")
    A(f"""
    s_lshl_b32 s{sC}, s{sRB}, 16
    s_lshl_b32 s{sB}, s{sCB}, 11
    s_add_u32 s{sC}, s{sC}, s{sB}
    s_lshl_b32 s{sB}, s{sW}, 9
    s_add_u32 s{sC}, s{sC}, s{sB}
    s_add_u32 s{sC}, s{sC}, {WS_O}
    """)
    A.wait_lg("st")
    Kp, Qp, Vp = 210, 220, 230

    def fold_kq(acc, cs, P, scale, t):
        a = acc + 4 * t
        for h in range(2):
            A(f"v_pk_fma_f32 v[{a+2*h}:{a+2*h+1}], v[{cs+2*h}:{cs+2*h+1}], v[{L1+2*t}:{L1+2*t+1}], v[{a+2*h}:{a+2*h+1}] op_sel:[0,0,0] op_sel_hi:[1,0,1] neg_lo:[0,1,0] neg_hi:[0,1,0]")
        if scale:
            for h in range(2):
                A(f"v_pk_mul_f32 v[{a+2*h}:{a+2*h+1}], v[{a+2*h}:{a+2*h+1}], v[{L1+2*t}:{L1+2*t+1}] op_sel:[0,1] op_sel_hi:[1,1]")
        for h in range(2):
            A(f"v_cvt_pk_bf16_f32 v{P+2*t+h}, v{a+2*h}, v{a+2*h+1}")

    def fold_v(t):
        a = accV + 4 * t
        for h in range(2):
            A(f"v_pk_fma_f32 v[{a+2*h}:{a+2*h+1}], v[{L2M+4*t+2*h}:{L2M+4*t+2*h+1}], v[{csV}:{csV+1}], v[{a+2*h}:{a+2*h+1}] op_sel:[0,0,0] op_sel_hi:[1,0,1] neg_lo:[1,0,0] neg_hi:[1,0,0]")
        for h in range(2):
            A(f"v_pk_mul_f32 v[{a+2*h}:{a+2*h+1}], v[{a+2*h}:{a+2*h+1}], v[{L2R+4*t+2*h}:{L2R+4*t+2*h+1}]")
        for h in range(2):
            A(f"v_cvt_pk_bf16_f32 v{Vp+2*t+h}, v{a+2*h}, v{a+2*h+1}")

    def attn(step):
        ts = (1, 2) if step == 0 else (3, 4)
        k = lambda t: t - ts[0]
        Sp = lambda t: 172 + 8 * k(t)
        Sc = lambda t: 176 + 8 * k(t)
        X = lambda t, i: 240 + 4 * k(t) + i
        MX = lambda t: 188 + k(t)
        MY = lambda t: 190 + k(t)
        CQ = lambda t: 192 + k(t)
        Pf = lambda t: 172 + 4 * k(t)
        Oa = lambda t: 180 + 4 * k(t)
        Su = lambda t: 240 + 4 * k(t)
        OP = 248 + 4 * step
        for t in (((0,) if step == 0 else ()) + ts):
            fold_kq(accK, csK, Kp, True, t)
        for t in ts:
            fold_kq(accQ, csQ, Qp, False, t)
        for t in ts:
            A(f"{MF16} {v(Sp(t),4)}, {v(Kp+2*(t-1),2)}, {v(Qp+2*t,2)}, {v(biasF if t==1 else biasP,4)}")
            A(f"{MF16} {v(Sc(t),4)}, {v(Kp+2*t,2)}, {v(Qp+2*t,2)}, {v(biasC,4)}")
        if step == 0:
            A.wait_lg("st2")
        for t in (((0,) if step == 0 else ()) + ts):
            fold_v(t)
        for t in ts:
            A(f"v_mul_f32 v{CQ(t)}, {f32hex(0.25*LOG2E)}, v{L1+2*t+1}")
        for t in ts:
            A(f"""
            v_max_f32 v{X(t,0)}, v{Sp(t)}, v{Sp(t)+1}
            v_max_f32 v{X(t,1)}, v{Sp(t)+2}, v{Sp(t)+3}
            v_max_f32 v{X(t,2)}, v{Sc(t)}, v{Sc(t)+1}
            v_max_f32 v{X(t,3)}, v{Sc(t)+2}, v{Sc(t)+3}
            v_max3_f32 v{MX(t)}, v{X(t,0)}, v{X(t,1)}, v{X(t,2)}
            v_max_f32 v{MX(t)}, v{MX(t)}, v{X(t,3)}
            v_mov_b32 v{MY(t)}, v{MX(t)}
            """)
        for sw in ("v_permlane16_swap_b32", "v_permlane32_swap_b32"):
            for t in ts:
                A(f"{sw} v{MX(t)}, v{MY(t)}")
            for t in ts:
                A(f"v_max_f32 v{MX(t)}, v{MX(t)}, v{MY(t)}")
            if sw.startswith("v_permlane16"):
                for t in ts:
                    A(f"v_mov_b32 v{MY(t)}, v{MX(t)}")
        for t in ts:
            A(f"v_mul_f32 v{MX(t)}, v{MX(t)}, v{CQ(t)}")
        for t in ts:
            for i in range(4):
                A(f"v_fma_f32 v{X(t,i)}, v{X(t,i)}, v{CQ(t)}, -v{MX(t)}")
        for t in ts:
            for i in range(4):
                A(f"v_exp_f32 v{X(t,i)}, v{X(t,i)}")
        if step == 1:
            ev, A.every = A.every, None
            A.wait_vm("ost0")
            A("s_barrier")
            wg_signal(A, WS_F1, sG, sJ, 2)
            A.every = ev
        for t in ts:
            A(f"""
            v_cvt_pk_bf16_f32 v{MX(t)}, v{X(t,0)}, v{X(t,1)}
            v_cvt_pk_bf16_f32 v{MY(t)}, v{X(t,2)}, v{X(t,3)}
            """)
        for t in ts:
            A(f"""
            v_perm_b32 v{Pf(t)}, v{MX(t)}, v{MX(t)}, v{selLo}
            v_perm_b32 v{Pf(t)+1}, v{MX(t)}, v{MX(t)}, v{selHi}
            v_perm_b32 v{Pf(t)+2}, v{MY(t)}, v{MY(t)}, v{selLo}
            v_perm_b32 v{Pf(t)+3}, v{MY(t)}, v{MY(t)}, v{selHi}
            """)
        for t in ts:
            A(f"{MF} {v(Su(t),4)}, {v(ones,4)}, {v(Pf(t),4)}, 0")
            A(f"{MF} {v(Oa(t),4)}, {v(Vp+2*(t-1),4)}, {v(Pf(t),4)}, 0")
        for t in ts:
            A(f"v_rcp_f32 v{Su(t)}, v{Su(t)}")
        for t in ts:
            o = Oa(t)
            A(f"""
            v_pk_mul_f32 v[{o}:{o+1}], v[{o}:{o+1}], v[{Su(t)}:{Su(t)+1}] op_sel:[0,0] op_sel_hi:[1,0]
            v_pk_mul_f32 v[{o+2}:{o+3}], v[{o+2}:{o+3}], v[{Su(t)}:{Su(t)+1}] op_sel:[0,0] op_sel_hi:[1,0]
            v_cvt_pk_bf16_f32 v{OP+2*k(t)}, v{o}, v{o+1}
            v_cvt_pk_bf16_f32 v{OP+2*k(t)+1}, v{o+2}, v{o+3}
            """)
        A(f"""
        v_permlane16_swap_b32 v{OP}, v{OP+2}
        v_permlane16_swap_b32 v{OP+1}, v{OP+3}
        s_add_u32 s{sB}, s{sC}, {step*32768}
        """)
        A(f"buffer_store_dwordx4 v[{OP}:{OP+3}], v{vOst}, {WSS}, s{sB} offen sc1", tag=f"ost{step}")


    A.every = (opt("r1per", 40), lambda: emit(A, [q1.pop(0)] if q1 else []))
    attn(0)
    stamp(A, "p1 step A stored")
    attn(1)
    A.every = None
    emit(A, q1)
    stamp(A, "p1 step B stored")


def p2(A):
    K = KS_[0]
    TA = 196
    A(f"""
    v_bfe_u32 v{vT2}, v{vL}, 1, 1
    v_lshlrev_b32 v{vT2}, 4, v{vT2}
    v_and_b32 v{vT3}, 1, v{vL}
    v_lshl_add_u32 v{vT2}, v{vT3}, 3, v{vT2}
    s_lshl_b32 s{t1}, s{sW1}, 6
    v_xor_b32 v{vT2}, s{t1}, v{vT2}
    v_bfe_u32 v{vT0}, v{vL}, 2, 2
    v_and_b32 v{vT1}, 2, v{vT0}
    v_lshlrev_b32 v{vT1}, 4, v{vT1}
    v_xor_b32 v{vT1}, v{vT1}, v{vT2}
    v_lshl_add_u32 v{vT1}, v{vT0}, 7, v{vT1}
    v_lshl_add_u32 v{vT1}, v{vQ}, 10, v{vT1}
    v_add_u32 v{TA}, s{sL2}, v{vT1}
    v_xor_b32 v{TA+1}, 32, v{TA}
    v_xor_b32 v{TA+2}, 64, v{TA}
    v_xor_b32 v{TA+3}, 96, v{TA}
    v_lshrrev_b32 v{vT0}, 2, v{vL}
    v_mul_u32_u24 v{vT0}, 192, v{vT0}
    v_bfe_u32 v{vT1}, v{vL}, 1, 1
    v_mul_u32_u24 v{vT2}, 3072, v{vT1}
    v_add_u32 v{vT0}, v{vT0}, v{vT2}
    v_and_b32 v{vT2}, 1, v{vQ}
    v_lshl_add_u32 v{vT1}, v{vT1}, 1, v{vT2}
    v_and_b32 v{vT2}, 1, v{vL}
    s_lshl_b32 s{t3}, s{sWH}, 2
    s_add_u32 s{t3}, s{t3}, s{sW1}
    v_xor_b32 v{vT3}, s{t3}, v{vT1}
    v_lshl_add_u32 v{vT3}, v{vT3}, 4, v{vT0}
    v_lshl_add_u32 v{VTR3[0]}, v{vT2}, 3, v{vT3}
    s_add_u32 s{t3}, s{t3}, 2
    v_xor_b32 v{vT3}, s{t3}, v{vT1}
    v_lshl_add_u32 v{vT3}, v{vT3}, 4, v{vT0}
    v_lshl_add_u32 v{VTR3[1]}, v{vT2}, 3, v{vT3}
    s_add_u32 s{t3}, s{sWH}, 8
    v_lshl_add_u32 v{vT3}, v{vT2}, 1, s{t3}
    v_xor_b32 v{vT3}, v{vT3}, v{vT1}
    v_lshl_add_u32 v{vT3}, v{vT3}, 4, v{vT0}
    s_lshl_b32 s{t2}, s{sW1}, 3
    v_add_u32 v{VTR3[2]}, s{t2}, v{vT3}
    """)
    A.wait_vm("b2_3")
    for st in range(4):
        if st == 3:
            A(f"s_sub_u32 s{t1}, s{sL2}, s{sW12}\ns_sub_u32 s{t1}, s{t1}, 65536")
            for ct in range(4):
                A(f"v_subrev_u32 v{TA+ct}, s{t1}, v{TA+ct}")
        off = st * 4096 if st < 3 else 0
        for ct in range(4):
            A(f"ds_read_b64_tr_b16 {r(B2reg(st,ct),0,2)}, v{TA+ct} offset:{off}")
            A(f"ds_read_b64_tr_b16 {r(B2reg(st,ct),2,2)}, v{TA+(ct^2)} offset:{off+512}")
    w3w(A, [0, 1, 2])
    wg_poll(A, WS_F1, sG, 2, True)
    stamp(A, "p2 flagsA ok")
    emit(A, K.a_loads(0))
    w3r(A, [0, 1, 2])
    emit(A, w3i([6, 7]))
    A.wait_vm("ost1")
    w3w(A, [3, 4, 5])
    A("s_waitcnt lgkmcnt(0)\ns_barrier")
    wg_signal(A, WS_F1, sG, sJ, 3)
    w3r(A, [3, 4, 5])
    K.mfmas(0, [x for it in w3i([8, 9]) for x in (it, lambda: None, lambda: None)])
    K.reduce(0)
    stamp(A, "p2 h0 stored")
    emit(A, w3i([10, 11]))
    w3w(A, [6, 7, 8])
    wg_poll(A, WS_F1, sG, 3, True)
    stamp(A, "p2 flagsB ok")
    emit(A, K.a_loads(1))
    w3r(A, [6, 7, 8])
    A.wait_vm("hst0")
    w3w(A, [9, 10, 11])
    A("s_waitcnt lgkmcnt(0)\ns_barrier")
    wg_signal(A, WS_F2, sG, sJ, 1)
    emit(A, w3i([12, 13]))
    w3r(A, [9, 10, 11])
    stamp(A, "p2 sig H0")


def p3(A):
    vH4, vH2, vAr, vS2 = 12, 13, 14, 26
    cs = 192
    accs = [32, 80]
    Af = 128
    stts = 160
    wg_poll(A, WS_F2, sG3, 1)
    stamp(A, "p3 flags ok")

    def a_dma(p):
        it = []
        for idx in range(4):
            c, ti = 2 * p + (idx >> 1), idx & 1
            pre = f"""
            s_lshl_b32 s{sC}, s{sG3}, 17
            s_add_u32 s{sC}, s{sC}, s{sW12}
            s_add_u32 s{sC}, s{sC}, {WS_H + (c+4*ti)*16384}
            s_add_u32 m0, s{sW12}, {p*65536 + idx*16384}
            """
            for n in range(4):
                it.append(((pre if n == 0 else "") + f"""
                buffer_load_dwordx4 v{vL16}, {WSS}, s{sC} offen offset:{n*1024} lds""", f"a{p}"))
        return it

    RAW = [stts, accs[0]]
    RES = lambda p, idx: stts + 8 * idx + 4 * p

    def st_loads(p):
        return [(f"""
        s_lshl_b32 s{sA}, s{sG3}, 14
        s_lshl_b32 s{sB}, s{sWH}, 11
        s_add_u32 s{sA}, s{sA}, s{sB}
        s_lshl_b32 s{sB}, s{sW1}, 13
        s_add_u32 s{sA}, s{sA}, s{sB}
        s_add_u32 s{sA}, s{sA}, {WS_ST + 2*p*2048}
        s_lshl_b32 s{sB}, s{sW}, 11
        s_add_u32 m0, s{sB}, {STB + p*8192}
        buffer_load_dwordx4 v{vL16}, {WSS}, s{sA} offen lds
        buffer_load_dwordx4 v{vL16}, {WSS}, s{sA} offen offset:1024 lds""", f"s{p}")]

    def mk(unpk):
        it = []
        def add(t):
            if unpk and t.startswith("v_pk_"):
                for x in unpack_pk(t):
                    it.append((x, None))
            else:
                it.append((t, None))
        return it, add

    def stats(p):
        it, add = mk(1)
        B = [RAW[p] + 8 * idx for idx in range(4)]
        for idx, b in enumerate(B):
            if idx:
                add(f"v_add_u32 v{vS2}, 2048, v{vS2}")
            it.append((f"ds_read2_b64 v[{b}:{b+3}], v{vS2} offset0:0 offset1:16", f"sr{p}"))
            it.append((f"ds_read2_b64 v[{b+4}:{b+7}], v{vS2} offset0:32 offset1:48", f"sr{p}"))
        add(f"v_add_u32 v{vS2}, 2048, v{vS2}")
        it += [lambda: None] * 6
        it.append(lambda: A.wait_lg(f"sr{p}"))
        for b in B:
            add(f"v_pk_add_f32 v[{b}:{b+1}], v[{b}:{b+1}], v[{b+2}:{b+3}]")
            add(f"v_pk_add_f32 v[{b+4}:{b+5}], v[{b+4}:{b+5}], v[{b+6}:{b+7}]")
        for b in B:
            add(f"v_pk_add_f32 v[{b}:{b+1}], v[{b}:{b+1}], v[{b+4}:{b+5}]")
        for sw in ("v_permlane16_swap_b32", "v_permlane32_swap_b32"):
            for b in B:
                add(f"v_mov_b32 v{b+2}, v{b}")
                add(f"v_mov_b32 v{b+3}, v{b+1}")
            for b in B:
                add(f"{sw} v{b}, v{b+2}")
                add(f"{sw} v{b+1}, v{b+3}")
            for b in B:
                add(f"v_pk_add_f32 v[{b}:{b+1}], v[{b}:{b+1}], v[{b+2}:{b+3}]")
        for op in ("v_mul_f32 v{m}, 0x3b000000, v{b}", "v_mul_f32 v{b1}, 0x3b000000, v{b1}", "v_fma_f32 v{b1}, -v{m}, v{m}, v{b1}",
                   "v_max_f32 v{b1}, 0, v{b1}", "v_add_f32 v{b1}, " + f32hex(1e-5) + ", v{b1}", "v_rcp_f32 v{m1}, v{b1}"):
            for idx, b in enumerate(B):
                add(op.format(b=b, b1=b + 1, m=RES(p, idx), m1=RES(p, idx) + 1))
        it.append((f"""
        v_cmp_gt_u32 vcc, 32, v{vL}
        v_cndmask_b32 v{RES(p,0)+2}, v{RES(p,1)+1}, v{RES(p,0)+1}, vcc
        v_cndmask_b32 v{RES(p,2)+2}, v{RES(p,3)+1}, v{RES(p,2)+1}, vcc""", None))
        return it

    def epilogue(p):
        it, add = mk(0)
        Q = accs[p] + 16
        base = f"""
        s_mul_i32 s{sA}, s{sG3}, {8*HHK*1024}
        s_mul_i32 s{sB}, s{sJ3}, 3072
        s_add_u32 s{sA}, s{sA}, s{sB}
        """
        for cc in range(2):
            acc = accs[p] + 24 * cc
            rs = RES(p, 2 * cc) + 2
            for u in range(3):
                for ti in range(2):
                    a = acc + (ti * 3 + u) * 4
                    b = RES(p, 2 * cc + ti)
                    for h in range(2):
                        add(f"v_pk_fma_f32 v[{a+2*h}:{a+2*h+1}], v[{cs+4*u+2*h}:{cs+4*u+2*h+1}], v[{b}:{b+1}], v[{a+2*h}:{a+2*h+1}] op_sel:[0,0,0] op_sel_hi:[1,0,1] neg_lo:[0,1,0] neg_hi:[0,1,0]")
            for u in range(3):
                for r_ in range(4):
                    add(f"v_permlane32_swap_b32 v{acc+u*4+r_}, v{acc+(3+u)*4+r_}")
            PK = acc + 12
            for u in range(3):
                g, up = acc + u * 4, acc + (3 + u) * 4
                for r_ in range(4):
                    add(f"v_max_f32 v{g+r_}, 0, v{g+r_}")
                for h in range(2):
                    add(f"v_pk_mul_f32 v[{g+2*h}:{g+2*h+1}], v[{g+2*h}:{g+2*h+1}], v[{up+2*h}:{up+2*h+1}]")
                for h in range(2):
                    add(f"v_pk_mul_f32 v[{g+2*h}:{g+2*h+1}], v[{g+2*h}:{g+2*h+1}], v[{rs}:{rs+1}] op_sel:[0,0] op_sel_hi:[1,0]")
                for h in range(2):
                    add(f"v_cvt_pk_bf16_f32 v{(PK+2*u if u < 2 else Q+2*cc)+h}, v{g+2*h}, v{g+2*h+1}")
                if u == 1:
                    it.append((base + f"""
                    s_add_u32 s{sA}, s{sA}, {WS_HH + (2*p+cc)*HHK*1024}
                    buffer_store_dwordx4 v[{PK}:{PK+3}], v{vH4}, {WSS}, s{sA} offen sc1""", f"hh{p}"))
        add(f"v_permlane16_swap_b32 v{Q}, v{Q+2}")
        add(f"v_permlane16_swap_b32 v{Q+1}, v{Q+3}")
        it.append((base + f"""
        s_add_u32 s{sA}, s{sA}, {WS_HH + (2*p)*HHK*1024}
        buffer_store_dwordx4 v[{Q}:{Q+3}], v{vH2}, {WSS}, s{sA} offen sc1""", f"hh{p}"))
        return it


    emit(A, a_dma(0) + st_loads(0))
    K = KS_[0]
    K.mfmas(1, [x for it in w3i([14, 15]) for x in (it, lambda: None, lambda: None)])
    K.reduce(1)
    stamp(A, "p2 h1 stored")
    for ks in range(12):
        for u in range(3):
            d = v(cs + 4 * u, 4)
            A(f"{MF} {d}, {r(B3reg(ks,u),0,4)}, {v(ones,4)}, {'0' if ks==0 else d}")
    A(f"""
    v_lshrrev_b32 v{vT0}, 1, v{vQ}
    v_mul_u32_u24 v{vT0}, {4*HHK*1024}, v{vT0}
    v_lshl_add_u32 v{vT0}, v{vJ}, 4, v{vT0}
    v_and_b32 v{vT1}, 1, v{vQ}
    s_lshl_b32 s{sA}, s{sWH}, 10
    s_lshl_b32 s{sB}, s{sW1}, 9
    s_add_u32 s{sA}, s{sA}, s{sB}
    v_lshl_add_u32 v{vH4}, v{vT1}, 8, v{vT0}
    v_add_u32 v{vH4}, s{sA}, v{vH4}
    s_lshl_b32 s{sA}, s{sW}, 8
    s_add_u32 s{sA}, s{sA}, 2048
    v_mul_u32_u24 v{vT1}, {HHK*1024}, v{vT1}
    v_add_u32 v{vH2}, v{vT1}, v{vT0}
    v_add_u32 v{vH2}, s{sA}, v{vH2}
    v_lshlrev_b32 v{vS2}, 3, v{vJ}
    v_lshl_add_u32 v{vS2}, v{vQ}, 9, v{vS2}
    v_add_u32 v{vS2}, {STB}, v{vS2}
    """)

    TB = 204
    def b4addr():
      A(f"""
    v_bfe_u32 v{vT2}, v{vL}, 1, 1
    v_lshlrev_b32 v{vT2}, 4, v{vT2}
    v_and_b32 v{vT3}, 1, v{vL}
    v_lshl_add_u32 v{vT2}, v{vT3}, 3, v{vT2}
    s_lshl_b32 s{t1}, s{sW1}, 6
    v_xor_b32 v{vT2}, s{t1}, v{vT2}
    v_bfe_u32 v{vT0}, v{vL}, 2, 3
    v_and_b32 v{vT1}, 6, v{vT0}
    v_lshlrev_b32 v{vT1}, 4, v{vT1}
    v_xor_b32 v{vT1}, v{vT1}, v{vT2}
    v_lshl_add_u32 v{vT1}, v{vT0}, 7, v{vT1}
    v_lshrrev_b32 v{vT0}, 5, v{vL}
    v_lshl_add_u32 v{vT1}, v{vT0}, 10, v{vT1}
    s_add_u32 s{t1}, s{sW12}, 65536
    v_add_u32 v{TB}, s{t1}, v{vT1}
    v_xor_b32 v{TB+1}, 32, v{TB}
    v_xor_b32 v{TB+2}, 64, v{TB}
    v_xor_b32 v{TB+3}, 96, v{TB}
    """)

    def b4_dma(sts, region):
        it = []
        for n, st in enumerate(sts):
            it += k_dma(SWD, sS4, st, sW12, region + n * 16384, f"b4_{st}", st == 0)
        return it

    def b4_tr(sts):
        it = []
        for n, st in enumerate(sts):
            it.append(lambda st=st: A.wait_vm(f"b4_{st}"))
            for ct in range(4):
                for hf in range(2):
                    it.append((f"ds_read_b64_tr_b16 {r(B4reg(st,ct),hf*2,2)}, v{TB+ct} offset:{n*16384 + hf*2048}", "b4t"))
        return it

    for p in range(2):
        acc = accs[p]
        A.wait_vm([f"a{p}", f"s{p}"])
        A("s_waitcnt lgkmcnt(0)\ns_barrier")
        stamp(A, f"p3 pass{p} start")
        fillv = stats(p)
        if p == 0:
            fillm = []
        else:
            for ct in range(4):
                A(f"v_subrev_u32 v{TB+ct}, 65536, v{TB+ct}")
            fillm = b4_dma([4, 5, 6, 7], 0)
            KS_[0] = KS(A, 4)
            l0 = KS_[0].a_loads(0)
        A(f"v_add_u32 v{vAr}, {p*65536}, v{vL16}")
        rd = lambda ks: [(f"ds_read_b128 {v(Af+((ks%2)*4+idx)*4,4)}, v{vAr} offset:{idx*16384 + ks*1024}", f"f{ks}") for idx in range(4)]
        emit(A, rd(0))
        n = 0
        for ks in range(16):
            nxt = rd(ks + 1) if ks + 1 < 16 else []
            if p == 0 and ks == opt("sig4ks", 1):
                A.wait_vm("hst1")
                w3w(A, [12, 13, 14, 15])
                A("s_barrier")
                wg_signal(A, WS_F2, sG, sJ, 2)
                w3r(A, [12, 13, 14, 15])
            if p == 0 and ks == opt("sig4ks", 1) + 2:
                A("s_waitcnt lgkmcnt(0)\ns_barrier")
                b4addr()
                fillm += b4_dma([0, 1, 2, 3], 65536)
            if p == 0 and ks == opt("pr4ks", 6):
                vprobe(A, WS_F2, sG3, "pr4")
            if p == 0 and ks == opt("tr0ks", 9):
                fillv += b4_tr([0, 1, 2, 3])
            if p == 0 and ks == opt("ck4ks", 12):
                emit(A, fillv)
                fillv = []
                A.wait_lg("b4t")
                vcheck(A, WS_F2, sG3, 2, "pr4")
                fillm += st_loads(1) + a_dma(1)
            if p == 1 and ks == opt("sig5ks", 1):
                A.wait_vm("hh0")
                A("s_barrier")
                wg_signal(A, WS_F3, sG3, sJ3, 1)
            if p == 1 and ks == opt("tr1ks", 7):
                fillv += b4_tr([4, 5, 6, 7])
            if p == 1 and ks == opt("pr5ks", 8):
                vprobe(A, WS_F3, sG, "pr5")
            if p == 1 and ks == opt("dm2ks", 10):
                emit(A, fillv)
                fillv = []
                A.wait_lg("b4t")
                fillm += b4_dma([8, 9, 10], 0)
            if p == 1 and ks == opt("ck5ks", 13):
                vcheck(A, WS_F3, sG, 1, "pr5")
                fillm += l0[:opt("p4n0", 10)]
            A.wait_lg(f"f{ks}")
            for idx in range(4):
                for u in range(3):
                    d = v(acc + (idx * 3 + u) * 4, 4)
                    A(f"{MF} {d}, {r(B3reg(ks,u),0,4)}, {v(Af+((ks%2)*4+idx)*4,4)}, {'0' if ks==0 else d}")
                    n += 1
                    if nxt and u == 0:
                        emit(A, [nxt.pop(0)])
                    elif n > 6:
                        for _ in range(2):
                            if fillv:
                                emit(A, [fillv.pop(0)])
                    if n % opt("p3mper", 3) == 2 and fillm and not (ks < 1):
                        emit(A, [fillm.pop(0)])
        emit(A, fillv + fillm)
        if p == 0:
            for ks in range(12, 16):
                for u in range(3):
                    d = v(cs + 4 * u, 4)
                    A(f"{MF} {d}, {r(B3reg(ks,u),0,4)}, {v(ones,4)}, {d}")
        stamp(A, f"p3 pass{p} mfma done")
        emit(A, epilogue(p))
    stamp(A, "p3 stores issued")
    K = KS_[0]
    emit(A, K.a_loads(0, opt("p4n0", 10)))
    emit(A, b4_tr([8, 9, 10]))
    A("s_waitcnt lgkmcnt(0)")


def p4(A):
    K = KS_[0]
    K.setup()
    A.wait_vm("hh1")
    A("s_barrier")
    wg_signal(A, WS_F3, sG3, sJ3, 2)
    stamp(A, "p3 signalled")
    l1 = K.a_loads(1)
    ck = opt("p4ck", 12)
    fill = [lambda: None] * ck
    fill += [lambda: (wg_poll(A, WS_F3, sG, 2), stamp(A, "p4 flags ok"), emit(A, l1[:10]))]
    rest = l1[10:]
    fill += [(lambda k=k: emit(A, rest[2*k:2*k+2])) for k in range(6)]
    K.mfmas(0, fill)
    K.reduce(0)
    stamp(A, "p4 h0 stored")
    K.mfmas(1)
    K.reduce(1)


def main(path):
    A = Asm()
    label = NAME + "_kernel"
    A.raw("; @launch grid=(256,1,1) block=(256,1,1) lds=163840")
    A.raw('.amdgcn_target "amdgcn-amd-amdhsa--gfx950"\n.text')
    p1(A, label)
    p2(A)
    p3(A)
    p4(A)
    if opt("pad", 0) == 1:
        A.raw("L_padstart:")
        for i in range(2048):
            A(f"v_add3_u32 v{40+(i%8)}, v1, v2, v{40+(i%8)}")
    if opt("pad", 0) == 2:
        A(f"s_mov_b32 s{sA}, 0")
        A.raw("L_padloop:")
        for i in range(64):
            A(f"v_add3_u32 v{40+(i%8)}, v1, v2, v{40+(i%8)}")
        A(f"s_add_u32 s{sA}, s{sA}, 1\ns_cmp_lt_u32 s{sA}, 32\ns_cbranch_scc1 L_padloop")
    if INSTR:
        A("s_waitcnt vmcnt(0) lgkmcnt(0)")
        stamp(A, "end")
        A(f"""
        s_memrealtime s[100:101]
        s_waitcnt lgkmcnt(0)
        v_writelane_b32 v{vSTAMP}, s100, 63
        s_lshl_b32 s{sA}, s2, 2
        s_add_u32 s{sA}, s{sA}, s{sW}
        s_lshl_b32 s{sA}, s{sA}, 8
        s_add_u32 s{sA}, s{sA}, {WS_PROF}
        v_lshlrev_b32 v{vT0}, 2, v{vL}
        buffer_store_dword v{vSTAMP}, v{vT0}, {WSS}, s{sA} offen
        s_waitcnt vmcnt(0)
        """)
        open(path + ".stamps", "w").write("\n".join(STAMPNAMES))
    if opt("dbgt", 0):
        A(f"""
        s_waitcnt vmcnt(0) lgkmcnt(0)
        s_memrealtime s[100:101]
        s_waitcnt lgkmcnt(0)
        v_mov_b32 v{vT0}, s100
        v_mov_b32 v{vT1}, s59
        v_not_b32 v{vT2}, v{vT1}
        v_mov_b32 v{vT3}, 0
        s_mov_b64 exec, 1
        buffer_atomic_umax v{vT0}, v{vT3}, s[{SDBG}:{SDBG+3}], 0 offen offset:16 sc1
        buffer_atomic_umax v{vT1}, v{vT3}, s[{SDBG}:{SDBG+3}], 0 offen offset:20 sc1
        buffer_atomic_umax v{vT2}, v{vT3}, s[{SDBG}:{SDBG+3}], 0 offen offset:24 sc1
        s_waitcnt vmcnt(0)
        """)
    A.raw("L_done:")
    A("s_endpgm")
    A.raw(f""".section .rodata,"a"
.p2align 6
.amdhsa_kernel {label}
  .amdhsa_next_free_vgpr 512
  .amdhsa_next_free_sgpr 102
  .amdhsa_accum_offset 256
  .amdhsa_group_segment_fixed_size 0
  .amdhsa_kernarg_size 80
  .amdhsa_user_sgpr_count 2
  .amdhsa_user_sgpr_kernarg_segment_ptr 1
  .amdhsa_system_sgpr_workgroup_id_x 1
.end_amdhsa_kernel""")
    open(path, "w").write(A.text())
    print("instructions", A.nins, "nops", A.nnop)


if __name__ == "__main__":
    main(sys.argv[1] if len(sys.argv) > 1 else f"k12.s")
```

```python
import sys, os, struct, re
from asmlib import *

NAME = "sequential_preLN__sliding_local_dilated__glu_gated_reglu__prompt"
INSTR = int(os.environ.get("INSTR", "0"))
OPT = dict(x.split("=") for x in os.environ.get("OPT", "").split(",") if x)
def opt(k, d):
    return int(OPT.get(k, d))

WS_ARR = 0x8000
WS_F1 = 0x00000
WS_F2 = 0x10000
WS_F3 = 0x20000
WS_O = 0x100000
WS_H = 0x300000
WS_HH = 0x500000
WS_ST = 0xC00000
WS_PROF = 0xE00000
WS_R3 = 0x1000000
WS_R2 = 0x1400000
WS_R4 = 0x1500000
WS_CS = 0x1700000
WS_S1 = 0x1780000
WS_SIZE = 0x2000000
HHK = 48
OOB = 0x7f000000

sXCC = 3
SX, SWQ, SWS, SOUT, SDBG, SB3, SWO, SWD = 4, 8, 12, 16, 20, 24, 28, 32
sW, sG, sJ, sHB, sCB, sRB, sIDX, sW1, sWH, sW12, sG3, sJ3 = range(36, 48)
sA, sB, sC, sBA, sCNT = 48, 49, 50, 51, 52
sFAST, sNON, sFLG, sFLA, sK4, sB3b = 53, 54, 55, 56, 57, 58
sKC0, sXo0, sXo1, sXo2 = 60, 61, 62, 63
KA = 64
sM1, sM2, sM3, sDiag = 64, 66, 68, 70
sB2l, sB2h, sB4l, sB4h, sB4zl, sB4zh = 72, 73, 74, 75, 76, 77
sSQ, sDUM = 78, 80
t1, t2, t3 = 81, 82, 83
sXl, sXl2, sWl, sWs = 84, 85, 86, 87
sEX0, sEX2, sW0, sHM = 88, 90, 92, 94

vL, vJ, vQ, vL16 = 1, 2, 3, 4
vAo, vF, vFo = 5, 6, 7
vT0, vT1, vT2, vT3 = 8, 9, 10, 11
vSTAMP = 15
vDs = 16
vSt = 17
HRES = 18
ones = 28
VA = 244

SLOT = 34816
STG = 104448
NONW = 162812
ST1 = 162816

LOG2E = 1.4426950408889634
MF = "v_mfma_f32_16x16x32_bf16"
MF16 = "v_mfma_f32_16x16x16_bf16"
WSS = f"s[{SWS}:{SWS+3}]"


def f32hex(x):
    return "0x%08x" % struct.unpack("<I", struct.pack("<f", x))[0]


STAMPN = [0]
STAMPNAMES = []
def stamp(A, name=""):
    if not INSTR:
        return
    if INSTR == 2 and not any(k in name for k in ("start", "end", "loop done", "mfma done", "bar0")):
        return
    i = STAMPN[0]
    STAMPN[0] += 1
    STAMPNAMES.append(name)
    assert i < 60
    A(f"s_memtime s[100:101]\ns_waitcnt lgkmcnt(0)\nv_writelane_b32 v{vSTAMP}, s100, {i}")


def emit(A, items):
    for it in items:
        if callable(it):
            it()
        else:
            A(it[0], tag=it[1])


def weave(main, fills):
    out = []
    pos = [0] * len(fills)
    for i, m in enumerate(main):
        out.append(m)
        for k, (items, start, per) in enumerate(fills):
            if i >= start:
                n = per(i) if callable(per) else per
                out.extend(items[pos[k]:pos[k] + n])
                pos[k] += n
    for k, (items, start, per) in enumerate(fills):
        out.extend(items[pos[k]:])
    return out


def unpack_pk(t):
    mn, rest = t.split(None, 1)
    toks = rest.split()
    ops = [x.strip(",") for x in toks if x.startswith("v[")]
    mods = {x.split(":")[0]: eval(x.split(":", 1)[1]) for x in toks if x.startswith(("op_sel", "neg_"))}
    n = len(ops) - 1
    base = [int(re.match(r"v\[(\d+):", o).group(1)) for o in ops]
    sel_lo = mods.get("op_sel", [0] * n)
    sel_hi = mods.get("op_sel_hi", [1] * n)
    neg_lo = mods.get("neg_lo", [0] * n)
    neg_hi = mods.get("neg_hi", [0] * n)
    op = {"v_pk_add_f32": "v_add_f32", "v_pk_mul_f32": "v_mul_f32", "v_pk_fma_f32": "v_fma_f32"}[mn]
    out = []
    for half, sel, neg in ((0, sel_lo, neg_lo), (1, sel_hi, neg_hi)):
        srcs = [("-" if neg[i] else "") + f"v{base[i+1] + sel[i]}" for i in range(n)]
        out.append(f"{op} v{base[0]+half}, " + ", ".join(srcs))
    return out


def B2reg(st, ct):
    return ("a", 192 + (st * 4 + ct) * 4)
def B4reg(st, ct):
    if st < 4:
        return ("a", 192 + (st * 4 + ct) * 4)
    if st < 7:
        return ("v", 208 + ((st - 4) * 4 + ct) * 4)
    return ("a", ((st - 7) * 4 + ct) * 4)
def B3reg(ks, u):
    return ("a", (ks * 3 + u) * 4)


VD3 = [5, 17, 7]
VTR3 = [204, 205, 206]
sS3, sS2, sS4, sL2 = 72, 73, 74, 75


def w3_dma(ks, base):
    return [(f"""
    s_mul_i32 s{sBA}, s{sW}, 3072
    s_add_u32 m0, s{sBA}, {base}
    s_add_u32 s{sBA}, s{sS3}, {ks*32*2752}
    buffer_load_dwordx4 v{VD3[0]}, s[{SB3}:{SB3+3}], s{sBA} offen lds
    buffer_load_dwordx4 v{VD3[1]}, s[{SB3}:{SB3+3}], s{sBA} offen offset:1024 lds
    buffer_load_dwordx4 v{VD3[2]}, s[{SB3}:{SB3+3}], s{sBA} offen offset:2048 lds""", f"w3_{ks}")]


def w3_tr(A, kss, bases):
    cur = 0
    for ks, base in zip(kss, bases):
        if base - cur + 6144 > 65535:
            for u in range(3):
                A(f"v_add_u32 v{VTR3[u]}, {base - cur}, v{VTR3[u]}")
            cur = base
        for u in range(3):
            for hf in range(2):
                A(f"ds_read_b64_tr_b16 {r(B3reg(ks,u), hf*2, 2)}, v{VTR3[u]} offset:{base - cur + hf*6144}", tag="w3t")
    if cur:
        for u in range(3):
            A(f"v_subrev_u32 v{VTR3[u]}, {cur}, v{VTR3[u]}")


def k_dma(srd_, ssrc, st, sg, c0, tag, zero_w3=False):
    it = []
    for p in range(4):
        z = f"""
        s_cmp_eq_u32 s{sW}, 3
        s_cselect_b32 s{sBA}, {OOB}, s{sBA}""" if zero_w3 else ""
        it.append((f"""
        s_add_u32 m0, s{sg}, {c0 + p*1024}
        s_add_u32 s{sBA}, s{ssrc}, {st*32768 + p*8192}{z}
        buffer_load_dwordx4 v{vDs}, s[{srd_}:{srd_+3}], s{sBA} offen lds""", tag))
    return it


LS = [n * 12288 for n in range(5)]
US = [65536, 77824, 90112, 129024]
W3SLOT = {0: LS[0], 1: LS[1], 2: LS[2], 3: LS[3], 4: LS[4], 5: US[2], 6: US[0], 7: US[1], 8: US[3],
          9: LS[0], 10: LS[1], 11: LS[2], 12: US[2], 13: US[0], 14: US[1], 15: US[3]}
STB = 141312
def w3i(kss):
    return [x for ks in kss for x in w3_dma(ks, W3SLOT[ks])]
def w3w(A, kss):
    A.wait_vm([f"w3_{ks}" for ks in kss])
def w3r(A, kss):
    kss = sorted(kss, key=lambda k: W3SLOT[k])
    w3_tr(A, kss, [W3SLOT[k] for k in kss])

LBL = [0]
def newlbl():
    LBL[0] += 1
    return LBL[0]


def spin(A, tag, test, reprobe, limit=0x40000, only_w0=False, after=None, sleep=0, mid=None):
    n = newlbl()
    A.wait_vm(tag)
    if mid:
        mid()
    saved = list(A.vm)
    A.fence()
    if only_w0:
        A(f"s_cmp_eq_u32 s{sW}, 0\ns_cbranch_scc0 L_skip{n}")
    A(f"s_mov_b32 s{sCNT}, 0")
    A.raw(f"L_wait{n}:")
    test(f"L_go{n}")
    if sleep:
        A(f"s_sleep {sleep}")
    reprobe()
    A(f"""
    s_waitcnt vmcnt(0)
    s_add_u32 s{sCNT}, s{sCNT}, 1
    s_cmp_lt_u32 s{sCNT}, {limit}
    s_cbranch_scc1 L_wait{n}
    """)
    A.raw(f"L_go{n}:")
    A.fence()
    if after:
        after()
    if only_w0:
        A.raw(f"L_skip{n}:")
    A.vm = saved
    A.fence()


def flag_test(A, step, mask):
    def t(lbl):
        A(f"""
        s_add_u32 s{sBA}, s{sNON}, {step}
        v_subrev_u32 v{vF}, s{sBA}, v{vF}
        v_cmp_lt_u32 vcc, 15, v{vF}
        s_and_b64 vcc, vcc, {mask}
        s_cbranch_scc0 {lbl}
        """)
    return t


PS = [60, 84, 88, 8]
def wg_signal(A, base, sg, sj, step):
    A(f"""
    s_add_u32 s{sBA}, s{sNON}, {step}
    v_mov_b32 v{vT0}, s{sBA}
    v_mov_b32 v{vT1}, 0
    s_lshl_b32 s{sBA}, s{sg}, 9
    s_lshr_b32 s{sCNT}, s{sj}, 2
    s_lshl_b32 s{sCNT}, s{sCNT}, 7
    s_add_u32 s{sBA}, s{sBA}, s{sCNT}
    s_and_b32 s{sCNT}, s{sj}, 3
    s_lshl_b32 s{sCNT}, s{sCNT}, 2
    s_add_u32 s{sBA}, s{sBA}, s{sCNT}
    s_add_u32 s{sBA}, s{sBA}, {base}
    s_mov_b64 exec, s[{sW0}:{sW0+1}]
    """)
    A(f"buffer_store_dword v{vT0}, v{vT1}, {WSS}, s{sBA} offen sc1", tag="~wgf")
    A("s_mov_b64 exec, -1")


def wg_poll(A, base, sg, step, half=False):
    n = newlbl()
    nl = 2 if half else 4
    A("s_waitcnt lgkmcnt(0)")
    A.fence()
    A(f"""
    s_cmp_eq_u32 s{sW}, 0
    s_cbranch_scc0 L_skip{n}
    s_lshl_b32 s{sBA}, s{sg}, 9
    """ + (f"""s_lshl_b32 s{sCNT}, s{sHB}, 8
    s_add_u32 s{sBA}, s{sBA}, s{sCNT}
    """ if half else "") + f"""
    s_add_u32 s{sBA}, s{sBA}, {base}
    s_add_u32 s96, s{SWS}, s{sBA}
    s_addc_u32 s97, s{SWS+1}, 0
    s_add_u32 s98, s{sNON}, {step}
    s_mov_b32 s{sCNT}, 0
    """)
    A.raw(f"L_wait{n}:")
    for i in range(nl):
        A(f"s_load_dwordx4 s[{PS[i]}:{PS[i]+3}], s[96:97], {i*128} glc")
    A("s_waitcnt lgkmcnt(0)")
    first = True
    for i in range(nl):
        for k in range(4):
            if first:
                A(f"s_sub_u32 s{sBA}, s{PS[i]+k}, s98")
                first = False
            else:
                A(f"s_sub_u32 s99, s{PS[i]+k}, s98\ns_or_b32 s{sBA}, s{sBA}, s99")
    A(f"""
    s_cmp_lt_u32 s{sBA}, 16
    s_cbranch_scc1 L_skip{n}
    s_add_u32 s{sCNT}, s{sCNT}, 1
    s_cmp_lt_u32 s{sCNT}, 0x40000
    s_cbranch_scc1 L_wait{n}
    """)
    A.raw(f"L_skip{n}:")
    A("s_barrier")


def vprobe(A, base, sg, tag):
    A(f"""
    s_lshl_b32 s{sBA}, s{sg}, 9
    s_add_u32 s{sBA}, s{sBA}, {base}
    v_lshrrev_b32 v{vT3}, 2, v{vJ}
    v_lshlrev_b32 v{vT3}, 7, v{vT3}
    v_and_b32 v{vT2}, 3, v{vJ}
    v_lshl_add_u32 v{vT3}, v{vT2}, 2, v{vT3}
    """)
    A(f"buffer_load_dword v{vF}, v{vT3}, {WSS}, s{sBA} offen sc1", tag=tag)

def vcheck(A, base, sg, step, tag):
    spin(A, tag, flag_test(A, step, "-1"), lambda: vprobe(A, base, sg, None))


def srd(A, d, p, n):
    A(f"""
    s_mov_b32 s{d}, s{p}
    s_and_b32 s{d+1}, s{p+1}, 0xffff
    s_mov_b32 s{d+2}, {n}
    s_mov_b32 s{d+3}, 0x20000
    """)


KS_ = [None]
LATE_ = [None]
class KS:
    def __init__(self, A, which):
        self.A, self.P2 = A, which == 2
        self.nst = 4 if self.P2 else 11
        self.RW = [12, 13, 14] if self.P2 else [204, 205, 206]
        self.vRr, self.vXo = (26, 27) if self.P2 else (207, 27)
        self.acc = [32, 64]
        self.T = 96
        self.U = 120
        if self.P2:
            self.Afr = lambda h, t, st: v(128 + ((h * 2 + t) * 4 + st) * 4, 4)
            self.Bf = B2reg
        else:
            def Afr(h, t, st):
                idx = (h * 2 + t) * 11 + st
                return a_(64 + idx * 4, 4) if idx < 32 else v(128 + (idx - 32) * 4, 4)
            self.Afr = Afr
            self.Bf = B4reg
        self.RED = [0, 0] if self.P2 else [0, 24576]
        self.REDB = 104448 if self.P2 else 0

    def setup(self):
        A = self.A
        for k in range(1, 4):
            A(f"""
            s_xor_b32 s{t1}, s{sW}, {k}
            s_mul_i32 s{t1}, s{t1}, 6144
            s_add_u32 s{t1}, s{t1}, {(k-1)*2048 + self.REDB}
            v_add_u32 v{self.RW[k-1]}, s{t1}, v{vL16}
            """)
        A(f"""
        s_mul_i32 s{t1}, s{sW}, 6144
        s_add_u32 s{t1}, s{t1}, {self.REDB}
        v_add_u32 v{self.vRr}, s{t1}, v{vL16}
        v_lshlrev_b32 v{self.vXo}, 10, v{vJ}
        v_lshl_add_u32 v{self.vXo}, v{vQ}, 3, v{self.vXo}
        """)

    def rowcol(self, h, dst):
        return f"""
        s_lshl_b32 s{dst}, s{sRB}, 16
        s_lshl_b32 s{sB}, s{sWH}, 14
        s_add_u32 s{dst}, s{dst}, s{sB}
        s_lshl_b32 s{sB}, s{sCB}, 7
        s_add_u32 s{dst}, s{dst}, s{sB}
        s_lshl_b32 s{sB}, s{sW1}, 6
        s_add_u32 s{dst}, s{dst}, s{sB}
        s_add_u32 s{dst}, s{dst}, {h*32768}
        """

    def res_loads(self):
        A = self.A
        for h in range(2):
            A(self.rowcol(h, sC))
            for i in range(2):
                A(f"buffer_load_dwordx2 v[{HRES+4*h+2*i}:{HRES+4*h+2*i+1}], v{self.vXo}, s[{SX}:{SX+3}], s{sC} offen offset:{i*32}", tag="res")

    def a_loads(self, h, skip=0):
        base = WS_O if self.P2 else WS_HH
        pitch = 16 if self.P2 else HHK
        k0 = f"s_lshl_b32 s{sB}, s{sW}, 2" if self.P2 else f"s_mov_b32 s{sB}, s{sK4}"
        it = []
        for t in range(2):
            pre = f"""
            s_xor_b32 s{sA}, s{sWH}, {t}
            s_lshl_b32 s{sB}, s{sRB}, 2
            s_add_u32 s{sA}, s{sA}, s{sB}
            s_add_u32 s{sA}, s{sA}, {2*h}
            s_mul_i32 s{sA}, s{sA}, {pitch}
            {k0}
            s_add_u32 s{sA}, s{sA}, s{sB}
            s_lshl_b32 s{sA}, s{sA}, 10
            s_add_u32 s{sA}, s{sA}, {base}
            """
            for st in range(self.nst):
                if st % 4 == 0 and st > 0:
                    pre += f"s_add_u32 s{sA}, s{sA}, 4096\n"
                if t * self.nst + st < skip:
                    continue
                it.append((pre + f"buffer_load_dwordx4 {self.Afr(h,t,st)}, v{vL16}, {WSS}, s{sA} offen offset:{(st%4)*1024}", f"a{h}_{t}_{st}"))
                pre = ""
        return it

    def mfmas(self, h, fill=()):
        A = self.A
        fill = list(fill)
        acc = self.acc[h]
        for t in range(2):
            for st in range(self.nst):
                A.wait_vm(f"a{h}_{t}_{st}")
                for ct in range(4):
                    d = v(acc + (t * 4 + ct) * 4, 4)
                    A(f"{MF} {d}, {r(self.Bf(st,ct),0,4)}, {self.Afr(h,t,st)}, {'0' if st==0 else d}")
                    if ct == 1 and fill:
                        emit(A, [fill.pop(0)])
                if t == 1 and st == 1:
                    for i in range(2):
                        A(f"ds_write_b128 v{self.RW[0]}, {v(acc+(2+i)*4,4)} offset:{self.RED[h]+i*1024}")
        emit(A, fill)
        for k in (2, 3):
            for i in range(2):
                A(f"ds_write_b128 v{self.RW[k-1]}, {v(acc+(k*2+i)*4,4)} offset:{self.RED[h]+i*1024}")

    def reduce(self, h, pre_barrier=None, post_barrier=None):
        A = self.A
        acc, T, U = self.acc[h], self.T, self.U
        if pre_barrier:
            pre_barrier()
        A("s_waitcnt lgkmcnt(0)\ns_barrier")
        for k in range(3):
            for i in range(2):
                A(f"ds_read_b128 {v(T+(k*2+i)*4,4)}, v{self.vRr} offset:{self.RED[h]+k*2048+i*1024}", tag=f"rd{k}")
        if post_barrier:
            post_barrier()
        A.wait_vm("res")
        for i in range(4):
            A(f"v_lshlrev_b32 v{U+2*i}, 16, v{HRES+4*h+i}")
            A(f"v_and_b32 v{U+2*i+1}, 0xffff0000, v{HRES+4*h+i}")
        for i in range(4):
            A(f"v_pk_add_f32 v[{acc+2*i}:{acc+2*i+1}], v[{acc+2*i}:{acc+2*i+1}], v[{U+2*i}:{U+2*i+1}]")
        for k in range(3):
            A.wait_lg(f"rd{k}")
            for i in range(4):
                b = T + k * 8 + 2 * i
                A(f"v_pk_add_f32 v[{acc+2*i}:{acc+2*i+1}], v[{acc+2*i}:{acc+2*i+1}], v[{b}:{b+1}]")
        PK = HRES + 4 * h
        for i in range(4):
            A(f"v_cvt_pk_bf16_f32 v{PK+i}, v{acc+2*i}, v{acc+2*i+1}")
        if self.P2:
            G, S_ = acc + 8, acc + 12
            A(f"""
            s_lshl_b32 s{sC}, s{sRB}, 16
            s_lshl_b32 s{sB}, s{sWH}, 14
            s_add_u32 s{sC}, s{sC}, s{sB}
            s_lshl_b32 s{sB}, s{sCB}, 11
            s_add_u32 s{sC}, s{sC}, s{sB}
            s_lshl_b32 s{sB}, s{sW1}, 10
            s_add_u32 s{sC}, s{sC}, s{sB}
            s_add_u32 s{sC}, s{sC}, {WS_H + h*32768}
            {MF} {v(G,4)}, {v(PK,4)}, {v(PK,4)}, 0
            {MF} {v(S_,4)}, {v(ones,4)}, {v(PK,4)}, 0
            """)
            A(f"buffer_store_dwordx4 v[{PK}:{PK+3}], v{vL16}, {WSS}, s{sC} offen sc1", tag=f"hst{h}")
            A(f"""
            v_lshlrev_b32 v{vT2}, 3, v{vJ}
            s_lshl_b32 s{sC}, s{sRB}, 13
            s_lshl_b32 s{sB}, s{sWH}, 11
            s_add_u32 s{sC}, s{sC}, s{sB}
            s_lshl_b32 s{sB}, s{sCB}, 8
            s_add_u32 s{sC}, s{sC}, s{sB}
            s_lshl_b32 s{sB}, s{sW1}, 7
            s_add_u32 s{sC}, s{sC}, s{sB}
            s_add_u32 s{sC}, s{sC}, {WS_ST + h*4096}
            v_cndmask_b32 v{S_+1}, v{G}, v{G+1}, s[{sM1}:{sM1+1}]
            v_cndmask_b32 v{S_+1}, v{S_+1}, v{G+2}, s[{sM2}:{sM2+1}]
            v_cndmask_b32 v{S_+1}, v{S_+1}, v{G+3}, s[{sM3}:{sM3+1}]
            s_mov_b64 exec, s[{sDiag}:{sDiag+1}]
            """)
            A(f"buffer_store_dwordx2 v[{S_}:{S_+1}], v{vT2}, {WSS}, s{sC} offen sc1", tag=f"hst{h}")
            A("s_mov_b64 exec, -1")
        else:
            A(self.rowcol(h, sC))
            for i in range(2):
                A(f"buffer_store_dwordx2 v[{PK+2*i}:{PK+2*i+1}], v{self.vXo}, s[{SOUT}:{SOUT+3}], s{sC} offen offset:{i*32} nt")


def p1(A, label):
    ST = ST1
    vWe, vWo_, vA0, vA1, vWt = 32, 33, 34, 35, 36
    vA0b, vA1b, vWtb = 37, 38, 39
    vSa, vSc, vSl, vOst = 40, 41, 42, 43
    vP0 = 44
    accQ, accK, accV = 48, 68, 88
    Af = [108, 128]
    Wf = [148, 160]
    biasP, biasC, biasF, selLo, selHi = 196, 200, 204, 208, 209
    WO = 10240
    XR = 180
    S1, S2 = 188, 189
    vXr = 192

    A.raw(".p2align 8\n.globl %s\n.type %s,@function\n%s:" % (label, label, label))
    if INSTR:
        A("s_memrealtime s[100:101]\ns_waitcnt lgkmcnt(0)\nv_writelane_b32 v15, s100, 62")
        stamp(A, "start")
    xrot = f"s_and_b32 s{sB}, s2, 7" if opt("xrot", 1) else f"s_mov_b32 s{sB}, 0"
    crot = {0: f"s_mov_b32 s{sA}, 0", 1: f"s_lshl_b32 s{sA}, s{sA}, 2", 2: f"s_mov_b32 s{sA}, s{sCB}",
            3: f"s_lshr_b32 s{sA}, s{sIDX}, 3\ns_and_b32 s{sA}, s{sA}, 1\ns_lshl_b32 s{sA}, s{sA}, 2\ns_add_u32 s{sA}, s{sA}, s{sCB}"}[opt("crot", 2)]
    A(f"""
    s_cmp_ge_u32 s2, 256
    s_cbranch_scc1 L_done
    s_load_dwordx16 s[{KA}:{KA+15}], s[0:1], 0
    s_load_dwordx4 s[{KA+16}:{KA+19}], s[0:1], 64
    s_memrealtime s[98:99]
    v_and_b32 v{vL}, 63, v0
    v_lshrrev_b32 v{vT0}, 6, v0
    s_lshr_b32 s{sIDX}, s2, 3
    s_and_b32 s{sG}, s2, 7
    s_lshl_b32 s{sG}, s{sG}, 1
    v_readfirstlane_b32 s{sW}, v{vT0}
    s_lshr_b32 s{sA}, s{sIDX}, 4
    s_add_u32 s{sG}, s{sG}, s{sA}
    s_and_b32 s{sJ}, s{sIDX}, 15
    s_lshr_b32 s{sHB}, s{sJ}, 3
    s_and_b32 s{sCB}, s{sJ}, 7
    s_lshl_b32 s{sRB}, s{sG}, 1
    s_add_u32 s{sRB}, s{sRB}, s{sHB}
    s_lshr_b32 s{sWH}, s{sW}, 1
    s_and_b32 s{sW1}, s{sW}, 1
    v_lshrrev_b32 v{vT0}, 3, v{vL}
    v_and_b32 v{vT1}, 7, v{vL}
    v_and_b32 v{vT2}, 6, v{vT0}
    v_xor_b32 v{vT2}, v{vT1}, v{vT2}
    v_lshlrev_b32 v{vT2}, 4, v{vT2}
    v_lshl_add_u32 v{vDs}, v{vT0}, 10, v{vT2}
    v_and_b32 v{vT2}, 2, v{vT0}
    v_xor_b32 v{vT2}, v{vT1}, v{vT2}
    v_lshlrev_b32 v{vT2}, 4, v{vT2}
    v_mul_u32_u24 v{vWe}, 3072, v{vT0}
    v_add_u32 v{vWe}, v{vWe}, v{vT2}
    v_xor_b32 v{vWo_}, 64, v{vWe}
    v_add_u32 v{vWo_}, 24576, v{vWo_}
    s_lshr_b32 s{sA}, s{sIDX}, 3
    s_add_u32 s{sA}, s{sA}, s{sCB}
    s_and_b32 s{sA}, s{sA}, 1
    {crot}
    {xrot}
    s_add_u32 s{sKC0}, s{sA}, s{sB}
    s_lshl_b32 s{sA}, s{sRB}, 16
    s_sub_u32 s{sA}, s{sA}, 16384
    s_lshl_b32 s{sB}, s{sW}, 14
    s_add_u32 s{sXo0}, s{sA}, s{sB}
    s_add_u32 s{sXo1}, s{sXo0}, 8192
    s_max_i32 s{sXo0}, s{sXo0}, 0
    s_max_i32 s{sXo1}, s{sXo1}, 0
    s_lshl_b32 s{sC}, s{sWH}, 13
    s_add_u32 s{sXo2}, s{sA}, s{sC}
    s_add_u32 s{sXo2}, s{sXo2}, 65536
    s_lshl_b32 s{sXl}, s{sW}, 11
    s_lshl_b32 s{sXl2}, s{sWH}, 10
    s_add_u32 s{sXl2}, s{sXl2}, 8192
    s_mul_i32 s{sWl}, s{sW}, 6144
    s_add_u32 s{sWl}, s{sWl}, {WO}
    s_mul_i32 s{sWs}, s{sW}, 49152
    s_lshl_b32 s{sB}, s{sCB}, 7
    s_add_u32 s{sWs}, s{sWs}, s{sB}
    s_cmp_eq_u32 s{sW}, 0
    s_cselect_b32 s{sEX0}, 0xffffff00, -1
    s_mov_b32 s{sEX0+1}, -1
    s_cselect_b32 s{sW0}, 1, 0
    s_mov_b32 s{sW0+1}, 0
    s_cmp_eq_u32 s{sW1}, 0
    s_cselect_b32 s{sEX2}, -1, 0
    s_cselect_b32 s{sEX2+1}, 0, -1
    s_lshl_b32 s{sFLG}, s{sG}, 8
    v_and_b32 v{vJ}, 15, v{vL}
    v_lshrrev_b32 v{vQ}, 4, v{vL}
    v_lshlrev_b32 v{vL16}, 4, v{vL}
    v_lshlrev_b32 v{vXr}, 5, v{vL}
    s_waitcnt lgkmcnt(0)
    """)
    srd(A, SWQ, KA + 2, 512 * 1536 * 2)
    srd(A, SX, KA + 0, 2048 * 512 * 2)
    stamp(A, "kernarg ok")

    def dma(i):
        slot = i % 3
        it = []
        tag = f"c{i}"
        it.append((f"""
        s_add_u32 s{sA}, s{sKC0}, {i}
        s_and_b32 s{sA}, s{sA}, 7
        s_mul_i32 s{sC}, s{sA}, {64*3072}
        s_add_u32 s{sC}, s{sC}, s{sWs}
        s_lshl_b32 s{sA}, s{sA}, 7
        s_add_u32 m0, s{sWl}, {slot*SLOT}
        buffer_load_dwordx4 v{vWe}, s[{SWQ}:{SWQ+3}], s{sC} offen lds""", tag))
        for sec in (1, 2):
            it.append((f"buffer_load_dwordx4 v{vWe}, s[{SWQ}:{SWQ+3}], s{sC} offen offset:{sec*1024} lds", tag))
        for sec in range(3):
            pre = f"s_add_u32 m0, s{sWl}, {slot*SLOT+3072}\n" if sec == 0 else ""
            it.append((pre + f"buffer_load_dwordx4 v{vWo_}, s[{SWQ}:{SWQ+3}], s{sC} offen offset:{sec*1024} lds", tag))
        it.append((f"""
        s_mov_b64 exec, s[{sEX0}:{sEX0+1}]
        s_add_u32 m0, s{sXl}, {slot*SLOT}
        s_add_u32 s{sB}, s{sXo0}, s{sA}
        buffer_load_dwordx4 v{vDs}, s[{SX}:{SX+3}], s{sB} offen lds
        s_mov_b64 exec, -1""", tag))
        it.append((f"""
        s_add_u32 m0, s{sXl}, {slot*SLOT+1024}
        s_add_u32 s{sB}, s{sXo1}, s{sA}
        buffer_load_dwordx4 v{vDs}, s[{SX}:{SX+3}], s{sB} offen lds""", tag))
        it.append((f"""
        s_mov_b64 exec, s[{sEX2}:{sEX2+1}]
        s_add_u32 m0, s{sXl2}, {slot*SLOT}
        s_add_u32 s{sB}, s{sXo2}, s{sA}
        buffer_load_dwordx4 v{vDs}, s[{SX}:{SX+3}], s{sB} offen lds
        s_mov_b64 exec, -1""", tag))
        return it


    if opt("s3pf", 1):
        A(f"""
        s_lshl_b32 s{sA}, s{sIDX}, 2
        s_add_u32 s{sA}, s{sA}, s{sW}
        s_mul_i32 s{sA}, s{sA}, 12288
        v_lshlrev_b32 v{vT3}, 10, v{vL}
        s_mov_b64 exec, 0xfff
        buffer_load_dword v{vF}, v{vT3}, s[{SWQ}:{SWQ+3}], s{sA} offen offset:384
        s_mov_b64 exec, -1
        """)
    emit(A, dma(0))
    srd(A, SDBG, KA + 16, 256)
    A(f"""
    s_lshl_b32 s98, s98, 5
    s_or_b32 s98, s98, 16
    v_mov_b32 v{vT0}, s98
    v_mov_b32 v{vT1}, 0
    v_mov_b32 v{vT2}, 0
    s_lshl_b32 s99, s2, 2
    s_add_u32 s99, s99, s{sW}
    s_and_b32 s99, s99, 0xffffffe3
    s_cmp_eq_u32 s99, 0
    s_cselect_b64 exec, 1, 0
    """)
    A(f"buffer_atomic_cmpswap v[{vT0}:{vT1}], v{vT2}, s[{SDBG}:{SDBG+3}], 0 offen sc1", tag="~cas")
    A(f"""
    s_mov_b64 exec, -1
    s_lshl_b32 s{sA}, s{sRB}, 16
    s_lshl_b32 s{sB}, s{sCB}, 13
    s_add_u32 s{sA}, s{sA}, s{sB}
    s_lshl_b32 s{sB}, s{sW}, 11
    s_add_u32 s{sA}, s{sA}, s{sB}
    """)
    A(f"buffer_load_dwordx4 v[{XR}:{XR+3}], v{vXr}, s[{SX}:{SX+3}], s{sA} offen", tag="e")
    A(f"buffer_load_dwordx4 v[{XR+4}:{XR+7}], v{vXr}, s[{SX}:{SX+3}], s{sA} offen offset:16", tag="e")
    if opt("cpf", 1):
        A("s_getpc_b64 s[96:97]")
        A.raw("L_pc:")
        A(f"""
        s_lshl_b32 s{sA}, s{sIDX}, 10
        v_lshrrev_b32 v{vT3}, 5, v0
        v_lshlrev_b32 v{vT3}, 7, v{vT3}
        v_add_u32 v{vT3}, s{sA}, v{vT3}
        v_min_u32 v{vT3}, L_done-L_pc, v{vT3}
        global_load_dword v{vF}, v{vT3}, s[96:97]
        """)
    stamp(A, "c0+early issued")
    srd(A, SWO, KA + 4, 512 * 512 * 2)
    srd(A, SWS, KA + 18, WS_SIZE)
    srd(A, SOUT, KA + 14, 2048 * 512 * 2)
    srd(A, SWD, KA + 12, 1376 * 512 * 2)
    if opt("tlb", 0):
        A(f"""
        v_lshlrev_b32 v{vT3}, 21, v{vL}
        s_mov_b64 exec, 0xfff
        buffer_load_dword v{vF}, v{vT3}, {WSS}, 0 offen offset:2048
        s_mov_b64 exec, 1
        buffer_load_dword v{vF}, v{vT3}, s[{SOUT}:{SOUT+3}], 0 offen
        buffer_load_dword v{vF}, v{vT3}, s[{SWO}:{SWO+3}], 0 offen
        buffer_load_dword v{vF}, v{vT3}, s[{SWD}:{SWD+3}], 0 offen
        s_mov_b64 exec, -1
        """)
    A(f"""
    s_cmp_eq_u32 s{sW1}, 0
    s_cselect_b32 s{SB3}, s{KA+8}, s{KA+10}
    s_cselect_b32 s{SB3+1}, s{KA+9}, s{KA+11}
    s_and_b32 s{SB3+1}, s{SB3+1}, 0xffff
    s_mov_b32 s{SB3+2}, {512*1376*2}
    s_mov_b32 s{SB3+3}, 0x20000
    v_mov_b32 v{ones}, 0x3f803f80
    v_mov_b32 v{ones+1}, 0x3f803f80
    v_mov_b32 v{ones+2}, 0x3f803f80
    v_mov_b32 v{ones+3}, 0x3f803f80
    v_lshrrev_b32 v{vT0}, 3, v{vJ}
    v_and_b32 v{vT1}, 7, v{vJ}
    v_lshlrev_b32 v{vT1}, 7, v{vT1}
    v_lshl_add_u32 v{vT0}, v{vT0}, 10, v{vT1}
    v_and_b32 v{vT1}, 6, v{vJ}
    v_xor_b32 v{vT1}, v{vQ}, v{vT1}
    v_lshl_add_u32 v{vA0}, v{vT1}, 4, v{vT0}
    v_xor_b32 v{vA1}, 64, v{vA0}
    v_bfe_u32 v{vT0}, v{vL}, 2, 2
    v_bfe_u32 v{vT1}, v{vL}, 1, 1
    s_lshl_b32 s{sA}, s{sW}, 1
    v_add_u32 v{vT1}, s{sA}, v{vT1}
    v_and_b32 v{vT2}, 1, v{vQ}
    v_lshlrev_b32 v{vT2}, 2, v{vT2}
    v_xor_b32 v{vT1}, v{vT1}, v{vT2}
    v_and_b32 v{vT2}, 2, v{vT0}
    v_xor_b32 v{vT1}, v{vT1}, v{vT2}
    v_lshlrev_b32 v{vT1}, 4, v{vT1}
    v_lshl_add_u32 v{vT1}, v{vT0}, 7, v{vT1}
    v_and_b32 v{vT2}, 1, v{vL}
    v_lshl_add_u32 v{vT1}, v{vT2}, 3, v{vT1}
    v_mul_u32_u24 v{vT2}, 3072, v{vQ}
    v_add_u32 v{vT1}, v{vT1}, v{vT2}
    v_add_u32 v{vWt}, {WO}, v{vT1}
    v_add_u32 v{vA0b}, {2*SLOT}, v{vA0}
    v_add_u32 v{vA1b}, {2*SLOT}, v{vA1}
    v_add_u32 v{vWtb}, {2*SLOT}, v{vWt}
    v_lshrrev_b32 v{vT0}, 3, v{vL}
    v_mul_u32_u24 v{vT0}, {SLOT}, v{vT0}
    v_and_b32 v{vT1}, 7, v{vL}
    v_lshl_add_u32 v{vT0}, v{vT1}, 4, v{vT0}
    s_mov_b64 exec, 0xffffff
    ds_write_b128 v{vT0}, v[{ones}:{ones+3}]
    s_mov_b64 exec, -1
    v_mov_b32 v{vT3}, 0
    s_cmp_eq_u32 s{sW}, 0
    s_cselect_b64 exec, -1, 0
    """)
    A(f"buffer_load_dword v{vF}, v{vT3}, s[{SDBG}:{SDBG+3}], 0 offen sc1", tag="~non")
    A("s_mov_b64 exec, -1")
    d1 = dma(1)
    emit(A, d1[:opt("d1a", 3)])
    A(f"s_mov_b32 s96, s{sA}\ns_mov_b32 s97, s{sC}")
    role = f"""
    s_and_b32 s{t1}, s2, 7
    s_lshr_b32 s{t2}, s{t1}, 1
    s_lshl_b32 s{sG3}, s{t2}, 2
    s_lshr_b32 s{t2}, s{sIDX}, 3
    s_add_u32 s{sG3}, s{sG3}, s{t2}
    s_and_b32 s{t1}, s{t1}, 1
    s_lshl_b32 s{sJ3}, s{t1}, 3
    s_and_b32 s{t2}, s{sIDX}, 7
    s_add_u32 s{sJ3}, s{sJ3}, s{t2}
    """ if opt("p3x", 1) else f"""
    s_mov_b32 s{sG3}, s{sG}
    s_mov_b32 s{sJ3}, s{sJ}
    """
    A(role + f"s_lshl_b32 s{sA}, s{sW1}, 5")
    for n in range(3):
        A(f"""
        v_add_u32 v{vT0}, {64*n}, v{vL}
        v_mul_u32_u24 v{vT1}, 43691, v{vT0}
        v_lshrrev_b32 v{vT1}, 19, v{vT1}
        v_mul_u32_u24 v{vT2}, 12, v{vT1}
        v_sub_u32 v{vT0}, v{vT0}, v{vT2}
        v_bfe_u32 v{vT2}, v{vT1}, 2, 1
        v_xor_b32 v{vT0}, v{vT0}, v{vT2}
        v_mul_u32_u24 v{vT1}, 2752, v{vT1}
        v_lshl_add_u32 v{vT0}, v{vT0}, 4, v{vT1}
        v_xor_b32 v{vT0}, s{sA}, v{vT0}
        v_subrev_u32 v{VD3[n]}, {1024*n}, v{vT0}
        """)
    A(f"""
    s_lshl_b32 s{sW12}, s{sW}, 12
    s_mul_i32 s{sK4}, s{sW}, 11
    s_min_u32 s{sK4}, s{sK4}, 32
    s_mul_i32 s{sS3}, s{sWH}, {16*2752}
    s_mul_i32 s{t1}, s{sJ3}, 192
    s_add_u32 s{sS3}, s{sS3}, s{t1}
    s_cmp_eq_u32 s{sJ3}, 15
    s_cselect_b32 s{sS3}, {OOB}, s{sS3}
    s_lshl_b32 s{t1}, s{sCB}, 7
    s_lshl_b32 s{sS2}, s{sW}, 17
    s_add_u32 s{sS2}, s{sS2}, s{t1}
    s_lshl_b32 s{sS4}, s{sK4}, 15
    s_add_u32 s{sS4}, s{sS4}, s{t1}
    s_mul_i32 s{sL2}, s{sW}, 12288
    s_add_u32 s{sL2}, s{sL2}, {STG}
    """)
    NEG = f32hex(-1e30)
    A(f"""
    v_lshlrev_b32 v{vT0}, 2, v{vQ}
    v_sub_u32 v{vT0}, v{vT0}, v{vJ}
    v_mov_b32 v{vT3}, {NEG}
    s_cmp_eq_u32 s{sRB}, 0
    s_cselect_b64 s[98:99], -1, 0
    """)
    for r_ in range(4):
        A(f"""
        v_add_u32 v{vT1}, {r_}, v{vT0}
        v_and_b32 v{vT2}, 1, v{vT1}
        v_cmp_eq_u32 s[64:65], 0, v{vT2}
        v_cmp_le_i32 s[66:67], 2, v{vT1}
        v_cmp_ge_i32 s[68:69], 0, v{vT1}
        s_and_b64 s[66:67], s[66:67], s[64:65]
        s_and_b64 s[68:69], s[68:69], s[64:65]
        v_cndmask_b32 v{biasP+r_}, v{vT3}, 0, s[66:67]
        v_cndmask_b32 v{biasC+r_}, v{vT3}, 0, s[68:69]
        v_cndmask_b32 v{biasF+r_}, v{biasP+r_}, v{vT3}, s[98:99]
        """)
    A(f"""
    v_and_b32 v{vT0}, 3, v{vJ}
    v_cmp_eq_u32 s[{sM1}:{sM1+1}], 1, v{vT0}
    v_cmp_eq_u32 s[{sM2}:{sM2+1}], 2, v{vT0}
    v_cmp_eq_u32 s[{sM3}:{sM3+1}], 3, v{vT0}
    v_lshrrev_b32 v{vT0}, 2, v{vJ}
    v_cmp_eq_u32 s[{sDiag}:{sDiag+1}], v{vT0}, v{vQ}
    v_and_b32 v{vT1}, 1, v{vJ}
    v_cmp_eq_u32 vcc, 1, v{vT1}
    v_mov_b32 v{vT1}, 0x0c0c0100
    v_mov_b32 v{vT2}, 0x01000c0c
    v_cndmask_b32 v{selLo}, v{vT1}, v{vT2}, vcc
    v_mov_b32 v{vT1}, 0x0c0c0302
    v_mov_b32 v{vT2}, 0x03020c0c
    v_cndmask_b32 v{selHi}, v{vT1}, v{vT2}, vcc
    v_lshlrev_b32 v{vSa}, 2, v{vJ}
    v_add_u32 v{vSa}, {ST}, v{vSa}
    v_lshlrev_b32 v{vSc}, 4, v{vQ}
    v_add_u32 v{vSc}, {ST}, v{vSc}
    s_lshl_b32 s{t1}, s{sRB}, 6
    s_lshl_b32 s{t2}, s{sW1}, 6
    s_add_u32 s{t1}, s{t1}, s{t2}
    s_sub_u32 s{t1}, s{t1}, 16
    v_add_u32 v{vSl}, s{t1}, v{vL}
    v_max_i32 v{vSl}, 0, v{vSl}
    v_min_i32 v{vSl}, 2047, v{vSl}
    v_and_b32 v{vT0}, 1, v{vSl}
    v_lshrrev_b32 v{vSl}, 1, v{vSl}
    v_lshlrev_b32 v{vSl}, 7, v{vSl}
    v_lshl_add_u32 v{vSl}, v{vT0}, 3, v{vSl}
    v_and_b32 v{vT0}, 1, v{vQ}
    v_lshlrev_b32 v{vT0}, 14, v{vT0}
    v_lshrrev_b32 v{vT1}, 1, v{vQ}
    v_lshl_add_u32 v{vT0}, v{vT1}, 8, v{vT0}
    v_lshl_add_u32 v{vOst}, v{vJ}, 4, v{vT0}
    v_min_u32 v{vT0}, 11, v{vJ}
    v_lshrrev_b32 v{vT1}, 2, v{vT0}
    v_and_b32 v{vT0}, 3, v{vT0}
    v_lshlrev_b32 v{vT0}, 2, v{vT0}
    v_lshl_add_u32 v{vT0}, v{vT1}, 7, v{vT0}
    s_lshl_b32 s{t1}, s{sRB}, 8
    s_sub_u32 s{t1}, s{t1}, 128
    v_add_u32 v{vP0}, s{t1}, v{vT0}
    v_max_i32 v{vP0}, 0, v{vP0}
    """)
    stamp(A, "setup done")
    A(f"s_mov_b32 s{sA}, s96\ns_mov_b32 s{sC}, s97")
    emit(A, d1[opt("d1a", 3):])

    def early_compute():
        A(f"v_mov_b32 v{S1}, 0\nv_mov_b32 v{S2}, 0")
        for i in range(8):
            A(f"v_dot2_f32_bf16 v{S1}, v{XR+i}, v{ones}, v{S1}")
            A(f"v_dot2_f32_bf16 v{S2}, v{XR+i}, v{XR+i}, v{S2}")
        for mode in ("quad_perm:[1,0,3,2]", "quad_perm:[2,3,0,1]", "row_half_mirror", "row_mirror"):
            A(f"v_add_f32_dpp v{S1}, v{S1}, v{S1} {mode} row_mask:0xf bank_mask:0xf")
            A(f"v_add_f32_dpp v{S2}, v{S2}, v{S2} {mode} row_mask:0xf bank_mask:0xf")
        A(f"""
        v_mov_b32 v190, v{S1}
        v_mov_b32 v191, v{S2}
        v_lshrrev_b32 v{vT0}, 5, v{vL}
        v_lshlrev_b32 v{vT0}, 3, v{vT0}
        v_permlane16_swap_b32 v{S1}, v190
        v_permlane16_swap_b32 v{S2}, v191
        v_add_f32 v{S1}, v{S1}, v190
        v_add_f32 v{S2}, v{S2}, v191
        v_mul_f32 v{S1}, 0x3b000000, v{S1}
        v_mul_f32 v{S2}, 0x3b000000, v{S2}
        v_fma_f32 v{S2}, -v{S1}, v{S1}, v{S2}
        v_max_f32 v{S2}, 0, v{S2}
        v_add_f32 v{S2}, {f32hex(1e-5)}, v{S2}
        v_rsq_f32 v{S2}, v{S2}
        s_lshl_b32 s{sA}, s{sRB}, 12
        s_lshl_b32 s{sB}, s{sCB}, 9
        s_add_u32 s{sA}, s{sA}, s{sB}
        s_lshl_b32 s{sB}, s{sW}, 7
        s_add_u32 s{sA}, s{sA}, s{sB}
        s_add_u32 s{sA}, s{sA}, {WS_S1}
        s_mov_b32 exec_lo, 1
        s_mov_b32 exec_hi, 1
        """)
        A(f"buffer_store_dwordx2 v[{S1}:{S2}], v{vT0}, {WSS}, s{sA} offen sc1", tag="est")
        A("s_mov_b64 exec, -1")

    def reads(i, sidx):
        slot = i % 3
        it = []
        if slot < 2:
            va, wt, so = (vA0, vA1)[sidx], vWt, slot * SLOT
        else:
            va, wt, so = (vA0b, vA1b)[sidx], vWtb, 0
        tag = f"r{i}_{sidx}"
        for sec in range(3):
            for hf in range(2):
                it.append((f"ds_read_b64_tr_b16 v[{Wf[sidx]+sec*4+hf*2}:{Wf[sidx]+sec*4+hf*2+1}], v{wt} offset:{so + sidx*12288 + sec*1024 + hf*512}", tag))
        for t in range(5):
            it.append((f"ds_read_b128 v[{Af[sidx]+4*t}:{Af[sidx]+4*t+3}], v{va} offset:{so + t*2048}", tag))
        return it

    def mfmas(i, sidx):
        first = (i == 0 and sidx == 0)
        it = []
        W = lambda sec: v(Wf[sidx] + 4 * sec, 4)
        X = lambda t: v(Af[sidx] + 4 * t, 4)
        def m(acc, a, b):
            c = "0" if first else v(acc, 4)
            it.append((f"{MF} {v(acc,4)}, {a}, {b}, {c}", None))
        for t in range(5):
            m(accQ + 4 * t, W(0), X(t))
            m(accK + 4 * t, W(1), X(t))
            m(accV + 4 * t, X(t), W(2))
        return it


    def nonce_test(lbl):
        A(f"""
        v_readfirstlane_b32 s{sBA}, v{vF}
        s_cmp_lg_u32 s{sBA}, 0
        s_cbranch_scc1 {lbl}
        """)
    def nonce_reprobe():
        A(f"v_mov_b32 v{vT3}, 0")
        A(f"buffer_load_dword v{vF}, v{vT3}, s[{SDBG}:{SDBG+3}], 0 offen sc1")
    def nonce_pub():
        A(f"v_mov_b32 v{vT1}, {NONW}\nds_write_b32 v{vT1}, v{vF}")
    def p0(tag):
        A(f"buffer_load_dword v{vF}, v{vP0}, {WSS}, 0 offen offset:{WS_F1} sc1", tag=tag)

    if not opt("ecl", 1):
        A.wait_vm("e")
        early_compute()
    SIG = opt("sig0", 3)
    POLL = opt("poll", 5)
    b2 = []
    for st in range(3):
        b2 += k_dma(SWO, sS2, st, sL2, st * 4096, f"b2_{st}")
    for i in range(8):
        A.wait_vm(f"c{i}")
        if i == 0:
            spin(A, "~non", nonce_test, nonce_reprobe, 0x20000, True, nonce_pub, 2)
        if i == SIG:
            A.wait_vm("est")
        if i == POLL + 1:
            spin(A, "p0", flag_test(A, 1, "-1"), lambda: p0(None))
        A("s_waitcnt lgkmcnt(0)\ns_barrier")
        stamp(A, f"p1 bar{i}")
        dm = dma(i + 2) if i + 2 <= 7 else []
        extra = []
        if i == SIG:
            wg_signal(A, WS_F1, sG, sJ, 1)
        if i == POLL:
            p0("p0")
        if i == POLL + 1:
            extra += [(f"""
            s_lshl_b32 s{sBA}, s{sWH}, 2
            s_add_u32 s{sBA}, s{sBA}, {WS_S1}
            s_lshl_b32 m0, s{sW}, 8
            s_add_u32 m0, m0, {ST}
            buffer_load_dword v{vSl}, {WSS}, s{sBA} offen lds""", "st1")]
        if opt("touch", 1) and opt("touch_i", 2) <= i < opt("touch_i", 2) + 4:
            k = i - opt("touch_i", 2)
            pre = f"""
            s_cmp_eq_u32 s{sW}, 0
            s_cselect_b32 s76, s{SWO}, s{SWD}
            s_cselect_b32 s77, s{SWO+1}, s{SWD+1}
            s_cselect_b32 s78, s{SWO+2}, s{SWD+2}
            s_mov_b32 s79, 0x20000
            s_cmp_lt_u32 s{sW}, 2
            s_cselect_b32 s76, s76, s{SB3}
            s_cselect_b32 s77, s77, s{SB3+1}
            s_cselect_b32 s78, s78, s{SB3+2}
            s_mul_i32 s80, s2, {44*128}
            v_lshlrev_b32 v45, 7, v{vL}
            """ if k == 0 else ""
            extra += [(pre + f"""
            s_add_u32 s{sBA}, s80, {k*11*128}
            s_mov_b64 exec, 0x7ff
            buffer_load_dword v{vT2}, v45, s[76:79], s{sBA} offen
            s_mov_b64 exec, -1""", None)]
        if i == opt("t3_i", 3) and opt("s3pf", 1):
            extra += [(f"""
            s_lshl_b32 s{sBA}, s{sIDX}, 2
            s_add_u32 s{sBA}, s{sBA}, s{sW}
            s_mul_i32 s{sCNT}, s{sBA}, {11*1024}
            s_lshl_b32 s{sBA}, s{sBA}, 12
            v_lshlrev_b32 v{vT3}, 10, v{vL}
            s_mov_b64 exec, 0xf
            buffer_load_dword v{vT2}, v{vT3}, s[{SWO}:{SWO+3}], s{sBA} offen offset:384
            s_mov_b64 exec, 0x7ff
            buffer_load_dword v{vT2}, v{vT3}, s[{SWD}:{SWD+3}], s{sCNT} offen offset:384
            s_mov_b64 exec, -1""", None)]
        if i >= 6:
            extra += b2[:6] if i == 6 else b2[6:]
        if i == 0:
            A(f"v_mov_b32 v{vT1}, {NONW}")
            A(f"ds_read_b32 v{vT2}, v{vT1}", tag="nonrd")
            emit(A, reads(i, 0))
            A.wait_lg("nonrd")
            A(f"v_readfirstlane_b32 s{sNON}, v{vT2}")
        elif i == 1 and opt("ecl", 1):
            emit(A, weave(mfmas(i - 1, 1), [(reads(i, 0), 0, 2), (dm, 6, 1)]))
            dm = []
            early_compute()
        else:
            emit(A, weave(mfmas(i - 1, 1), [(reads(i, 0), 0, 2), (dm[:5], 6, lambda k: k % 2)]))
            dm = dm[5:]
        A.wait_lg(f"r{i}_0")
        rest = dm + extra
        emit(A, weave(mfmas(i, 0), [(reads(i, 1), 0, 2), (rest, 5 if i else 1, 1)]))
    A.wait_lg("r7_1")
    emit(A, mfmas(7, 1))
    stamp(A, "p1 loop done")
    A.wait_vm("st1")
    A("s_barrier")
    KS_[0] = KS(A, 2)
    KS_[0].setup()
    KS_[0].res_loads()
    emit(A, k_dma(SWO, sS2, 3, sW12, 65536, "b2_3"))
    q1 = w3i(range(6))
    L1 = 108
    L2M = 120
    L2R = 140
    csQ, csK, csV = 160, 164, 168
    for t in range(5):
        A(f"ds_read2_b32 v[{L1+2*t}:{L1+2*t+1}], v{vSa} offset0:{16*t} offset1:{128+16*t}", tag="st")
    A(f"v_lshlrev_b32 v{vT2}, 2, v{vJ}")
    A(f"ds_bpermute_b32 v{csV}, v{vT2}, v{accV}", tag="st")
    for t in range(5):
        A(f"ds_read_b128 v[{L2M+4*t}:{L2M+4*t+3}], v{vSc} offset:{64*t}", tag="st2")
        A(f"ds_read_b128 v[{L2R+4*t}:{L2R+4*t+3}], v{vSc} offset:{512+64*t}", tag="st2")
    for r_ in range(4):
        A(f"v_mov_b32_dpp v{csQ+r_}, v{accQ+r_} row_newbcast:0 row_mask:0xf bank_mask:0xf")
        A(f"v_mov_b32_dpp v{csK+r_}, v{accK+r_} row_newbcast:0 row_mask:0xf bank_mask:0xf")
    A(f"""
    s_lshl_b32 s{sC}, s{sRB}, 16
    s_lshl_b32 s{sB}, s{sCB}, 11
    s_add_u32 s{sC}, s{sC}, s{sB}
    s_lshl_b32 s{sB}, s{sW}, 9
    s_add_u32 s{sC}, s{sC}, s{sB}
    s_add_u32 s{sC}, s{sC}, {WS_O}
    """)
    A.wait_lg("st")
    Kp, Qp, Vp = 210, 220, 230

    def fold_kq(acc, cs, P, scale, t):
        a = acc + 4 * t
        for h in range(2):
            A(f"v_pk_fma_f32 v[{a+2*h}:{a+2*h+1}], v[{cs+2*h}:{cs+2*h+1}], v[{L1+2*t}:{L1+2*t+1}], v[{a+2*h}:{a+2*h+1}] op_sel:[0,0,0] op_sel_hi:[1,0,1] neg_lo:[0,1,0] neg_hi:[0,1,0]")
        if scale:
            for h in range(2):
                A(f"v_pk_mul_f32 v[{a+2*h}:{a+2*h+1}], v[{a+2*h}:{a+2*h+1}], v[{L1+2*t}:{L1+2*t+1}] op_sel:[0,1] op_sel_hi:[1,1]")
        for h in range(2):
            A(f"v_cvt_pk_bf16_f32 v{P+2*t+h}, v{a+2*h}, v{a+2*h+1}")

    def fold_v(t):
        a = accV + 4 * t
        for h in range(2):
            A(f"v_pk_fma_f32 v[{a+2*h}:{a+2*h+1}], v[{L2M+4*t+2*h}:{L2M+4*t+2*h+1}], v[{csV}:{csV+1}], v[{a+2*h}:{a+2*h+1}] op_sel:[0,0,0] op_sel_hi:[1,0,1] neg_lo:[1,0,0] neg_hi:[1,0,0]")
        for h in range(2):
            A(f"v_pk_mul_f32 v[{a+2*h}:{a+2*h+1}], v[{a+2*h}:{a+2*h+1}], v[{L2R+4*t+2*h}:{L2R+4*t+2*h+1}]")
        for h in range(2):
            A(f"v_cvt_pk_bf16_f32 v{Vp+2*t+h}, v{a+2*h}, v{a+2*h+1}")

    def attn(step):
        ts = (1, 2) if step == 0 else (3, 4)
        k = lambda t: t - ts[0]
        Sp = lambda t: 172 + 8 * k(t)
        Sc = lambda t: 176 + 8 * k(t)
        X = lambda t, i: 240 + 4 * k(t) + i
        MX = lambda t: 188 + k(t)
        MY = lambda t: 190 + k(t)
        CQ = lambda t: 192 + k(t)
        Pf = lambda t: 172 + 4 * k(t)
        Oa = lambda t: 180 + 4 * k(t)
        Su = lambda t: 240 + 4 * k(t)
        OP = 248 + 4 * step
        for t in (((0,) if step == 0 else ()) + ts):
            fold_kq(accK, csK, Kp, True, t)
        for t in ts:
            fold_kq(accQ, csQ, Qp, False, t)
        for t in ts:
            A(f"{MF16} {v(Sp(t),4)}, {v(Kp+2*(t-1),2)}, {v(Qp+2*t,2)}, {v(biasF if t==1 else biasP,4)}")
            A(f"{MF16} {v(Sc(t),4)}, {v(Kp+2*t,2)}, {v(Qp+2*t,2)}, {v(biasC,4)}")
        if step == 0:
            A.wait_lg("st2")
        for t in (((0,) if step == 0 else ()) + ts):
            fold_v(t)
        for t in ts:
            A(f"v_mul_f32 v{CQ(t)}, {f32hex(0.25*LOG2E)}, v{L1+2*t+1}")
        for t in ts:
            A(f"""
            v_max_f32 v{X(t,0)}, v{Sp(t)}, v{Sp(t)+1}
            v_max_f32 v{X(t,1)}, v{Sp(t)+2}, v{Sp(t)+3}
            v_max_f32 v{X(t,2)}, v{Sc(t)}, v{Sc(t)+1}
            v_max_f32 v{X(t,3)}, v{Sc(t)+2}, v{Sc(t)+3}
            v_max3_f32 v{MX(t)}, v{X(t,0)}, v{X(t,1)}, v{X(t,2)}
            v_max_f32 v{MX(t)}, v{MX(t)}, v{X(t,3)}
            v_mov_b32 v{MY(t)}, v{MX(t)}
            """)
        for sw in ("v_permlane16_swap_b32", "v_permlane32_swap_b32"):
            for t in ts:
                A(f"{sw} v{MX(t)}, v{MY(t)}")
            for t in ts:
                A(f"v_max_f32 v{MX(t)}, v{MX(t)}, v{MY(t)}")
            if sw.startswith("v_permlane16"):
                for t in ts:
                    A(f"v_mov_b32 v{MY(t)}, v{MX(t)}")
        for t in ts:
            A(f"v_mul_f32 v{MX(t)}, v{MX(t)}, v{CQ(t)}")
        for t in ts:
            for i in range(4):
                A(f"v_fma_f32 v{X(t,i)}, v{X(t,i)}, v{CQ(t)}, -v{MX(t)}")
        for t in ts:
            for i in range(4):
                A(f"v_exp_f32 v{X(t,i)}, v{X(t,i)}")
        if step == 1:
            ev, A.every = A.every, None
            A.wait_vm("ost0")
            A("s_barrier")
            wg_signal(A, WS_F1, sG, sJ, 2)
            A.every = ev
        for t in ts:
            A(f"""
            v_cvt_pk_bf16_f32 v{MX(t)}, v{X(t,0)}, v{X(t,1)}
            v_cvt_pk_bf16_f32 v{MY(t)}, v{X(t,2)}, v{X(t,3)}
            """)
        for t in ts:
            A(f"""
            v_perm_b32 v{Pf(t)}, v{MX(t)}, v{MX(t)}, v{selLo}
            v_perm_b32 v{Pf(t)+1}, v{MX(t)}, v{MX(t)}, v{selHi}
            v_perm_b32 v{Pf(t)+2}, v{MY(t)}, v{MY(t)}, v{selLo}
            v_perm_b32 v{Pf(t)+3}, v{MY(t)}, v{MY(t)}, v{selHi}
            """)
        for t in ts:
            A(f"{MF} {v(Su(t),4)}, {v(ones,4)}, {v(Pf(t),4)}, 0")
            A(f"{MF} {v(Oa(t),4)}, {v(Vp+2*(t-1),4)}, {v(Pf(t),4)}, 0")
        for t in ts:
            A(f"v_rcp_f32 v{Su(t)}, v{Su(t)}")
        for t in ts:
            o = Oa(t)
            A(f"""
            v_pk_mul_f32 v[{o}:{o+1}], v[{o}:{o+1}], v[{Su(t)}:{Su(t)+1}] op_sel:[0,0] op_sel_hi:[1,0]
            v_pk_mul_f32 v[{o+2}:{o+3}], v[{o+2}:{o+3}], v[{Su(t)}:{Su(t)+1}] op_sel:[0,0] op_sel_hi:[1,0]
            v_cvt_pk_bf16_f32 v{OP+2*k(t)}, v{o}, v{o+1}
            v_cvt_pk_bf16_f32 v{OP+2*k(t)+1}, v{o+2}, v{o+3}
            """)
        A(f"""
        v_permlane16_swap_b32 v{OP}, v{OP+2}
        v_permlane16_swap_b32 v{OP+1}, v{OP+3}
        s_add_u32 s{sB}, s{sC}, {step*32768}
        """)
        A(f"buffer_store_dwordx4 v[{OP}:{OP+3}], v{vOst}, {WSS}, s{sB} offen sc1", tag=f"ost{step}")


    A.every = (opt("r1per", 40), lambda: emit(A, [q1.pop(0)] if q1 else []))
    attn(0)
    stamp(A, "p1 step A stored")
    attn(1)
    A.every = None
    emit(A, q1)
    stamp(A, "p1 step B stored")


def p2(A):
    K = KS_[0]
    TA = 196
    A(f"""
    v_bfe_u32 v{vT2}, v{vL}, 1, 1
    v_lshlrev_b32 v{vT2}, 4, v{vT2}
    v_and_b32 v{vT3}, 1, v{vL}
    v_lshl_add_u32 v{vT2}, v{vT3}, 3, v{vT2}
    s_lshl_b32 s{t1}, s{sW1}, 6
    v_xor_b32 v{vT2}, s{t1}, v{vT2}
    v_bfe_u32 v{vT0}, v{vL}, 2, 2
    v_and_b32 v{vT1}, 2, v{vT0}
    v_lshlrev_b32 v{vT1}, 4, v{vT1}
    v_xor_b32 v{vT1}, v{vT1}, v{vT2}
    v_lshl_add_u32 v{vT1}, v{vT0}, 7, v{vT1}
    v_lshl_add_u32 v{vT1}, v{vQ}, 10, v{vT1}
    v_add_u32 v{TA}, s{sL2}, v{vT1}
    v_xor_b32 v{TA+1}, 32, v{TA}
    v_xor_b32 v{TA+2}, 64, v{TA}
    v_xor_b32 v{TA+3}, 96, v{TA}
    v_lshrrev_b32 v{vT0}, 2, v{vL}
    v_mul_u32_u24 v{vT0}, 192, v{vT0}
    v_bfe_u32 v{vT1}, v{vL}, 1, 1
    v_mul_u32_u24 v{vT2}, 3072, v{vT1}
    v_add_u32 v{vT0}, v{vT0}, v{vT2}
    v_and_b32 v{vT2}, 1, v{vQ}
    v_lshl_add_u32 v{vT1}, v{vT1}, 1, v{vT2}
    v_and_b32 v{vT2}, 1, v{vL}
    s_lshl_b32 s{t3}, s{sWH}, 2
    s_add_u32 s{t3}, s{t3}, s{sW1}
    v_xor_b32 v{vT3}, s{t3}, v{vT1}
    v_lshl_add_u32 v{vT3}, v{vT3}, 4, v{vT0}
    v_lshl_add_u32 v{VTR3[0]}, v{vT2}, 3, v{vT3}
    s_add_u32 s{t3}, s{t3}, 2
    v_xor_b32 v{vT3}, s{t3}, v{vT1}
    v_lshl_add_u32 v{vT3}, v{vT3}, 4, v{vT0}
    v_lshl_add_u32 v{VTR3[1]}, v{vT2}, 3, v{vT3}
    s_add_u32 s{t3}, s{sWH}, 8
    v_lshl_add_u32 v{vT3}, v{vT2}, 1, s{t3}
    v_xor_b32 v{vT3}, v{vT3}, v{vT1}
    v_lshl_add_u32 v{vT3}, v{vT3}, 4, v{vT0}
    s_lshl_b32 s{t2}, s{sW1}, 3
    v_add_u32 v{VTR3[2]}, s{t2}, v{vT3}
    """)
    A.wait_vm("b2_3")
    for st in range(4):
        if st == 3:
            A(f"s_sub_u32 s{t1}, s{sL2}, s{sW12}\ns_sub_u32 s{t1}, s{t1}, 65536")
            for ct in range(4):
                A(f"v_subrev_u32 v{TA+ct}, s{t1}, v{TA+ct}")
        off = st * 4096 if st < 3 else 0
        for ct in range(4):
            A(f"ds_read_b64_tr_b16 {r(B2reg(st,ct),0,2)}, v{TA+ct} offset:{off}")
            A(f"ds_read_b64_tr_b16 {r(B2reg(st,ct),2,2)}, v{TA+(ct^2)} offset:{off+512}")
    w3w(A, [0, 1, 2])
    wg_poll(A, WS_F1, sG, 2, True)
    stamp(A, "p2 flagsA ok")
    emit(A, K.a_loads(0))
    w3r(A, [0, 1, 2])
    emit(A, w3i([6, 7]))
    A.wait_vm("ost1")
    w3w(A, [3, 4, 5])
    A("s_waitcnt lgkmcnt(0)\ns_barrier")
    wg_signal(A, WS_F1, sG, sJ, 3)
    w3r(A, [3, 4, 5])
    K.mfmas(0, [x for it in w3i([8, 9]) for x in (it, lambda: None, lambda: None)])
    K.reduce(0)
    stamp(A, "p2 h0 stored")
    A.wait_vm("hst0")
    A("s_barrier")
    wg_signal(A, WS_F2, sG, sJ, 1)
    stamp(A, "p2 sig H0")
    emit(A, w3i([10, 11]))
    w3r(A, [6, 7, 8, 9])
    wg_poll(A, WS_F1, sG, 3, True)
    stamp(A, "p2 flagsB ok")
    emit(A, K.a_loads(1))
    emit(A, w3i([12, 13]))
    w3w(A, [10, 11])
    A("s_barrier")
    w3r(A, [10, 11])


def p3(A):
    vH4, vH2, vAr, vS2 = 12, 13, 14, 26
    cs = 192
    accs = [32, 80]
    Af = 128
    stts = 160
    wg_poll(A, WS_F2, sG3, 1)
    stamp(A, "p3 flags ok")

    def a_dma(p):
        it = []
        for idx in range(4):
            c, ti = 2 * p + (idx >> 1), idx & 1
            pre = f"""
            s_lshl_b32 s{sC}, s{sG3}, 17
            s_add_u32 s{sC}, s{sC}, s{sW12}
            s_add_u32 s{sC}, s{sC}, {WS_H + (c+4*ti)*16384}
            s_add_u32 m0, s{sW12}, {p*65536 + idx*16384}
            """
            for n in range(4):
                it.append(((pre if n == 0 else "") + f"""
                buffer_load_dwordx4 v{vL16}, {WSS}, s{sC} offen offset:{n*1024} lds""", f"a{p}"))
        return it

    RAW = [stts, accs[0]]
    RES = lambda p, idx: stts + 8 * idx + 4 * p

    def st_loads(p):
        return [(f"""
        s_lshl_b32 s{sA}, s{sG3}, 14
        s_lshl_b32 s{sB}, s{sWH}, 11
        s_add_u32 s{sA}, s{sA}, s{sB}
        s_lshl_b32 s{sB}, s{sW1}, 13
        s_add_u32 s{sA}, s{sA}, s{sB}
        s_add_u32 s{sA}, s{sA}, {WS_ST + 2*p*2048}
        s_lshl_b32 s{sB}, s{sW}, 11
        s_add_u32 m0, s{sB}, {STB + p*8192}
        buffer_load_dwordx4 v{vL16}, {WSS}, s{sA} offen lds
        buffer_load_dwordx4 v{vL16}, {WSS}, s{sA} offen offset:1024 lds""", f"s{p}")]

    def mk(unpk):
        it = []
        def add(t):
            if unpk and t.startswith("v_pk_"):
                for x in unpack_pk(t):
                    it.append((x, None))
            else:
                it.append((t, None))
        return it, add

    def stats(p):
        it, add = mk(1)
        B = [RAW[p] + 8 * idx for idx in range(4)]
        for idx, b in enumerate(B):
            if idx:
                add(f"v_add_u32 v{vS2}, 2048, v{vS2}")
            it.append((f"ds_read2_b64 v[{b}:{b+3}], v{vS2} offset0:0 offset1:16", f"sr{p}"))
            it.append((f"ds_read2_b64 v[{b+4}:{b+7}], v{vS2} offset0:32 offset1:48", f"sr{p}"))
        add(f"v_add_u32 v{vS2}, 2048, v{vS2}")
        it += [lambda: None] * 6
        it.append(lambda: A.wait_lg(f"sr{p}"))
        for b in B:
            add(f"v_pk_add_f32 v[{b}:{b+1}], v[{b}:{b+1}], v[{b+2}:{b+3}]")
            add(f"v_pk_add_f32 v[{b+4}:{b+5}], v[{b+4}:{b+5}], v[{b+6}:{b+7}]")
        for b in B:
            add(f"v_pk_add_f32 v[{b}:{b+1}], v[{b}:{b+1}], v[{b+4}:{b+5}]")
        for sw in ("v_permlane16_swap_b32", "v_permlane32_swap_b32"):
            for b in B:
                add(f"v_mov_b32 v{b+2}, v{b}")
                add(f"v_mov_b32 v{b+3}, v{b+1}")
            for b in B:
                add(f"{sw} v{b}, v{b+2}")
                add(f"{sw} v{b+1}, v{b+3}")
            for b in B:
                add(f"v_pk_add_f32 v[{b}:{b+1}], v[{b}:{b+1}], v[{b+2}:{b+3}]")
        for op in ("v_mul_f32 v{m}, 0x3b000000, v{b}", "v_mul_f32 v{b1}, 0x3b000000, v{b1}", "v_fma_f32 v{b1}, -v{m}, v{m}, v{b1}",
                   "v_max_f32 v{b1}, 0, v{b1}", "v_add_f32 v{b1}, " + f32hex(1e-5) + ", v{b1}", "v_rcp_f32 v{m1}, v{b1}"):
            for idx, b in enumerate(B):
                add(op.format(b=b, b1=b + 1, m=RES(p, idx), m1=RES(p, idx) + 1))
        it.append((f"""
        v_cmp_gt_u32 vcc, 32, v{vL}
        v_cndmask_b32 v{RES(p,0)+2}, v{RES(p,1)+1}, v{RES(p,0)+1}, vcc
        v_cndmask_b32 v{RES(p,2)+2}, v{RES(p,3)+1}, v{RES(p,2)+1}, vcc""", None))
        return it

    def epilogue(p):
        it, add = mk(0)
        Q = accs[p] + 16
        base = f"""
        s_mul_i32 s{sA}, s{sG3}, {8*HHK*1024}
        s_mul_i32 s{sB}, s{sJ3}, 3072
        s_add_u32 s{sA}, s{sA}, s{sB}
        """
        for cc in range(2):
            acc = accs[p] + 24 * cc
            rs = RES(p, 2 * cc) + 2
            for u in range(3):
                for ti in range(2):
                    a = acc + (ti * 3 + u) * 4
                    b = RES(p, 2 * cc + ti)
                    for h in range(2):
                        add(f"v_pk_fma_f32 v[{a+2*h}:{a+2*h+1}], v[{cs+4*u+2*h}:{cs+4*u+2*h+1}], v[{b}:{b+1}], v[{a+2*h}:{a+2*h+1}] op_sel:[0,0,0] op_sel_hi:[1,0,1] neg_lo:[0,1,0] neg_hi:[0,1,0]")
            for u in range(3):
                for r_ in range(4):
                    add(f"v_permlane32_swap_b32 v{acc+u*4+r_}, v{acc+(3+u)*4+r_}")
            PK = acc + 12
            for u in range(3):
                g, up = acc + u * 4, acc + (3 + u) * 4
                for r_ in range(4):
                    add(f"v_max_f32 v{g+r_}, 0, v{g+r_}")
                for h in range(2):
                    add(f"v_pk_mul_f32 v[{g+2*h}:{g+2*h+1}], v[{g+2*h}:{g+2*h+1}], v[{up+2*h}:{up+2*h+1}]")
                for h in range(2):
                    add(f"v_pk_mul_f32 v[{g+2*h}:{g+2*h+1}], v[{g+2*h}:{g+2*h+1}], v[{rs}:{rs+1}] op_sel:[0,0] op_sel_hi:[1,0]")
                for h in range(2):
                    add(f"v_cvt_pk_bf16_f32 v{(PK+2*u if u < 2 else Q+2*cc)+h}, v{g+2*h}, v{g+2*h+1}")
                if u == 1:
                    it.append((base + f"""
                    s_add_u32 s{sA}, s{sA}, {WS_HH + (2*p+cc)*HHK*1024}
                    buffer_store_dwordx4 v[{PK}:{PK+3}], v{vH4}, {WSS}, s{sA} offen sc1""", f"hh{p}"))
        add(f"v_permlane16_swap_b32 v{Q}, v{Q+2}")
        add(f"v_permlane16_swap_b32 v{Q+1}, v{Q+3}")
        it.append((base + f"""
        s_add_u32 s{sA}, s{sA}, {WS_HH + (2*p)*HHK*1024}
        buffer_store_dwordx4 v[{Q}:{Q+3}], v{vH2}, {WSS}, s{sA} offen sc1""", f"hh{p}"))
        return it


    ad = a_dma(0) + st_loads(0)
    na = opt("a3n", 8)
    emit(A, ad[:na])
    K = KS_[0]
    K.mfmas(1, [(lambda k=k: emit(A, ad[na+k:na+k+1])) for k in range(8)] + ad[na+8:])
    K.reduce(1, None, lambda: emit(A, w3i([14, 15])))
    stamp(A, "p2 h1 stored")
    for ks in range(12):
        for u in range(3):
            d = v(cs + 4 * u, 4)
            A(f"{MF} {d}, {r(B3reg(ks,u),0,4)}, {v(ones,4)}, {'0' if ks==0 else d}")
    A(f"""
    v_lshrrev_b32 v{vT0}, 1, v{vQ}
    v_mul_u32_u24 v{vT0}, {4*HHK*1024}, v{vT0}
    v_lshl_add_u32 v{vT0}, v{vJ}, 4, v{vT0}
    v_and_b32 v{vT1}, 1, v{vQ}
    s_lshl_b32 s{sA}, s{sWH}, 10
    s_lshl_b32 s{sB}, s{sW1}, 9
    s_add_u32 s{sA}, s{sA}, s{sB}
    v_lshl_add_u32 v{vH4}, v{vT1}, 8, v{vT0}
    v_add_u32 v{vH4}, s{sA}, v{vH4}
    s_lshl_b32 s{sA}, s{sW}, 8
    s_add_u32 s{sA}, s{sA}, 2048
    v_mul_u32_u24 v{vT1}, {HHK*1024}, v{vT1}
    v_add_u32 v{vH2}, v{vT1}, v{vT0}
    v_add_u32 v{vH2}, s{sA}, v{vH2}
    v_lshlrev_b32 v{vS2}, 3, v{vJ}
    v_lshl_add_u32 v{vS2}, v{vQ}, 9, v{vS2}
    v_add_u32 v{vS2}, {STB}, v{vS2}
    """)

    TB = 204
    def b4addr():
      A(f"""
    v_bfe_u32 v{vT2}, v{vL}, 1, 1
    v_lshlrev_b32 v{vT2}, 4, v{vT2}
    v_and_b32 v{vT3}, 1, v{vL}
    v_lshl_add_u32 v{vT2}, v{vT3}, 3, v{vT2}
    s_lshl_b32 s{t1}, s{sW1}, 6
    v_xor_b32 v{vT2}, s{t1}, v{vT2}
    v_bfe_u32 v{vT0}, v{vL}, 2, 3
    v_and_b32 v{vT1}, 6, v{vT0}
    v_lshlrev_b32 v{vT1}, 4, v{vT1}
    v_xor_b32 v{vT1}, v{vT1}, v{vT2}
    v_lshl_add_u32 v{vT1}, v{vT0}, 7, v{vT1}
    v_lshrrev_b32 v{vT0}, 5, v{vL}
    v_lshl_add_u32 v{vT1}, v{vT0}, 10, v{vT1}
    s_add_u32 s{t1}, s{sW12}, 65536
    v_add_u32 v{TB}, s{t1}, v{vT1}
    v_xor_b32 v{TB+1}, 32, v{TB}
    v_xor_b32 v{TB+2}, 64, v{TB}
    v_xor_b32 v{TB+3}, 96, v{TB}
    """)

    def b4_dma(sts, region):
        it = []
        for n, st in enumerate(sts):
            it += k_dma(SWD, sS4, st, sW12, region + n * 16384, f"b4_{st}", st == 0)
        return it

    def b4_tr(sts):
        it = []
        for n, st in enumerate(sts):
            it.append(lambda st=st: A.wait_vm(f"b4_{st}"))
            for ct in range(4):
                for hf in range(2):
                    it.append((f"ds_read_b64_tr_b16 {r(B4reg(st,ct),hf*2,2)}, v{TB+ct} offset:{n*16384 + hf*2048}", "b4t"))
        return it

    for p in range(2):
        acc = accs[p]
        A.wait_vm([f"a{p}", f"s{p}"])
        A("s_waitcnt lgkmcnt(0)\ns_barrier")
        stamp(A, f"p3 pass{p} start")
        fillv = stats(p)
        if p == 0:
            fillm = []
        else:
            for ct in range(4):
                A(f"v_subrev_u32 v{TB+ct}, 65536, v{TB+ct}")
            fillm = b4_dma([4, 5, 6, 7], 0)
            KS_[0] = KS(A, 4)
            l0 = KS_[0].a_loads(0)
        A(f"v_add_u32 v{vAr}, {p*65536}, v{vL16}")
        rd = lambda ks: [(f"ds_read_b128 {v(Af+((ks%2)*4+idx)*4,4)}, v{vAr} offset:{idx*16384 + ks*1024}", f"f{ks}") for idx in range(4)]
        emit(A, rd(0))
        n = 0
        for ks in range(16):
            nxt = rd(ks + 1) if ks + 1 < 16 else []
            if p == 0 and ks == opt("sig4ks", 1):
                A.wait_vm("hst1")
                w3w(A, [12, 13, 14, 15])
                A("s_barrier")
                wg_signal(A, WS_F2, sG, sJ, 2)
                w3r(A, [12, 13, 14, 15])
            if p == 0 and ks == opt("sig4ks", 1) + 2:
                A("s_waitcnt lgkmcnt(0)\ns_barrier")
                b4addr()
                fillm += b4_dma([0, 1, 2, 3], 65536)
            if p == 0 and ks == opt("pr4ks", 6):
                vprobe(A, WS_F2, sG3, "pr4")
            if p == 0 and ks == opt("tr0ks", 9):
                fillv += b4_tr([0, 1, 2, 3])
            if p == 0 and ks == opt("ck4ks", 12):
                emit(A, fillv)
                fillv = []
                A.wait_lg("b4t")
                vcheck(A, WS_F2, sG3, 2, "pr4")
                fillm += st_loads(1) + a_dma(1)
            if p == 1 and ks == opt("sig5ks", 1):
                A.wait_vm("hh0")
                A("s_barrier")
                wg_signal(A, WS_F3, sG3, sJ3, 1)
            if p == 1 and ks == opt("tr1ks", 7):
                fillv += b4_tr([4, 5, 6, 7])
            if p == 1 and ks == opt("pr5ks", 8):
                vprobe(A, WS_F3, sG, "pr5")
            if p == 1 and ks == opt("dm2ks", 10):
                emit(A, fillv)
                fillv = []
                A.wait_lg("b4t")
                fillm += b4_dma([8, 9, 10], 0)
            if p == 1 and ks == opt("ck5ks", 13):
                vcheck(A, WS_F3, sG, 1, "pr5")
                fillm += l0[:opt("p4n0", 10)]
            A.wait_lg(f"f{ks}")
            for idx in range(4):
                for u in range(3):
                    d = v(acc + (idx * 3 + u) * 4, 4)
                    A(f"{MF} {d}, {r(B3reg(ks,u),0,4)}, {v(Af+((ks%2)*4+idx)*4,4)}, {'0' if ks==0 else d}")
                    n += 1
                    if nxt and u == 0:
                        emit(A, [nxt.pop(0)])
                    elif n > 6:
                        for _ in range(2):
                            if fillv:
                                emit(A, [fillv.pop(0)])
                    if n % opt("p3mper", 3) == 2 and fillm and not (ks < 1):
                        emit(A, [fillm.pop(0)])
        emit(A, fillv + fillm)
        if p == 0:
            for ks in range(12, 16):
                for u in range(3):
                    d = v(cs + 4 * u, 4)
                    A(f"{MF} {d}, {r(B3reg(ks,u),0,4)}, {v(ones,4)}, {d}")
        stamp(A, f"p3 pass{p} mfma done")
        emit(A, epilogue(p))
    stamp(A, "p3 stores issued")
    K = KS_[0]
    emit(A, K.a_loads(0, opt("p4n0", 10)))
    emit(A, b4_tr([8, 9, 10]))
    A("s_waitcnt lgkmcnt(0)")


def p4(A):
    K = KS_[0]
    K.setup()
    A.wait_vm("hh1")
    A("s_barrier")
    wg_signal(A, WS_F3, sG3, sJ3, 2)
    stamp(A, "p3 signalled")
    l1 = K.a_loads(1)
    ck = opt("p4ck", 12)
    fill = [lambda: None] * ck
    fill += [lambda: (wg_poll(A, WS_F3, sG, 2), stamp(A, "p4 flags ok"), emit(A, l1[:10]))]
    rest = l1[10:]
    fill += [(lambda k=k: emit(A, rest[2*k:2*k+2])) for k in range(6)]
    K.mfmas(0, fill)
    K.reduce(0)
    stamp(A, "p4 h0 stored")
    K.mfmas(1)
    K.reduce(1)


def main(path):
    A = Asm()
    label = NAME + "_kernel"
    A.raw("; @launch grid=(256,1,1) block=(256,1,1) lds=163840")
    A.raw('.amdgcn_target "amdgcn-amd-amdhsa--gfx950"\n.text')
    p1(A, label)
    p2(A)
    p3(A)
    p4(A)
    if opt("pad", 0) == 1:
        A.raw("L_padstart:")
        for i in range(2048):
            A(f"v_add3_u32 v{40+(i%8)}, v1, v2, v{40+(i%8)}")
    if opt("pad", 0) == 2:
        A(f"s_mov_b32 s{sA}, 0")
        A.raw("L_padloop:")
        for i in range(64):
            A(f"v_add3_u32 v{40+(i%8)}, v1, v2, v{40+(i%8)}")
        A(f"s_add_u32 s{sA}, s{sA}, 1\ns_cmp_lt_u32 s{sA}, 32\ns_cbranch_scc1 L_padloop")
    if INSTR:
        A("s_waitcnt vmcnt(0) lgkmcnt(0)")
        stamp(A, "end")
        A(f"""
        s_memrealtime s[100:101]
        s_waitcnt lgkmcnt(0)
        v_writelane_b32 v{vSTAMP}, s100, 63
        s_lshl_b32 s{sA}, s2, 2
        s_add_u32 s{sA}, s{sA}, s{sW}
        s_lshl_b32 s{sA}, s{sA}, 8
        s_add_u32 s{sA}, s{sA}, {WS_PROF}
        v_lshlrev_b32 v{vT0}, 2, v{vL}
        buffer_store_dword v{vSTAMP}, v{vT0}, {WSS}, s{sA} offen
        s_waitcnt vmcnt(0)
        """)
        open(path + ".stamps", "w").write("\n".join(STAMPNAMES))
    if opt("dbgt", 0):
        A(f"""
        s_waitcnt vmcnt(0) lgkmcnt(0)
        s_memrealtime s[100:101]
        s_waitcnt lgkmcnt(0)
        v_mov_b32 v{vT0}, s100
        v_mov_b32 v{vT1}, s59
        v_not_b32 v{vT2}, v{vT1}
        v_mov_b32 v{vT3}, 0
        s_mov_b64 exec, 1
        buffer_atomic_umax v{vT0}, v{vT3}, s[{SDBG}:{SDBG+3}], 0 offen offset:16 sc1
        buffer_atomic_umax v{vT1}, v{vT3}, s[{SDBG}:{SDBG+3}], 0 offen offset:20 sc1
        buffer_atomic_umax v{vT2}, v{vT3}, s[{SDBG}:{SDBG+3}], 0 offen offset:24 sc1
        s_waitcnt vmcnt(0)
        """)
    A.raw("L_done:")
    A("s_endpgm")
    A.raw(f""".section .rodata,"a"
.p2align 6
.amdhsa_kernel {label}
  .amdhsa_next_free_vgpr 512
  .amdhsa_next_free_sgpr 102
  .amdhsa_accum_offset 256
  .amdhsa_group_segment_fixed_size 0
  .amdhsa_kernarg_size 80
  .amdhsa_user_sgpr_count 2
  .amdhsa_user_sgpr_kernarg_segment_ptr 1
  .amdhsa_system_sgpr_workgroup_id_x 1
.end_amdhsa_kernel""")
    open(path, "w").write(A.text())
    print("instructions", A.nins, "nops", A.nnop)


if __name__ == "__main__":
    main(sys.argv[1] if len(sys.argv) > 1 else f"k15.s")
```
